```python
import torch

def _softmax(x, axis=-1):
    return torch.softmax(x, dim=axis)
def _gelu(x):
    return torch.nn.functional.gelu(x, approximate="tanh")
def _silu(x):
    return torch.nn.functional.silu(x)
def _sigmoid(x):
    return torch.sigmoid(x)
def _layernorm(x, axis=-1, eps=1e-5):
    m = x.mean(dim=axis, keepdim=True)
    v = x.var(dim=axis, keepdim=True, unbiased=False)
    return (x - m) / torch.sqrt(v + eps)
def _scatter_add(tgt, idx, src, axis=0):
    return tgt.clone().index_add_(axis, idx, src)
def _segment_sum(src, seg, n):
    out = torch.zeros((n,) + src.shape[1:], dtype=src.dtype)
    return out.index_add_(0, seg, src)
def _pad(x, pw):
    flat = tuple(v for pair in reversed(pw) for v in pair)
    return torch.nn.functional.pad(x, flat)

kernel_name = 'sequential_preLN__ssm_conv_s4__dense_activation_relu__prompt'

def setup_inputs():

    _w = (lambda a: (lambda t: t.to(torch.bfloat16) if t.is_floating_point() else t)(torch.as_tensor(a)))
    def _A_setup():
        B, L, D, N = 1, 2048, 640, 128
        A_re = -(lambda _x: torch.exp(torch.as_tensor(_x)))((lambda *s: torch.randn(*s, dtype=torch.bfloat16) * 3.2)(D, N))
        A_im = torch.pi * (lambda *s: torch.randn(*s, dtype=torch.bfloat16) * 0.05)(D, N)
        B_re = (lambda *s: torch.randn(*s, dtype=torch.bfloat16) * 0.1)(D, N)
        B_im = (lambda *s: torch.randn(*s, dtype=torch.bfloat16) * 0.1)(D, N)
        C_re = (lambda *s: torch.randn(*s, dtype=torch.bfloat16) * 0.1)(D, N)
        C_im = (lambda *s: torch.randn(*s, dtype=torch.bfloat16) * 0.1)(D, N)
        log_dt = (lambda *s: torch.randn(*s, dtype=torch.bfloat16) * 0.05)(D) * 0.5 - 4.0
        Dskip = (lambda *s: torch.randn(*s, dtype=torch.bfloat16) * 0.05)(D)
        return {
            "u": _w((lambda *s: torch.randn(*s, dtype=torch.bfloat16) * 0.05)(B, L, D)),
            "A_re": _w(A_re),
            "A_im": _w(A_im),
            "B_re": _w(B_re),
            "B_im": _w(B_im),
            "C_re": _w(C_re),
            "C_im": _w(C_im),
            "log_dt": _w(log_dt),
            "Dskip": _w(Dskip),
        }
    _A_in = _A_setup()

    def _B_setup():
        B, S, D, Dff = 1, 2048, 640, 1728
        return {
            "x": _w((lambda *s: torch.randn(*s, dtype=torch.bfloat16) * 0.05)(B, S, D)),
            "w1": _w((lambda *s: torch.randn(*s, dtype=torch.bfloat16) * 0.05)(D, Dff)),
            "w2": _w((lambda *s: torch.randn(*s, dtype=torch.bfloat16) * 0.05)(Dff, D)),
        }
    _B_in = _B_setup()

    return {
        "A_u": _A_in["u"],
        "A_A_re": _A_in["A_re"],
        "A_A_im": _A_in["A_im"],
        "A_B_re": _A_in["B_re"],
        "A_B_im": _A_in["B_im"],
        "A_C_re": _A_in["C_re"],
        "A_C_im": _A_in["C_im"],
        "A_log_dt": _A_in["log_dt"],
        "A_Dskip": _A_in["Dskip"],
        "B_x": _B_in["x"],
        "B_w1": _B_in["w1"],
        "B_w2": _B_in["w2"],
    }

def reference(A_u, A_A_re, A_A_im, A_B_re, A_B_im, A_C_re, A_C_im, A_log_dt, A_Dskip, B_x, B_w1, B_w2):
    def _A_ref(u, A_re, A_im, B_re, B_im, C_re, C_im, log_dt, Dskip):
        Bsz, L, D = u.shape
        dt = torch.exp(log_dt)[:, None]
        A = A_re + 1j * A_im
        Bc = B_re + 1j * B_im
        Cc = C_re + 1j * C_im
        logdA = dt * A
        dB = dt * Bc
        l = (lambda x, dt: x.to(dt))(torch.arange(L), A_re.dtype)
        P = torch.exp(logdA[:, :, None] * l[None, None, :])
        K = torch.einsum("dn,dnl,dn->dl", Cc, P, dB).real
        L2 = 2 * L
        Kp = _pad(K, ((0, 0), (0, L)))
        up = (lambda x, *d: x.permute(*d))(u, 0, 2, 1)
        up = _pad(up, ((0, 0), (0, 0), (0, L)))
        Kf = (lambda x, axes=(-2,-1): torch.fft.rfft2(x.float(), dim=axes))(Kp[:, None, :], axes=(-2, -1))
        Uf = (lambda x, axes=(-2,-1): torch.fft.rfft2(x.float(), dim=axes))(up[:, :, None, :], axes=(-2, -1))
        Yf = Uf * Kf[None, :, :, :]
        y = (lambda x, s, axes=(-2,-1): torch.fft.irfft2(x, s=s, dim=axes).to(torch.bfloat16))(Yf, (1, L2), axes=(-2, -1))[:, :, 0, :L]
        y = (lambda x, *d: x.permute(*d))(y, 0, 2, 1) + u * Dskip[None, None, :]
        return y

    def _B_ref(x, w1, w2):
        h = torch.einsum("bsd,df->bsf", x, w1)
        zero = torch.zeros_like(h)
        h = torch.maximum(h, zero)
        return torch.einsum("bsf,fd->bsd", h, w2)

    x = A_u
    h = x + _A_ref(_layernorm(x, axis=-1), A_A_re, A_A_im, A_B_re, A_B_im, A_C_re, A_C_im, A_log_dt, A_Dskip)
    h2 = h + _B_ref(_layernorm(h, axis=-1), B_w1, B_w2)
    return h2
```

```python
import re

TRANS = ("v_exp_f32", "v_log_f32", "v_rcp_f32", "v_rsq_f32", "v_sqrt_f32", "v_sin_f32", "v_cos_f32")


def V(i, n=1):
    return f"v{i}" if n == 1 else f"v[{i}:{i+n-1}]"


def A(i, n=1):
    return f"a{i}" if n == 1 else f"a[{i}:{i+n-1}]"


def S(i, n=1):
    return f"s{i}" if n == 1 else f"s[{i}:{i+n-1}]"


_reg_re = re.compile(r"^(-?)(?:abs\()?\|?([vas])(?:(\d+)|\[(\d+):(\d+)\])\)?\|?$")


def regs_of(op):
    op = op.strip()
    if op in ("vcc", "vcc_lo", "vcc_hi"):
        return {("vcc", 0)}
    if op in ("exec", "exec_lo", "exec_hi"):
        return {("exec", 0)}
    if op == "m0":
        return {("m0", 0)}
    m = _reg_re.match(op)
    if not m:
        return set()
    k = m.group(2)
    if m.group(3) is not None:
        return {(k, int(m.group(3)))}
    return {(k, i) for i in range(int(m.group(4)), int(m.group(5)) + 1)}


class Ins:
    def __init__(self, op, args, mods="", comment=""):
        self.op = op
        self.args = [str(a) for a in args]
        self.mods = mods
        self.comment = comment
        self.classify()

    def text(self):
        s = "    " + self.op
        if self.args:
            s += " " + ", ".join(self.args)
        if self.mods:
            s += " " + self.mods
        if self.comment:
            s += " ; " + self.comment
        return s

    def classify(self):
        op = self.op
        a = self.args
        self.kind = "other"
        self.dst = set()
        self.src = set()
        self.srcC = set()
        self.srcAB = set()
        self.passes = 0
        self.dpp = ("_dpp" in op) or ("row_" in self.mods) or ("wave_" in self.mods) or ("quad_perm" in self.mods)
        R = regs_of
        if op.startswith("v_mfma"):
            self.kind = "mfma"
            self.dst = R(a[0])
            self.srcAB = R(a[1]) | R(a[2])
            self.srcC = R(a[3])
            self.src = self.srcAB | self.srcC
            self.passes = 8 if "32x32" in op else 4
        elif op.startswith("v_"):
            self.kind = "valu"
            if op.startswith("v_cmp"):
                self.dst = R(a[0])
                for x in a[1:]:
                    self.src |= R(x)
                if op.startswith("v_cmpx"):
                    self.dst |= {("exec", 0)}
            elif op.startswith("v_swap") or "swap_b32" in op:
                self.dst = R(a[0]) | R(a[1])
                self.src = set(self.dst)
            elif op in ("v_nop",):
                pass
            elif "_co_" in op:
                self.dst = R(a[0]) | R(a[1])
                for x in a[2:]:
                    self.src |= R(x)
            else:
                self.dst = R(a[0])
                for x in a[1:]:
                    self.src |= R(x)
                if op.startswith("v_fmac") or op.startswith("v_dot2c") or self.dpp or op.startswith("v_writelane") or "sdwa" in op:
                    self.src |= self.dst
                if op.startswith("v_cndmask") and len(a) == 3:
                    self.src |= {("vcc", 0)}
        elif op.startswith("buffer_") or op.startswith("global_") or op.startswith("flat_"):
            self.kind = "vmem"
            if op in ("buffer_inv", "buffer_wbl2"):
                pass
            elif "load" in op:
                if " lds" in (" " + self.mods) or "load_lds" in op:
                    self.lds_dma = True
                    for x in a:
                        self.src |= R(x)
                    self.src |= {("m0", 0)}
                else:
                    self.dst = R(a[0])
                    for x in a[1:]:
                        self.src |= R(x)
            elif "atomic" in op and "sc0" in self.mods:
                if op.startswith("buffer_"):
                    self.dst = R(a[0])
                    for x in a:
                        self.src |= R(x)
                else:
                    self.dst = R(a[0])
                    for x in a[1:]:
                        self.src |= R(x)
            else:
                for x in a:
                    self.src |= R(x)
                if "store" in op and ("x4" in op or "x3" in op):
                    self.wide_data = R(a[0]) if op.startswith("buffer_") else R(a[1])
        elif op.startswith("ds_"):
            self.kind = "ds"
            if op.startswith("ds_read") or "permute" in op or "swizzle" in op or "_rtn" in op:
                self.dst = R(a[0])
                for x in a[1:]:
                    self.src |= R(x)
            else:
                for x in a:
                    self.src |= R(x)
        elif op.startswith("s_"):
            self.kind = "salu"
            if op.startswith("s_cmp") or op.startswith("s_cbranch") or op in ("s_branch", "s_waitcnt", "s_barrier", "s_nop", "s_endpgm", "s_sleep", "s_setprio", "s_bitcmp1_b32", "s_bitcmp0_b32"):
                for x in a:
                    self.src |= R(x)
            else:
                if a:
                    self.dst = R(a[0])
                for x in a[1:]:
                    self.src |= R(x)
                if "saveexec" in op:
                    self.dst |= {("exec", 0)}
            if op.startswith("s_load") or op.startswith("s_mem"):
                self.kind = "smem"

    def states(self):
        if self.op == "s_nop":
            return int(self.args[0], 0) + 1
        return 1


def is_sreg(r):
    return r[0] in ("s", "vcc")


def need(prod, cons):
    n = 0
    pk, ck = prod.kind, cons.kind
    vd = {r for r in prod.dst if r[0] in ("v", "a")}
    if pk == "valu":
        isdot = prod.op.startswith("v_dot")
        if ck == "mfma" and (vd & cons.src):
            n = max(n, 3 if isdot else 2)
        if ck == "valu":
            if prod.op.replace("_e32", "").replace("_e64", "") in TRANS and (vd & cons.src):
                n = max(n, 1)
            if cons.dpp and (vd & cons.src):
                n = max(n, 2)
            if cons.op.startswith("v_permlane") and (vd & cons.src):
                n = max(n, 2)
            if (cons.op.startswith("v_readlane") or cons.op.startswith("v_readfirstlane")) and (vd & cons.src):
                n = max(n, 1)
            sd = {r for r in prod.dst if is_sreg(r)}
            if sd & cons.src:
                n = max(n, 4 if (cons.op.startswith("v_readlane") or cons.op.startswith("v_writelane")) else 2)
            if "sdwa" in prod.op and (vd & (cons.src | cons.dst)):
                n = max(n, 1)
            if isdot and (vd & (cons.src | cons.dst)):
                same = cons.op == prod.op and len(cons.args) == 4 and regs_of(cons.args[3]) == vd and not (vd & (regs_of(cons.args[1]) | regs_of(cons.args[2])))
                if not same:
                    n = max(n, 3)
            if ("exec", 0) in prod.dst:
                n = max(n, 5)
        if isdot and ck in ("vmem", "ds") and (vd & cons.src):
            n = max(n, 3)
        if ck == "vmem":
            sd = {r for r in prod.dst if is_sreg(r)}
            if sd & cons.src:
                n = max(n, 5)
        if ck == "mfma" and ("exec", 0) in prod.dst:
            n = max(n, 4)
        if ck in ("salu", "smem"):
            sd = {r for r in prod.dst if is_sreg(r)}
            if sd & cons.src:
                n = max(n, 2)
    if pk == "mfma":
        big = prod.passes == 8
        if ck == "mfma":
            if vd & cons.srcAB:
                n = max(n, 12 if big else 8)
            if vd & cons.srcC:
                if not (cons.srcC == vd and cons.passes == prod.passes):
                    n = max(n, 10 if big else 6)
            elif vd & cons.dst:
                n = max(n, 10 if big else 6)
        elif ck in ("valu", "vmem", "ds"):
            if vd & (cons.src | cons.dst):
                n = max(n, 12 if big else 8)
            if ck == "valu" and (prod.srcC & cons.dst):
                n = max(n, 7 if big else 3)
    if pk == "vmem" and getattr(prod, "wide_data", None):
        if prod.wide_data & cons.dst:
            n = max(n, 2)
    if pk == "ds" and prod.op in ("ds_write_b128", "ds_write_b96") and ck == "valu":
        pass
    if pk == "salu" and ("m0", 0) in prod.dst:
        if ("m0", 0) in cons.src and ck in ("vmem", "ds"):
            n = max(n, 1)
    return n


class Asm:
    def __init__(self):
        self.items = []

    def I(self, op, *args, mods="", c=""):
        self.items.append(Ins(op, args, mods, c))

    def raw(self, s):
        self.items.append(s)

    def label(self, name):
        self.items.append(name + ":")

    def __getattr__(self, name):
        if name.startswith(("v_", "s_", "ds_", "buffer_", "global_")):
            def f(*args, mods="", c=""):
                self.I(name, *args, mods=mods, c=c)
            return f
        raise AttributeError(name)

    def wait(self, vm=None, lgkm=None):
        parts = []
        if vm is not None:
            assert 0 <= vm <= 63
            parts.append(f"vmcnt({vm})")
        if lgkm is not None:
            assert 0 <= lgkm <= 15
            parts.append(f"lgkmcnt({lgkm})")
        self.items.append(Ins("s_waitcnt", [" ".join(parts)]))

    def finalize(self):
        out = []
        hist = []
        nnop = 0
        for it in self.items:
            if isinstance(it, str):
                out.append(it)
                continue
            req = 0
            dist = 0
            for p in reversed(hist[-24:]):
                n = need(p, it)
                if n > dist:
                    req = max(req, n - dist)
                dist += p.states()
                if dist >= 20:
                    break
            while req > 0:
                k = min(req, 16)
                nop = Ins("s_nop", [str(k - 1)])
                out.append(nop)
                hist.append(nop)
                req -= k
                nnop += 1
            out.append(it)
            hist.append(it)
        self.nnop = nnop
        return "\n".join(x if isinstance(x, str) else x.text() for x in out) + "\n"


def kernel_text(name, asm, nvgpr, nagpr=0, nsgpr=96, extra=""):
    acc = (nvgpr + 3) // 4 * 4
    nfv = acc + nagpr if nagpr else nvgpr
    body = asm.finalize()
    return f""".text
.globl {name}
.p2align 8
.type {name},@function
{name}:
{body}
.section .rodata,"a"
.p2align 6
.amdhsa_kernel {name}
  .amdhsa_next_free_vgpr {nfv}
  .amdhsa_next_free_sgpr {nsgpr}
  .amdhsa_accum_offset {acc}
  .amdhsa_group_segment_fixed_size 0
  .amdhsa_kernarg_size 120
  .amdhsa_user_sgpr_count 2
  .amdhsa_user_sgpr_kernarg_segment_ptr 1
  .amdhsa_system_sgpr_workgroup_id_x 1
{extra}.end_amdhsa_kernel
"""
```

```python
import sys, struct
sys.path.insert(0, "dev")
from asmlib import *

NAME = "sequential_preLN__ssm_conv_s4__dense_activation_relu__prompt"

UX_OFF, UX_SZ = 0x0, 256 * 160 * 128
KW_OFF, KW_SZ = 0x500000, 640 * 8192
W1P_OFF, W1P_SZ = 0xA00000, 16 * 20 * 7 * 1024
W2P_OFF, W2P_SZ = 0xC40000, 8 * 54 * 5 * 1024
CSP_OFF, CSP_SZ = 0xE60000, 20 * 1792 * 4
CS_OFF, CS_SZ = 0xE90000, 1792 * 4
H4_OFF, H4_SZ = 0xEA0000, 160 * 2048 * 8
H1_OFF, H1_SZ = 0x1120000, 432 * 2048 * 8

P_U, P_ARE, P_AIM, P_BRE, P_BIM, P_CRE, P_CIM, P_LDT = 16, 18, 20, 22, 24, 26, 28, 30
P_DSK, P_BX, P_W1, P_W2 = 32, 34, 36, 38
P_OUT, P_DBG, P_WS = 40, 42, 44


def f32(x):
    return "0x%08x" % struct.unpack("<I", struct.pack("<f", x))[0]


def load_args(a):
    a.s_load_dwordx16(S(16, 16), S(0, 2), 0)
    a.s_load_dwordx8(S(32, 8), S(0, 2), 64)
    a.s_load_dwordx4(S(40, 4), S(0, 2), 96)
    a.s_load_dwordx2(S(44, 2), S(0, 2), 112)


def srd(a, d, p, off, size):
    if off == 0:
        a.s_mov_b32(S(d), S(p))
        a.s_mov_b32(S(d + 1), S(p + 1))
    else:
        a.s_add_u32(S(d), S(p), off if isinstance(off, str) else hex(off))
        a.s_addc_u32(S(d + 1), S(p + 1), 0)
    a.s_mov_b32(S(d + 2), hex(size))
    a.s_mov_b32(S(d + 3), "0x20000")


def cmul(a, dst, x, w, tmp):
    a.v_pk_mul_f32(V(tmp, 2), V(x, 2), V(w, 2), mods="op_sel:[0,0] op_sel_hi:[1,0]")
    a.v_pk_fma_f32(V(dst, 2), V(x, 2), V(w, 2), V(tmp, 2), mods="op_sel:[1,1,0] op_sel_hi:[0,1,1] neg_lo:[1,0,0]")


def cmul2(a, dsts, xs, ws, tmps):
    for i in range(2):
        a.v_pk_mul_f32(V(tmps[i], 2), V(xs[i], 2), V(ws[i], 2), mods="op_sel:[0,0] op_sel_hi:[1,0]")
    for i in range(2):
        a.v_pk_fma_f32(V(dsts[i], 2), V(xs[i], 2), V(ws[i], 2), V(tmps[i], 2), mods="op_sel:[1,1,0] op_sel_hi:[0,1,1] neg_lo:[1,0,0]")


S_WAVE = 3


def wave_lane(a, vlane):
    a.v_lshrrev_b32(V(vlane), 6, V(0))
    a.v_readfirstlane_b32(S(S_WAVE), V(vlane))
    a.v_and_b32(V(vlane), 63, V(0))


def ln_stats(a, s1, s2, rs, nm, t0, t1, n):
    inv = f32(1.0 / n)
    for i in range(2):
        a.v_mul_f32(V(s1[i]), inv, V(s1[i]))
    for i in range(2):
        a.v_mul_f32(V(s2[i]), inv, V(s2[i]))
    for i in range(2):
        a.v_fma_f32(V(s2[i]), "-" + V(s1[i]), V(s1[i]), V(s2[i]))
    for i in range(2):
        a.v_max_f32(V(s2[i]), 0, V(s2[i]))
    a.v_cvt_pk_bf16_f32(V(t0), V(s2[0]), V(s2[1]))
    a.v_cvt_pk_bf16_f32(V(t1), V(s1[0]), V(s1[1]))
    a.v_lshlrev_b32(V(s2[0]), 16, V(t0))
    a.v_and_b32(V(s2[1]), "0xffff0000", V(t0))
    a.v_lshlrev_b32(V(s1[0]), 16, V(t1))
    a.v_and_b32(V(s1[1]), "0xffff0000", V(t1))
    for i in range(2):
        a.v_add_f32(V(s2[i]), f32(1e-5), V(s2[i]))
    a.v_cvt_pk_bf16_f32(V(t0), V(s2[0]), V(s2[1]))
    a.v_lshlrev_b32(V(s2[0]), 16, V(t0))
    a.v_and_b32(V(s2[1]), "0xffff0000", V(t0))
    for i in range(2):
        a.v_sqrt_f32(V(s2[i]), V(s2[i]))
    a.v_cvt_pk_bf16_f32(V(t0), V(s2[0]), V(s2[1]))
    a.v_lshlrev_b32(V(s2[0]), 16, V(t0))
    a.v_and_b32(V(s2[1]), "0xffff0000", V(t0))
    for i in range(2):
        a.v_rcp_f32(V(rs[i]), V(s2[i]))
    for i in range(2):
        a.v_mul_f32(V(nm[i]), "-" + V(s1[i]), V(rs[i]), mods="")


K1_LN, K1_KG, K1_R1, K1_R2, K1_END = 0, 64, 224, 304, 412
KG_LDS = 13312


def k1_ln(a):
    VL, VO = 1, 2
    XB, SB = 8, 48
    a.s_lshl_b32(S(4), S(2), 2)
    a.s_add_u32(S(4), S(4), S(S_WAVE))
    a.s_mul_i32(S(5), S(4), 8 * 1280)
    a.v_lshlrev_b32(V(VO), 2, V(VL))
    for r in range(8):
        a.s_add_u32(S(50 + r), S(5), r * 1280)
    a.wait(lgkm=0)
    srd(a, 8, P_U, 0, 2048 * 640 * 2)
    for r in range(8):
        for q in range(5):
            a.buffer_load_dword(V(XB + r * 5 + q), V(VO), S(8, 4), S(50 + r), mods=f"offen offset:{q*256}")
    srd(a, 12, P_WS, UX_OFF, UX_SZ)
    a.s_mov_b32(S(6), "0x3f803f80")
    a.s_mov_b32(S(46), "0x05040100")
    a.s_mov_b32(S(47), "0x07060302")
    a.v_lshrrev_b32(V(3), 1, V(VL))
    a.v_lshlrev_b32(V(3), 7, V(3))
    a.v_and_b32(V(4), 1, V(VL))
    a.v_lshl_add_u32(V(3), V(4), 5, V(3))
    a.s_mul_i32(S(7), S(4), 20480)
    for q in range(5):
        a.s_add_u32(S(58 + q), S(7), q * 4096)
    for r in range(8):
        a.wait(vm=35 - 5 * r)
        for q in range(5):
            x = V(XB + r * 5 + q)
            a.v_dot2_f32_bf16(V(SB + r), x, S(6), V(SB + r) if q else 0)
            a.v_dot2_f32_bf16(V(SB + 8 + r), x, x, V(SB + 8 + r) if q else 0)
    for b in (0, 8):
        for r in range(4):
            a.v_permlane32_swap_b32(V(SB + b + r), V(SB + b + r + 4))
    for b in (0, 8):
        for r in range(4):
            a.v_add_f32(V(SB + b + r), V(SB + b + r), V(SB + b + r + 4))
    for b in (0, 8):
        for r in range(2):
            a.v_permlane16_swap_b32(V(SB + b + r), V(SB + b + r + 2))
    for b in (0, 8):
        for r in range(2):
            a.v_add_f32(V(SB + b + r), V(SB + b + r), V(SB + b + r + 2))
    for sh in (8, 4, 2, 1):
        for rg in (SB, SB + 1, SB + 8, SB + 9):
            a.v_add_f32_dpp(V(rg), V(rg), V(rg), mods=f"row_ror:{sh} row_mask:0xf bank_mask:0xf")
    RS, NM = [SB + 2, SB + 3], [SB + 4, SB + 5]
    ln_stats(a, [SB, SB + 1], [SB + 8, SB + 9], RS, NM, SB + 6, SB + 7, 640)
    for k in range(4):
        for r in range(2):
            a.v_readlane_b32(S(64 + 2 * k + r), V(RS[r]), 16 * k)
            a.v_readlane_b32(S(72 + 2 * k + r), V(NM[r]), 16 * k)
    NMV = 64
    for i in range(8):
        a.v_mov_b32(V(NMV + i), S(72 + i))
    FB, OB = 72, 80
    n = 0
    for q in range(5):
        for half in range(2):
            ob = OB + 8 * (n % 4)
            n += 1
            for k in range(4):
                for r in range(2):
                    x = V(XB + (2 * k + r) * 5 + q)
                    if half == 0:
                        a.v_lshlrev_b32(V(FB + 2 * k + r), 16, x)
                    else:
                        a.v_and_b32(V(FB + 2 * k + r), "0xffff0000", x)
            for k in range(4):
                a.v_pk_fma_f32(V(FB + 2 * k, 2), V(FB + 2 * k, 2), S(64 + 2 * k, 2), V(NMV + 2 * k, 2))
            for k in range(4):
                a.v_perm_b32(V(ob + 4 + k), V(XB + (2 * k + 1) * 5 + q), V(XB + (2 * k) * 5 + q), S(46 + half))
            for k in range(4):
                a.v_cvt_pk_bf16_f32(V(ob + k), V(FB + 2 * k), V(FB + 2 * k + 1))
            a.buffer_store_dwordx4(V(ob + 4, 4), V(3), S(12, 4), S(58 + q), mods=f"offen offset:{half*16+64}")
            a.buffer_store_dwordx4(V(ob, 4), V(3), S(12, 4), S(58 + q), mods=f"offen offset:{half*16}")
    a.s_endpgm()


LOG2E = 1.4426950408889634


def kgen_body(a, s_d, s_lds, emit_out):
    VL = 1
    PR = 8
    a.s_lshl_b32(S(5), S(s_d), 8)
    a.v_lshl_add_u32(V(2), V(VL), 2, S(5))
    a.s_lshl_b32(S(5), S(s_d), 1)
    a.v_mov_b32(V(3), S(5))
    a.wait(lgkm=0)
    a.global_load_ushort(V(PR + 6), V(3), S(P_LDT, 2))
    for i, p in enumerate((P_ARE, P_AIM, P_BRE, P_BIM, P_CRE, P_CIM)):
        a.global_load_dword(V(PR + i), V(2), S(p, 2))
    a.global_load_ushort(V(PR + 7), V(3), S(P_DSK, 2))
    VW, VRA, VRB = 4, 5, 6
    a.v_lshl_add_u32(V(VW), V(VL), 3, S(s_lds))
    a.v_and_b32(V(16), 15, V(VL))
    a.v_lshrrev_b32(V(17), 4, V(VL))
    a.v_and_b32(V(18), 1, V(17))
    a.v_lshlrev_b32(V(18), 8, V(18))
    a.v_lshrrev_b32(V(19), 1, V(17))
    a.v_lshl_add_u32(V(18), V(19), 7, V(18))
    a.v_add_u32(V(18), S(s_lds), V(18))
    a.v_mul_u32_u24(V(19), 528, V(16))
    a.v_add_u32(V(VRA), V(18), V(19))
    a.v_min_u32(V(19), 8, V(16))
    a.v_mul_u32_u24(V(19), 528, V(19))
    a.v_add_u32(V(VRB), V(18), V(19))
    a.s_mov_b32(S(50), f32(LOG2E))
    a.s_mov_b32(S(51), f32(LOG2E - struct.unpack("<f", struct.pack("<f", LOG2E))[0]))
    a.s_mov_b32(S(52), f32(16.0))
    a.s_mov_b32(S(53), f32(16.0))
    a.s_mov_b32(S(54), f32(512.0))
    a.s_mov_b32(S(55), f32(512.0))
    DT = 20
    a.wait(vm=7)
    a.v_lshlrev_b32(V(21), 16, V(PR + 6))
    a.v_mul_f32(V(22), S(50), V(21))
    a.v_fma_f32(V(23), V(21), S(50), "-" + V(22))
    a.v_fma_f32(V(23), V(21), S(51), V(23))
    a.v_exp_f32(V(22), V(22))
    a.v_mul_f32(V(23), f32(0.6931471805599453), V(23))
    a.v_fma_f32(V(22), V(22), V(23), V(22))
    a.v_cvt_pk_bf16_f32(V(22), V(22), V(22))
    a.v_lshlrev_b32(V(DT), 16, V(22))
    a.v_mul_f32(V(22), S(50), V(DT))
    a.v_mul_f32(V(23), "0.15915494", V(DT))
    Z = [24, 26]; B = [28, 30]; C = [32, 34]
    a.wait(vm=1)
    for base, pi in ((Z, 0), (B, 2), (C, 4)):
        for comp in range(2):
            a.v_lshlrev_b32(V(base[0] + comp), 16, V(PR + pi + comp))
            a.v_and_b32(V(base[1] + comp), "0xffff0000", V(PR + pi + comp))
    for s in range(2):
        a.v_pk_mul_f32(V(Z[s], 2), V(Z[s], 2), V(22, 2))
    for s in range(2):
        a.v_pk_mul_f32(V(B[s], 2), V(B[s], 2), V(DT, 2), mods="op_sel_hi:[1,0]")
    T = [36, 38]
    XC = [40, 42]
    cmul2(a, XC, C, B, T)
    for s in range(2):
        a.v_xor_b32(V(XC[s] + 1), "0x80000000", V(XC[s] + 1))
    W1 = [44, 46]; W16 = [48, 50]; W512 = [52, 54]
    ARG = [56, 58, 60, 62, 64, 66]
    EX = [68, 70, 72, 74, 76, 78]
    dsts = [W1[0], W1[1], W16[0], W16[1], W512[0], W512[1]]
    for s in range(2):
        a.v_pk_mul_f32(V(ARG[2 + s], 2), V(Z[s], 2), S(52, 2))
        a.v_pk_mul_f32(V(ARG[4 + s], 2), V(Z[s], 2), S(54, 2))
    srcs = [Z[0], Z[1], ARG[2], ARG[3], ARG[4], ARG[5]]
    for i in range(6):
        a.v_fract_f32(V(ARG[i] + 1), V(srcs[i] + 1))
    for i in range(6):
        a.v_exp_f32(V(EX[i]), V(srcs[i]))
        a.v_cos_f32(V(dsts[i]), V(ARG[i] + 1))
        a.v_sin_f32(V(dsts[i] + 1), V(ARG[i] + 1))
    for i in range(6):
        neg = " neg_hi:[1,0]" if i in (2, 3) else ""
        a.v_pk_mul_f32(V(dsts[i], 2), V(dsts[i], 2), V(EX[i], 2), mods="op_sel_hi:[1,0]" + neg)
    PK = [80, 82, 84, 86]
    npk = [0]

    def put_row(row, r0, r1):
        p = PK[npk[0] % 4]
        npk[0] += 1
        a.v_cvt_pk_bf16_f32(V(p), V(r0), V(r0 + 1))
        a.v_cvt_pk_bf16_f32(V(p + 1), V(r1), V(r1 + 1))
        a.ds_write_b64(V(VW), V(p, 2), mods=f"offset:{row*528}")

    p = PK[3]
    a.v_mov_b32(V(p), "0x3f80")
    a.v_mov_b32(V(p + 1), "0x3f80")
    a.ds_write_b64(V(VW), V(p, 2), mods="offset:0")
    put_row(1, W1[0], W1[1])
    E4 = [56, 58]; E8 = [60, 62]; E12 = [64, 66]; CUR = [68, 70]
    cur = W1
    for j in range(2, 16):
        dst = {4: E4, 8: E8, 12: E12}.get(j, CUR)
        cmul2(a, dst, cur, W1, T)
        put_row(j, dst[0], dst[1])
        cur = dst
    put_row(16, W512[0], W512[1])
    for i, e in enumerate((E4, E8, E12)):
        cmul2(a, CUR, W512, e, T)
        put_row(17 + i, CUR[0], CUR[1])
    E1024 = [72, 74]; E1536 = [76, 78]
    cmul2(a, E1024, W512, W512, T)
    put_row(20, E1024[0], E1024[1])
    cmul2(a, CUR, E1024, E8, T)
    put_row(21, CUR[0], CUR[1])
    cmul2(a, E1536, E1024, W512, T)
    put_row(22, E1536[0], E1536[1])
    cmul2(a, CUR, E1536, E8, T)
    put_row(23, CUR[0], CUR[1])
    cmul2(a, CUR, E1024, E1024, T)
    put_row(24, CUR[0], CUR[1])
    YA, YB, XF = 88, 120, 152
    for m in range(8):
        a.ds_read_b128(V(YA + 4 * m, 4), V(VRA), mods=f"offset:{16*m}")
    for m in range(8):
        a.ds_read_b128(V(YB + 4 * m, 4), V(VRB), mods=f"offset:{16*528+16*m}")
    ACC = 184
    for i in range(16):
        if i:
            cmul2(a, XC, XC, W16, T)
        put_row(i, XC[0], XC[1])
    for m in range(8):
        a.ds_read_b128(V(XF + 4 * m, 4), V(VRA), mods=f"offset:{16*m}")
    XF2 = 200
    pend = [(ACC + 0, YA, m) for m in range(8)] + [(ACC + 8, YB, m) for m in range(8)]
    for i in range(16):
        cmul2(a, XC, XC, W16, T)
        put_row(i, XC[0], XC[1])
        if i == 2:
            a.wait(lgkm=3)
        if i >= 2:
            for _ in range(2 if i >= 14 else 1):
                acc, y, m = pend.pop(0)
                a.v_mfma_f32_16x16x32_bf16(V(acc, 4), V(y + 4 * m, 4), V(XF + 4 * m, 4), V(acc, 4) if m else 0)
    assert not pend
    for m in range(8):
        a.ds_read_b128(V(XF2 + 4 * m, 4), V(VRA), mods=f"offset:{16*m}")
    TA1, TA2, TA3, TB3, TA4, TB4 = 24, 25, 26, 27, 28, 29
    a.s_add_u32(S(5), S(s_lds), 16)
    a.v_lshlrev_b32(V(TA1), 6, V(16))
    a.v_lshl_add_u32(V(TA1), V(17), 4, V(TA1))
    a.v_lshrrev_b32(V(TA2), 1, V(TA1))
    a.v_add_u32(V(TA1), S(5), V(TA1))
    a.v_add_u32(V(TA2), S(5), V(TA2))
    a.v_cmp_eq_u32("vcc", 0, V(17))
    a.v_mov_b32(V(30), 8)
    a.v_mov_b32(V(31), 256)
    a.v_cndmask_b32(V(30), V(30), 16, "vcc")
    a.v_cndmask_b32(V(31), V(31), 8, "vcc")
    a.v_lshlrev_b32(V(TA3), 9, V(17))
    a.v_mad_u32_u24(V(TA3), V(30), V(16), V(TA3))
    a.v_add_u32(V(TA3), S(5), V(TA3))
    a.v_add_u32(V(TB3), V(TA3), V(31))
    a.v_lshl_add_u32(V(TA4), V(30), 4, V(TA3))
    a.v_add_u32(V(TB4), V(TA4), V(31))
    a.wait(vm=0)
    a.v_lshlrev_b32(V(32), 16, V(PR + 7))
    a.v_cmp_eq_u32("vcc", 0, V(VL))
    a.v_cndmask_b32(V(32), 0, V(32), "vcc")
    a.v_add_f32(V(ACC), V(ACC), V(32))
    a.v_mov_b32(V(33), 0)
    a.v_mov_b32(V(34), S(s_lds))
    a.wait(lgkm=0)
    for m in range(8):
        a.v_mfma_f32_16x16x32_bf16(V(ACC + 4, 4), V(YA + 4 * m, 4), V(XF2 + 4 * m, 4), V(ACC + 4, 4) if m else 0)
        a.v_mfma_f32_16x16x32_bf16(V(ACC + 12, 4), V(YB + 4 * m, 4), V(XF2 + 4 * m, 4), V(ACC + 12, 4) if m else 0)
    a.ds_write_b32(V(34), V(33), mods="offset:12")
    a.ds_write_b128(V(TA1), V(ACC, 4))
    a.ds_write_b64(V(TA3), V(ACC + 8, 2), mods=f"offset:{384*4}")
    a.ds_write_b64(V(TB3), V(ACC + 10, 2), mods=f"offset:{384*4}")
    a.v_add_u32(V(TA2), 1024, V(TA2))
    a.ds_write2_b32(V(TA2), V(ACC + 4), V(ACC + 6), mods="offset0:0 offset1:1")
    a.ds_write_b64(V(TA4), V(ACC + 12, 2), mods=f"offset:{384*4}")
    a.ds_write_b64(V(TB4), V(ACC + 14, 2), mods=f"offset:{384*4}")
    a.v_lshl_add_u32(V(35), V(VL), 4, S(5))
    a.v_lshl_add_u32(V(36), V(VL), 3, S(5))
    a.v_add_u32(V(37), 2048, V(36))
    R0, R0P, R1, R1P, R2, R3 = 40, 44, 48, 45, 52, 56
    a.v_subrev_u32(V(38), 4, V(35))
    a.ds_read_b128(V(R0, 4), V(35))
    a.ds_read_b32(V(R0P), V(38))
    a.ds_read2_b64(V(R1, 4), V(36), mods="offset0:128 offset1:129")
    a.ds_read_b32(V(R1P), V(34), mods=f"offset:{16+255*4}")
    a.ds_read2_b64(V(R2, 4), V(36), mods="offset0:192 offset1:193")
    a.ds_read2_b64(V(R3, 4), V(37), mods="offset0:0 offset1:1")
    OUT = 88
    cv = lambda d, x, y: a.v_cvt_pk_bf16_f32(V(d), V(x), V(y))
    a.wait(lgkm=4)
    cv(OUT, R0, R0P); cv(OUT + 1, R0 + 1, R0); cv(OUT + 2, R0 + 2, R0 + 1); cv(OUT + 3, R0 + 3, R0 + 2)
    emit_out(0, 0, OUT)
    a.wait(lgkm=2)
    a.v_cndmask_b32(V(R1P), V(R1), V(R1P), "vcc")
    o = OUT + 4
    cv(o + 1, R1, R1); cv(o + 2, R1 + 1, R1); cv(o + 3, R1 + 2, R1 + 1); cv(o, R1, R1P)
    emit_out(1, 0, o)
    a.wait(lgkm=1)
    A_, B_, C_ = R2, R2 + 1, R2 + 2
    o = OUT + 8
    for i, (x, y) in enumerate([(A_, A_), (A_, A_), (A_, A_), (B_, A_), (B_, B_), (B_, B_), (C_, B_), (C_, C_)]):
        cv(o + i, x, y)
    emit_out(2, 0, o); emit_out(2, 1, o + 4)
    a.wait(lgkm=0)
    A_, B_, C_ = R3, R3 + 1, R3 + 2
    o = OUT + 16
    seq = [(A_, A_)] * 5 + [(B_, A_)] + [(B_, B_)] * 6 + [(C_, B_)] + [(C_, C_)] * 3
    for i, (x, y) in enumerate(seq):
        cv(o + i, x, y)
        if i % 4 == 3:
            emit_out(3, i // 4, o + i - 3)


def k1_kgen(a):
    a.s_sub_u32(S(4), S(2), K1_KG)
    a.s_lshl_b32(S(4), S(4), 2)
    a.s_add_u32(S(4), S(4), S(S_WAVE))
    a.s_mul_i32(S(6), S(S_WAVE), KG_LDS)
    first = [True]

    def emit_out(region, q, vreg):
        if first[0]:
            first[0] = False
            srd(a, 12, P_WS, KW_OFF, KW_SZ)
            a.s_lshl_b32(S(7), S(4), 13)
            a.v_lshlrev_b32(V(60), 4, V(1))
            a.v_lshlrev_b32(V(61), 5, V(1))
            a.v_lshlrev_b32(V(62), 6, V(1))
            a.s_add_u32(S(8), S(7), 4096)
        voff = (60, 60, 61, 62)[region]
        soff = 8 if region == 3 else 7
        imm = (0, 1024, 2048, 0)[region] + 16 * q
        a.buffer_store_dwordx4(V(vreg, 4), V(voff), S(12, 4), S(soff), mods=f"offen offset:{imm}")

    kgen_body(a, 4, 6, emit_out)
    a.s_endpgm()


def k1_repack(a, which):
    VL = 1
    if which == 1:
        start, nct_sh, nat, c16n, magic, pitch_g, colstep, psrc, srcsz, nks = K1_R1, 4, 7, 14, 4682, 3456, 216, P_W1, 640 * 1728 * 2, 20
        doff, dsz = W1P_OFF, W1P_SZ
    else:
        start, nct_sh, nat, c16n, magic, pitch_g, colstep, psrc, srcsz, nks = K1_R2, 3, 5, 10, 6554, 1280, 160, P_W2, 1728 * 640 * 2, 54
        doff, dsz = W2P_OFF, W2P_SZ
    pitch = c16n * 16
    a.s_sub_u32(S(4), S(2), start)
    a.s_lshl_b32(S(4), S(4), 2)
    a.s_add_u32(S(4), S(4), S(S_WAVE))
    a.s_and_b32(S(5), S(4), (1 << nct_sh) - 1)
    a.s_lshr_b32(S(6), S(4), nct_sh)
    a.s_mul_i32(S(7), S(6), 32 * pitch_g)
    a.s_mul_i32(S(46), S(5), colstep)
    a.s_add_u32(S(7), S(7), S(46))
    a.s_mul_i32(S(47), S(S_WAVE), KG_LDS)
    a.s_mov_b32(S(48), pitch_g - pitch)
    for i in range(nat):
        a.v_add_u32(V(2), 64 * i, V(VL))
        a.v_mul_u32_u24(V(3), magic, V(2))
        a.v_lshrrev_b32(V(3), 16, V(3))
        a.v_lshlrev_b32(V(2), 4, V(2))
        a.v_mad_u32_u24(V(8 + i), V(3), S(48), V(2))
    a.wait(lgkm=0)
    srd(a, 8, psrc, 0, srcsz)
    for i in range(nat):
        a.buffer_load_dwordx4(V(16 + 4 * i, 4), V(8 + i), S(8, 4), S(7), mods="offen")
    srd(a, 12, P_WS, doff, dsz)
    a.v_lshl_add_u32(V(4), V(VL), 4, S(47))
    a.v_lshrrev_b32(V(5), 2, V(VL))
    a.v_mul_u32_u24(V(5), pitch, V(5))
    a.v_and_b32(V(6), 3, V(VL))
    a.v_lshl_add_u32(V(5), V(6), 3, V(5))
    a.v_add_u32(V(5), S(47), V(5))
    a.v_lshlrev_b32(V(7), 4, V(VL))
    a.s_mul_i32(S(49), S(5), nks)
    a.s_add_u32(S(49), S(49), S(6))
    a.s_mul_i32(S(49), S(49), nat * 1024)
    a.s_add_u32(S(50), S(49), 4096)
    for i in range(nat):
        a.wait(vm=nat - 1 - i)
        a.ds_write_b128(V(4), V(16 + 4 * i, 4), mods=f"offset:{1024*i}")
    FR = 48
    for t in range(nat):
        a.ds_read_b64_tr_b16(V(FR + 4 * t, 2), V(5), mods=f"offset:{32*t}")
        a.ds_read_b64_tr_b16(V(FR + 4 * t + 2, 2), V(5), mods=f"offset:{32*t+16*pitch}")
    if which == 1:
        srd(a, 52, P_WS, CSP_OFF, CSP_SZ)
        for i in range(4):
            a.v_mov_b32(V(80 + i), "0x3f803f80")
        a.v_and_b32(V(2), 15, V(VL))
        a.v_and_b32(V(3), 48, V(VL))
        a.v_cmp_eq_u32("vcc", 0, V(2))
        a.v_mov_b32(V(6), "0x40000000")
        a.v_cndmask_b32(V(6), V(6), V(3), "vcc")
        a.s_mul_i32(S(56), S(6), 1792 * 4)
        a.s_mul_i32(S(57), S(5), 112 * 4)
        a.s_add_u32(S(56), S(56), S(57))
        a.v_cmp_eq_u32("vcc", 12, V(2))
        a.v_cndmask_b32(V(84), 0, V(80), "vcc")
        a.v_cmp_gt_u32("vcc", 12, V(2))
    for t in range(nat):
        a.wait(lgkm=min(15, 2 * (nat - 1 - t)))
        if which == 1 and t == 6:
            for i in range(4):
                a.v_cndmask_b32(V(FR + 4 * t + i), V(84), V(FR + 4 * t + i), "vcc")
        a.buffer_store_dwordx4(V(FR + 4 * t, 4), V(7), S(12, 4), S(49 if t < 4 else 50), mods=f"offen offset:{1024*(t%4)}")
        if which == 1:
            a.v_mfma_f32_16x16x32_bf16(V(88 + 4 * t, 4), V(FR + 4 * t, 4), V(80, 4), 0)
    if which == 1:
        for t in range(nat):
            a.buffer_store_dwordx4(V(88 + 4 * t, 4), V(6), S(52, 4), S(56), mods=f"offen offset:{64*t}")
    a.s_endpgm()


def gen_k1():
    a = Asm()
    load_args(a)
    wave_lane(a, 1)
    a.s_cmp_lt_u32(S(2), K1_KG)
    a.s_cbranch_scc1("K1_LN")
    a.s_cmp_lt_u32(S(2), K1_R1)
    a.s_cbranch_scc1("K1_KG")
    a.s_cmp_lt_u32(S(2), K1_R2)
    a.s_cbranch_scc1("K1_R1")
    a.s_cmp_lt_u32(S(2), K1_END)
    a.s_cbranch_scc1("K1_R2")
    a.s_endpgm()
    a.label("K1_LN")
    k1_ln(a)
    a.label("K1_KG")
    k1_kgen(a)
    a.label("K1_R1")
    k1_repack(a, 1)
    a.label("K1_R2")
    k1_repack(a, 2)
    return kernel_text("k1_kernel", a, 232, nsgpr=96), (K1_END, 256, 4 * KG_LDS)


CH_LDS = 12864
U_OFFS = 8256


def gen_k2():
    a = Asm()
    load_args(a)
    wave_lane(a, 1)
    VL = 1
    a.s_cmp_ge_u32(S(2), 160)
    a.s_cbranch_scc1("K2_AUX")
    a.s_mul_i32(S(4), S(S_WAVE), CH_LDS)
    a.s_lshl_b32(S(5), S(2), 2)
    a.s_add_u32(S(5), S(5), S(S_WAVE))
    a.s_lshl_b32(S(5), S(5), 13)
    a.s_lshl_b32(S(6), S(2), 7)
    a.v_lshrrev_b32(V(2), 2, V(0))
    a.v_and_b32(V(3), 3, V(0))
    a.s_mov_b32(S(7), 20480)
    a.v_mul_lo_u32(V(4), V(2), S(7))
    a.v_lshl_add_u32(V(4), V(3), 4, V(4))
    a.v_mul_lo_u32(V(5), V(0), S(7))
    a.v_lshlrev_b32(V(6), 4, V(VL))
    for i in range(4):
        a.s_add_u32(S(50 + i), S(6), i * 64 * 20480)
    a.wait(lgkm=0)
    srd(a, 8, P_WS, UX_OFF, UX_SZ)
    srd(a, 12, P_WS, KW_OFF, KW_SZ)
    UB = 16
    for i in range(4):
        a.buffer_load_dwordx4(V(UB + 4 * i, 4), V(4), S(8, 4), S(50 + i), mods="offen")
    a.s_add_u32(S(54), S(5), 4096)
    a.s_add_u32("m0", S(4), 64)
    for i in range(4):
        a.buffer_load_dwordx4(V(6), S(12, 4), S(5), mods=f"offen offset:{1024*i} lds")
    a.s_add_u32("m0", S(4), 64 + 4096)
    for i in range(4):
        a.buffer_load_dwordx4(V(6), S(12, 4), S(54), mods=f"offen offset:{1024*i} lds")
    XR = 200
    for i in range(4):
        a.buffer_load_dwordx4(V(XR + 4 * i, 4), V(5), S(8, 4), S(6), mods=f"offen offset:{64+16*i}")
    a.v_mul_u32_u24(V(7), CH_LDS, V(3))
    a.v_and_b32(V(8), 1, V(2))
    a.v_mul_u32_u24(V(8), 2304, V(8))
    a.v_lshrrev_b32(V(9), 1, V(2))
    a.v_lshl_add_u32(V(8), V(9), 4, V(8))
    a.v_add_u32(V(7), V(7), V(8))
    a.v_mov_b32(V(10), 0)
    a.v_lshl_add_u32(V(11), V(VL), 2, S(4))
    a.ds_write_b32(V(11), V(10), mods=f"offset:{U_OFFS}")
    a.ds_write_b32(V(11), V(10), mods=f"offset:{U_OFFS+2304}")
    a.v_and_b32(V(12), 15, V(VL))
    a.v_lshl_add_u32(V(13), V(12), 2, S(4))
    a.ds_write_b32(V(13), V(10))
    VA = 32
    for c in range(8):
        a.v_add_u32(V(VA + c), 1024 * c, V(11))
    VBQ = 40
    a.v_lshrrev_b32(V(13), 4, V(VL))
    a.v_sub_u32(V(VBQ), V(12), V(13))
    a.v_add_u32(V(VBQ), 3, V(VBQ))
    a.v_lshl_add_u32(V(VBQ), V(VBQ), 4, S(4))
    for i in range(4):
        a.wait(vm=15 - i)
        a.ds_write_b128(V(7), V(UB + 4 * i, 4), mods=f"offset:{U_OFFS + 256 + 512*i}")
    a.wait(vm=4, lgkm=0)
    a.s_barrier()
    OPS = [48, 112]
    ACC = 176
    ACC = 216
    subs = [(g, h) for g in range(4) for h in range(2)]

    def loads(si):
        g, h = subs[si]
        base = OPS[si % 2]
        out = []
        par = 1 - h
        for c in range(8):
            o = 8 + 64 * g + 8 * h
            out.append(("ds_read2_b32", (V(base + 4 * c, 2), V(VA + c)), f"offset0:{o} offset1:{o-2}"))
            out.append(("ds_read2_b32", (V(base + 4 * c + 2, 2), V(VA + c)), f"offset0:{o-4} offset1:{o-6}"))
            out.append(("ds_read_b128", (V(base + 32 + 4 * c, 4), V(VBQ)), f"offset:{U_OFFS + par*2304 + (13 + 16*c - 4*g)*16}"))
        return out

    for op, args, mods in loads(0):
        a.I(op, *args, mods=mods)
    XF = 176
    started = set()
    for si in range(8):
        base = OPS[si % 2]
        nxt = loads(si + 1) if si < 7 else []
        a.wait(lgkm=0)
        order = [(c, gp) for c in range(8) for gp in range(8 - c)]
        for n, (c, gp) in enumerate(order):
            T = c + gp
            a.v_mfma_f32_16x16x32_bf16(V(ACC + 4 * T, 4), V(base + 4 * c, 4), V(base + 32 + 4 * gp, 4), V(ACC + 4 * T, 4) if T in started else 0)
            started.add(T)
            if nxt:
                op, args, mods = nxt.pop(0)
                a.I(op, *args, mods=mods)
    a.v_lshlrev_b32(V(8), 5, V(12))
    a.v_lshl_add_u32(V(8), V(13), 3, V(8))
    a.v_add_u32(V(8), S(4), V(8))
    for T in range(8):
        p = 48 + 2 * T
        a.v_cvt_pk_bf16_f32(V(p), V(ACC + 4 * T), V(ACC + 4 * T + 1))
        a.v_cvt_pk_bf16_f32(V(p + 1), V(ACC + 4 * T + 2), V(ACC + 4 * T + 3))
        a.ds_write_b64(V(8), V(p, 2), mods=f"offset:{512*T}")
    srd(a, 12, P_WS, H4_OFF, H4_SZ)
    a.s_lshl_b32(S(6), S(2), 14)
    a.v_lshlrev_b32(V(9), 4, V(0))
    a.v_lshlrev_b32(V(10), 6, V(0))
    XU = 112
    a.wait(vm=0)
    for c in range(4):
        for dd in range(4):
            a.v_lshlrev_b32(V(XU + (2 * dd) * 4 + c), 16, V(XR + 4 * c + dd))
            a.v_and_b32(V(XU + (2 * dd + 1) * 4 + c), "0xffff0000", V(XR + 4 * c + dd))
    a.wait(lgkm=0)
    a.s_barrier()
    YR = 64
    for c in range(4):
        a.ds_read_b128(V(YR + 4 * c, 4), V(9), mods=f"offset:{c*CH_LDS}")
    YU = 144
    for c in range(4):
        a.wait(lgkm=3 - c)
        for dd in range(4):
            a.v_lshlrev_b32(V(YU + (2 * dd) * 4 + c), 16, V(YR + 4 * c + dd))
            a.v_and_b32(V(YU + (2 * dd + 1) * 4 + c), "0xffff0000", V(YR + 4 * c + dd))
    HO = 80
    for e in range(8):
        for p in range(2):
            a.v_pk_add_f32(V(YU + 4 * e + 2 * p, 2), V(YU + 4 * e + 2 * p, 2), V(XU + 4 * e + 2 * p, 2))
        for p in range(2):
            a.v_cvt_pk_bf16_f32(V(HO + 2 * e + p), V(YU + 4 * e + 2 * p), V(YU + 4 * e + 2 * p + 1))
        if e % 2 == 1:
            a.buffer_store_dwordx4(V(HO + 2 * e - 2, 4), V(10), S(12, 4), S(6), mods=f"offen offset:{16*(e//2)}")
    a.s_endpgm()

    a.label("K2_AUX")
    a.s_cmp_ge_u32(S(2), 256)
    a.s_cbranch_scc1("K2_END")
    a.s_sub_u32(S(4), S(2), 160)
    a.wait(lgkm=0)
    srd(a, 8, P_WS, W1P_OFF, W1P_SZ)
    a.s_lshr_b32(S(5), S(4), 3)
    a.s_lshl_b32(S(5), S(5), 15)
    a.v_lshlrev_b32(V(2), 7, V(0))
    for i in range(6):
        a.s_add_u32(S(6), S(5), i * 3072 * 128)
        a.buffer_load_dword(V(8 + i), V(2), S(8, 4), S(6), mods="offen")
    a.s_cmp_ge_u32(S(4), 7)
    a.s_cbranch_scc1("K2_END")
    srd(a, 8, P_WS, CSP_OFF, CSP_SZ)
    srd(a, 12, P_WS, CS_OFF, CS_SZ)
    a.s_lshl_b32(S(5), S(4), 10)
    a.v_lshl_add_u32(V(2), V(0), 2, S(5))
    for i in range(20):
        a.s_mov_b32(S(6), i * 1792 * 4)
        a.buffer_load_dword(V(16 + i), V(2), S(8, 4), S(6), mods="offen")
    a.wait(vm=0)
    for i in range(1, 20):
        a.v_add_f32(V(16), V(16), V(16 + i))
    a.buffer_store_dword(V(16), V(2), S(12, 4), 0, mods="offen")
    a.label("K2_END")
    a.s_endpgm()
    return kernel_text("k2_kernel", a, 248, nsgpr=96), (256, 256, 4 * CH_LDS)


def gen_k3():
    a = Asm()
    load_args(a)
    wave_lane(a, 1)
    VL = 1
    a.s_cmp_ge_u32(S(2), 256)
    a.s_cbranch_scc1("K3_END")
    a.s_and_b32(S(4), S(2), 7)
    a.s_lshl_b32(S(4), S(4), 1)
    a.s_bfe_u32(S(5), S(2), "0x10003")
    a.s_add_u32(S(4), S(4), S(5))
    a.s_lshr_b32(S(5), S(2), 4)
    a.s_lshl_b32(S(6), S(4), 2)
    a.s_add_u32(S(6), S(6), S(S_WAVE))
    a.s_lshl_b32(S(6), S(6), 8)
    a.s_mul_i32(S(7), S(5), 140 * 1024)
    a.v_and_b32(V(2), 15, V(VL))
    a.v_lshrrev_b32(V(3), 4, V(VL))
    a.v_lshlrev_b32(V(4), 14, V(3))
    a.v_lshl_add_u32(V(4), V(2), 4, V(4))
    a.v_lshlrev_b32(V(5), 4, V(VL))
    a.s_mul_i32(S(46), S(S_WAVE), 7 * 1024)
    a.wait(lgkm=0)
    srd(a, 8, P_WS, H4_OFF, H4_SZ)
    a.s_add_u32(S(12), S(P_WS), S(7))
    a.s_addc_u32(S(13), S(P_WS + 1), 0)
    a.s_add_u32(S(12), S(12), hex(W1P_OFF))
    a.s_addc_u32(S(13), S(13), 0)
    a.s_mov_b32(S(14), 140 * 1024)
    a.s_mov_b32(S(15), "0x20000")
    BB = 16
    ACC = 176
    SQ = 232

    def issue_chunk(c):
        a.s_add_u32(S(47), S(46), c * 28 * 1024)
        a.s_add_u32(S(48), S(47), 4096)
        a.s_mov_b32("m0", S(47))
        for i in range(4):
            a.buffer_load_dwordx4(V(5), S(12, 4), S(47), mods=f"offen offset:{1024*i} lds")
        a.s_mov_b32("m0", S(48))
        for i in range(3):
            a.buffer_load_dwordx4(V(5), S(12, 4), S(48), mods=f"offen offset:{1024*i} lds")
        for ks in range(4 * c, 4 * c + 4):
            for hh in range(2):
                a.s_add_u32(S(49), S(6), (8 * ks + 4 * hh) * 16384)
                a.buffer_load_dwordx4(V(BB + 8 * ks + 4 * hh, 4), V(4), S(8, 4), S(49), mods="offen")

    for c in range(4):
        issue_chunk(c)

    def areads(ks):
        return [("ds_read_b128", (A(28 * (ks % 2) + 4 * t, 4), V(5)), f"offset:{(ks*7+t)*1024}") if (ks * 7 + t) < 64 else
                ("ds_read_b128", (A(28 * (ks % 2) + 4 * t, 4), V(6 if (ks * 7 + t) < 128 else 7)), f"offset:{((ks*7+t)%64)*1024}")
                for t in range(7)]

    a.v_add_u32(V(6), 65536, V(5))
    a.v_add_u32(V(7), 131072, V(5))
    for c in range(5):
        outstanding_after = {0: 45, 1: 45, 2: 30, 3: 15, 4: 0}[c]
        a.wait(vm=outstanding_after)
        a.s_barrier()
        if c == 0:
            issue_chunk(4)
        for op, args, mods in areads(4 * c):
            a.I(op, *args, mods=mods)
        for ks in range(4 * c, 4 * c + 4):
            b = BB + 8 * ks
            a.v_swap_b32(V(b + 2), V(b + 4))
            a.v_swap_b32(V(b + 3), V(b + 5))
            nxt = areads(ks + 1) if ks % 4 != 3 else []
            for p in range(2):
                a.v_mfma_f32_16x16x32_bf16(V(SQ + 4 * p, 4), V(b + 4 * p, 4), V(b + 4 * p, 4), V(SQ + 4 * p, 4) if ks else 0)
            a.wait(lgkm=0)
            for t in range(7):
                for p in range(2):
                    acc = ACC + 8 * t + 4 * p
                    a.v_mfma_f32_16x16x32_bf16(V(acc, 4), A(28 * (ks % 2) + 4 * t, 4), V(b + 4 * p, 4), V(acc, 4) if ks else 0)
                if nxt:
                    op, args, mods = nxt.pop(0)
                    a.I(op, *args, mods=mods)
    srd(a, 8, P_WS, CS_OFF, CS_SZ)
    a.s_mul_i32(S(47), S(5), 112 * 4)
    a.v_lshlrev_b32(V(8), 4, V(3))
    CSR = 16
    for t in range(7):
        a.buffer_load_dwordx4(V(CSR + 4 * t, 4), V(8), S(8, 4), S(47), mods=f"offen offset:{64*t}")
    srd(a, 12, P_WS, W2P_OFF, W2P_SZ)
    a.s_lshr_b32(S(48), S(2), 3)
    a.s_mul_i32(S(48), S(48), 768 * 128)
    a.v_lshlrev_b32(V(9), 7, V(0))
    for i in range(3):
        a.s_add_u32(S(49), S(48), i * 256 * 128)
        a.buffer_load_dword(V(60 + i), V(9), S(12, 4), S(49), mods="offen")
    a.v_and_b32(V(10), 3, V(2))
    a.v_lshrrev_b32(V(11), 2, V(2))
    a.v_lshl_add_u32(V(11), V(11), 4, V(2))
    a.v_lshlrev_b32(V(11), 2, V(11))
    a.v_lshlrev_b32(V(12), 2, V(2))
    a.v_add_u32(V(12), 192, V(12))
    S1 = [64, 65]; S2 = [66, 67]
    for r in (1, 2, 3):
        a.v_cmp_eq_u32("vcc", r, V(10))
        for p in range(2):
            a.v_cndmask_b32(V(SQ + 4 * p), V(SQ + 4 * p), V(SQ + 4 * p + r), "vcc")
    for p in range(2):
        a.ds_bpermute_b32(V(S2[p]), V(11), V(SQ + 4 * p))
        a.ds_bpermute_b32(V(S1[p]), V(12), V(ACC + 8 * 6 + 4 * p))
    a.wait(lgkm=0)
    RS = [68, 70]; NM = [72, 74]
    ln_stats(a, S1, S2, RS, NM, 76, 77, 640)
    srd(a, 12, P_WS, H1_OFF, H1_SZ)
    a.s_mul_i32(S(47), S(5), 27 * 16384)
    a.s_add_u32(S(47), S(47), S(6))
    a.v_cmp_eq_u32("vcc", 3, V(3))
    a.v_mov_b32(V(13), "0x40000000")
    a.v_cndmask_b32(V(13), V(4), V(13), "vcc")
    OB = 80
    for t in range(7):
        a.wait(vm=3 + 6 - t + t)
        ob = OB + 4 * t
        for p in range(2):
            for hh in range(2):
                r = ACC + 8 * t + 4 * p + 2 * hh
                a.v_pk_mul_f32(V(r, 2), V(r, 2), V(RS[p], 2), mods="op_sel_hi:[1,0]")
        for p in range(2):
            for hh in range(2):
                r = ACC + 8 * t + 4 * p + 2 * hh
                a.v_pk_fma_f32(V(r, 2), V(CSR + 4 * t + 2 * hh, 2), V(NM[p], 2), V(r, 2), mods="op_sel_hi:[1,0,1]")
        for p in range(2):
            for hh in range(2):
                r = ACC + 8 * t + 4 * p + 2 * hh
                a.v_cvt_pk_bf16_f32(V(ob + 2 * p + hh), V(r), V(r + 1))
        for i in range(4):
            a.v_pk_max_i16(V(ob + i), V(ob + i), 0)
        a.s_add_u32(S(48), S(47), 4 * t * 16384)
        a.buffer_store_dwordx4(V(ob, 4), V(13 if t == 6 else 4), S(12, 4), S(48), mods="offen")
    a.label("K3_END")
    a.s_endpgm()
    return kernel_text("k3_kernel", a, 240, nagpr=56, nsgpr=96), (256, 256, 140 * 1024)


def gen_k4():
    a = Asm()
    load_args(a)
    wave_lane(a, 1)
    VL = 1
    a.s_cmp_ge_u32(S(2), 256)
    a.s_cbranch_scc1("K4_END")
    a.s_and_b32(S(4), S(2), 7)
    a.s_lshl_b32(S(4), S(4), 2)
    a.s_bfe_u32(S(5), S(2), "0x20003")
    a.s_add_u32(S(4), S(4), S(5))
    a.s_lshr_b32(S(5), S(2), 5)
    a.s_lshl_b32(S(6), S(4), 9)
    a.s_mul_i32(S(7), S(5), 270 * 1024)
    a.v_and_b32(V(2), 15, V(VL))
    a.v_lshrrev_b32(V(3), 4, V(VL))
    a.v_lshlrev_b32(V(4), 14, V(3))
    a.v_lshl_add_u32(V(4), V(2), 4, V(4))
    a.v_lshlrev_b32(V(5), 4, V(VL))
    a.s_mul_i32(S(46), S(S_WAVE), 5 * 1024)
    a.s_lshl_b32(S(47), S(S_WAVE), 17)
    a.s_add_u32(S(47), S(47), S(6))
    a.wait(lgkm=0)
    srd(a, 8, P_WS, H1_OFF, H1_SZ)
    a.s_add_u32(S(12), S(P_WS), S(7))
    a.s_addc_u32(S(13), S(P_WS + 1), 0)
    a.s_add_u32(S(12), S(12), hex(W2P_OFF))
    a.s_addc_u32(S(13), S(13), 0)
    a.s_mov_b32(S(14), 270 * 1024)
    a.s_mov_b32(S(15), "0x20000")
    ACC = 16
    BB = 96
    HR = 208
    ND = 7

    def step_loads(s):
        out = []
        bf = s % ND
        pre = [("s_add_u32", (S(48), S(46), s * 20 * 1024), ""), ("s_add_u32", (S(49), S(48), 4096), "")]
        for t in range(5):
            ins = ("buffer_load_dwordx4", (A(20 * bf + 4 * t, 4), V(5), S(12, 4), S(48 if t < 4 else 49)), f"offen offset:{1024*(t%4)}")
            out.append(pre + [ins] if t == 0 else [ins])
        for hh in range(2):
            for p in range(2):
                ins = ("buffer_load_dwordx4", (V(BB + 16 * bf + 8 * p + 4 * hh, 4), V(4), S(8, 4), S(50)), f"offen offset:{256*p}")
                out.append([("s_add_u32", (S(50), S(47), (32 * s + 4 * hh) * 16384), ""), ins] if p == 0 else [ins])
        return out

    def emit(group):
        for op, args, mods in group:
            a.I(op, *args, mods=mods)

    srd(a, 52, P_WS, H4_OFF, H4_SZ)
    a.s_lshr_b32(S(56), S(S_WAVE), 1)
    a.s_lshl_b32(S(56), S(56), 5)
    a.s_and_b32(S(57), S(S_WAVE), 1)
    a.s_add_u32(S(56), S(56), S(57))
    a.s_lshl_b32(S(57), S(56), 3)
    a.s_add_u32(S(57), S(57), S(6))
    a.s_mul_i32(S(58), S(5), 20 * 16384)
    a.s_add_u32(S(57), S(57), S(58))
    for s in range(2):
        for g in step_loads(s):
            emit(g)
    for t in range(5):
        a.s_add_u32(S(58), S(57), 4 * t * 16384)
        a.buffer_load_dwordx2(V(HR + 2 * t, 2), V(4), S(52, 4), S(58), mods="offen")
    for s in range(2, 6):
        for g in step_loads(s):
            emit(g)
    NS = 14
    for s in range(NS):
        bf = s % ND
        issued = min(NS - 1, s + 5)
        cnt = 9 * (issued - s)
        if s < 2:
            cnt += 5
        a.wait(vm=cnt)
        b = BB + 16 * bf
        for p in range(2):
            a.v_swap_b32(V(b + 8 * p + 2), V(b + 8 * p + 4))
            a.v_swap_b32(V(b + 8 * p + 3), V(b + 8 * p + 5))
        nxt = step_loads(s + 6) if s + 6 < NS else []
        n = 0
        for t in range(5):
            for bt in range(4):
                acc = ACC + (bt * 5 + t) * 4
                a.v_mfma_f32_16x16x32_bf16(V(acc, 4), A(20 * bf + 4 * t, 4), V(b + 4 * bt, 4), V(acc, 4) if s else 0)
                n += 1
                if n % 2 == 0 and nxt:
                    emit(nxt.pop(0))
    a.s_mul_i32(S(48), S(S_WAVE), 20 * 1024)
    a.v_add_u32(V(6), S(48), V(5))
    for bt in range(4):
        for t in range(5):
            a.ds_write_b128(V(6), V(ACC + (bt * 5 + t) * 4, 4), mods=f"offset:{(bt*5+t)*1024}")
    a.v_add_u32(V(7), S(46), V(5))
    a.v_add_u32(V(8), 40 * 1024, V(7))
    srd(a, 12, P_OUT, 0, 2048 * 640 * 2)
    a.v_mul_u32_u24(V(9), 2560, V(2))
    a.v_lshl_add_u32(V(9), V(3), 3, V(9))
    a.s_lshl_b32(S(48), S(4), 6)
    a.s_add_u32(S(48), S(48), S(56))
    a.s_mul_i32(S(48), S(48), 1280)
    a.s_mul_i32(S(49), S(5), 160)
    a.s_add_u32(S(48), S(48), S(49))
    a.wait(lgkm=0)
    a.s_barrier()
    RD = 96
    for t in range(5):
        for w in range(4):
            a.ds_read_b128(V(RD + (t * 4 + w) * 4, 4), V(7 if w < 2 else 8), mods=f"offset:{(w%2)*20*1024 + t*1024}")
        if t >= 2:
            pass
    for t in range(5):
        a.wait(lgkm=min(15, 4 * (4 - t)))
        r = RD + t * 16
        for hh in range(2):
            a.v_pk_add_f32(V(r + 2 * hh, 2), V(r + 2 * hh, 2), V(r + 4 + 2 * hh, 2))
            a.v_pk_add_f32(V(r + 8 + 2 * hh, 2), V(r + 8 + 2 * hh, 2), V(r + 12 + 2 * hh, 2))
        for hh in range(2):
            a.v_pk_add_f32(V(r + 2 * hh, 2), V(r + 2 * hh, 2), V(r + 8 + 2 * hh, 2))
        for hh in range(2):
            a.v_cvt_pk_bf16_f32(V(r + 4 + hh), V(r + 2 * hh), V(r + 2 * hh + 1))
        for hh in range(2):
            a.v_lshlrev_b32(V(r + 2 * hh), 16, V(r + 4 + hh))
            a.v_and_b32(V(r + 2 * hh + 1), "0xffff0000", V(r + 4 + hh))
            a.v_lshlrev_b32(V(r + 8 + 2 * hh), 16, V(HR + 2 * t + hh))
            a.v_and_b32(V(r + 8 + 2 * hh + 1), "0xffff0000", V(HR + 2 * t + hh))
        for hh in range(2):
            a.v_pk_add_f32(V(r + 2 * hh, 2), V(r + 2 * hh, 2), V(r + 8 + 2 * hh, 2))
        for hh in range(2):
            a.v_cvt_pk_bf16_f32(V(r + 4 + hh), V(r + 2 * hh), V(r + 2 * hh + 1))
        a.buffer_store_dwordx2(V(r + 4, 2), V(9), S(12, 4), S(48), mods=f"offen offset:{32*t}")
    a.label("K4_END")
    a.s_endpgm()
    return kernel_text("k4_kernel", a, 220, nagpr=140, nsgpr=96), (256, 256, 80 * 1024)


def main(path):
    ref = open(f"cdna_kernels/{NAME}.s.ref").read().splitlines()
    head = [l for l in ref if l.startswith(";") and "@launch" not in l and "Override launch" not in l and "grid=ceil" not in l]
    ks = [("k1_kernel", gen_k1()), ("k2_kernel", gen_k2()), ("k3_kernel", gen_k3()), ("k4_kernel", gen_k4())]
    out = "\n".join(head) + "\n"
    for n, (t, (g, b, l)) in ks:
        out += f"; @launch kernel={n} grid=({g},1,1) block=({b},1,1) lds={l}\n"
    out += '.amdgcn_target "amdgcn-amd-amdhsa--gfx950"\n'
    for n, (t, _) in ks:
        out += t
    open(path, "w").write(out)


if __name__ == "__main__":
    main(sys.argv[1] if len(sys.argv) > 1 else f"cdna_kernels/{NAME}.s")
```

```python
import re

TRANS = ("v_exp_f32", "v_log_f32", "v_rcp_f32", "v_rsq_f32", "v_sqrt_f32", "v_sin_f32", "v_cos_f32")


def V(i, n=1):
    return f"v{i}" if n == 1 else f"v[{i}:{i+n-1}]"


def A(i, n=1):
    return f"a{i}" if n == 1 else f"a[{i}:{i+n-1}]"


def S(i, n=1):
    return f"s{i}" if n == 1 else f"s[{i}:{i+n-1}]"


_reg_re = re.compile(r"^(-?)(?:abs\()?\|?([vas])(?:(\d+)|\[(\d+):(\d+)\])\)?\|?$")


def regs_of(op):
    op = op.strip()
    if op in ("vcc", "vcc_lo", "vcc_hi"):
        return {("vcc", 0)}
    if op in ("exec", "exec_lo", "exec_hi"):
        return {("exec", 0)}
    if op == "m0":
        return {("m0", 0)}
    m = _reg_re.match(op)
    if not m:
        return set()
    k = m.group(2)
    if m.group(3) is not None:
        return {(k, int(m.group(3)))}
    return {(k, i) for i in range(int(m.group(4)), int(m.group(5)) + 1)}


class Ins:
    def __init__(self, op, args, mods="", comment=""):
        self.op = op
        self.args = [str(a) for a in args]
        self.mods = mods
        self.comment = comment
        self.classify()

    def text(self):
        s = "    " + self.op
        if self.args:
            s += " " + ", ".join(self.args)
        if self.mods:
            s += " " + self.mods
        if self.comment:
            s += " ; " + self.comment
        return s

    def classify(self):
        op = self.op
        a = self.args
        self.kind = "other"
        self.dst = set()
        self.src = set()
        self.srcC = set()
        self.srcAB = set()
        self.passes = 0
        self.dpp = ("_dpp" in op) or ("row_" in self.mods) or ("wave_" in self.mods) or ("quad_perm" in self.mods)
        R = regs_of
        if op.startswith("v_mfma"):
            self.kind = "mfma"
            self.dst = R(a[0])
            self.srcAB = R(a[1]) | R(a[2])
            self.srcC = R(a[3])
            self.src = self.srcAB | self.srcC
            self.passes = 8 if "32x32" in op else 4
        elif op.startswith("v_"):
            self.kind = "valu"
            if op.startswith("v_cmp"):
                self.dst = R(a[0])
                for x in a[1:]:
                    self.src |= R(x)
                if op.startswith("v_cmpx"):
                    self.dst |= {("exec", 0)}
            elif op.startswith("v_swap") or "swap_b32" in op:
                self.dst = R(a[0]) | R(a[1])
                self.src = set(self.dst)
            elif op in ("v_nop",):
                pass
            elif "_co_" in op:
                self.dst = R(a[0]) | R(a[1])
                for x in a[2:]:
                    self.src |= R(x)
            else:
                self.dst = R(a[0])
                for x in a[1:]:
                    self.src |= R(x)
                if op.startswith("v_fmac") or op.startswith("v_dot2c") or self.dpp or op.startswith("v_writelane") or "sdwa" in op:
                    self.src |= self.dst
                if op.startswith("v_cndmask") and len(a) == 3:
                    self.src |= {("vcc", 0)}
        elif op.startswith("buffer_") or op.startswith("global_") or op.startswith("flat_"):
            self.kind = "vmem"
            if op in ("buffer_inv", "buffer_wbl2"):
                pass
            elif "load" in op:
                if " lds" in (" " + self.mods) or "load_lds" in op:
                    self.lds_dma = True
                    for x in a:
                        self.src |= R(x)
                    self.src |= {("m0", 0)}
                else:
                    self.dst = R(a[0])
                    for x in a[1:]:
                        self.src |= R(x)
            elif "atomic" in op and "sc0" in self.mods:
                if op.startswith("buffer_"):
                    self.dst = R(a[0])
                    for x in a:
                        self.src |= R(x)
                else:
                    self.dst = R(a[0])
                    for x in a[1:]:
                        self.src |= R(x)
            else:
                for x in a:
                    self.src |= R(x)
                if "store" in op and ("x4" in op or "x3" in op):
                    self.wide_data = R(a[0]) if op.startswith("buffer_") else R(a[1])
        elif op.startswith("ds_"):
            self.kind = "ds"
            if op.startswith("ds_read") or "permute" in op or "swizzle" in op or "_rtn" in op:
                self.dst = R(a[0])
                for x in a[1:]:
                    self.src |= R(x)
            else:
                for x in a:
                    self.src |= R(x)
        elif op.startswith("s_"):
            self.kind = "salu"
            if op.startswith("s_cmp") or op.startswith("s_cbranch") or op in ("s_branch", "s_waitcnt", "s_barrier", "s_nop", "s_endpgm", "s_sleep", "s_setprio", "s_bitcmp1_b32", "s_bitcmp0_b32"):
                for x in a:
                    self.src |= R(x)
            else:
                if a:
                    self.dst = R(a[0])
                for x in a[1:]:
                    self.src |= R(x)
                if "saveexec" in op:
                    self.dst |= {("exec", 0)}
            if op.startswith("s_load") or op.startswith("s_mem"):
                self.kind = "smem"

    def states(self):
        if self.op == "s_nop":
            return int(self.args[0], 0) + 1
        return 1


def is_sreg(r):
    return r[0] in ("s", "vcc")


def need(prod, cons):
    n = 0
    pk, ck = prod.kind, cons.kind
    vd = {r for r in prod.dst if r[0] in ("v", "a")}
    if pk == "valu":
        isdot = prod.op.startswith("v_dot")
        if ck == "mfma" and (vd & cons.src):
            n = max(n, 3 if isdot else 2)
        if ck == "valu":
            if prod.op.replace("_e32", "").replace("_e64", "") in TRANS and (vd & cons.src):
                n = max(n, 1)
            if cons.dpp and (vd & cons.src):
                n = max(n, 2)
            if cons.op.startswith("v_permlane") and (vd & cons.src):
                n = max(n, 2)
            if (cons.op.startswith("v_readlane") or cons.op.startswith("v_readfirstlane")) and (vd & cons.src):
                n = max(n, 1)
            sd = {r for r in prod.dst if is_sreg(r)}
            if sd & cons.src:
                n = max(n, 4 if (cons.op.startswith("v_readlane") or cons.op.startswith("v_writelane")) else 2)
            if "sdwa" in prod.op and (vd & (cons.src | cons.dst)):
                n = max(n, 1)
            if isdot and (vd & (cons.src | cons.dst)):
                same = cons.op == prod.op and len(cons.args) == 4 and regs_of(cons.args[3]) == vd and not (vd & (regs_of(cons.args[1]) | regs_of(cons.args[2])))
                if not same:
                    n = max(n, 3)
            if ("exec", 0) in prod.dst:
                n = max(n, 5)
        if isdot and ck in ("vmem", "ds") and (vd & cons.src):
            n = max(n, 3)
        if ck == "vmem":
            sd = {r for r in prod.dst if is_sreg(r)}
            if sd & cons.src:
                n = max(n, 5)
        if ck == "mfma" and ("exec", 0) in prod.dst:
            n = max(n, 4)
        if ck in ("salu", "smem"):
            sd = {r for r in prod.dst if is_sreg(r)}
            if sd & cons.src:
                n = max(n, 2)
    if pk == "mfma":
        big = prod.passes == 8
        if ck == "mfma":
            if vd & cons.srcAB:
                n = max(n, 12 if big else 8)
            if vd & cons.srcC:
                if not (cons.srcC == vd and cons.passes == prod.passes):
                    n = max(n, 10 if big else 6)
            elif vd & cons.dst:
                n = max(n, 10 if big else 6)
        elif ck in ("valu", "vmem", "ds"):
            if vd & (cons.src | cons.dst):
                n = max(n, 12 if big else 8)
            if ck == "valu" and (prod.srcC & cons.dst):
                n = max(n, 7 if big else 3)
    if pk == "vmem" and getattr(prod, "wide_data", None):
        if prod.wide_data & cons.dst:
            n = max(n, 2)
    if pk == "ds" and prod.op in ("ds_write_b128", "ds_write_b96") and ck == "valu":
        pass
    if pk == "salu" and ("m0", 0) in prod.dst:
        if ("m0", 0) in cons.src and ck in ("vmem", "ds"):
            n = max(n, 1)
    return n


class Asm:
    def __init__(self):
        self.items = []
        self.nvm = 0
        self.nds = 0

    def I(self, op, *args, mods="", c=""):
        ins = Ins(op, args, mods, c)
        self.items.append(ins)
        if ins.kind == "vmem":
            self.nvm += 1
            return self.nvm
        if ins.kind == "ds":
            self.nds += 1
            return self.nds

    def wvm(self, ticket):
        n = self.nvm - ticket
        if n <= 63:
            self.wait(vm=n)

    def wds(self, ticket):
        n = self.nds - ticket
        self.wait(lgkm=min(n, 15))

    def raw(self, s):
        self.items.append(s)

    def label(self, name):
        self.items.append(name + ":")

    def __getattr__(self, name):
        if name.startswith(("v_", "s_", "ds_", "buffer_", "global_")):
            def f(*args, mods="", c=""):
                return self.I(name, *args, mods=mods, c=c)
            return f
        raise AttributeError(name)

    def wait(self, vm=None, lgkm=None):
        parts = []
        if vm is not None:
            assert 0 <= vm <= 63
            parts.append(f"vmcnt({vm})")
        if lgkm is not None:
            assert 0 <= lgkm <= 15
            parts.append(f"lgkmcnt({lgkm})")
        self.items.append(Ins("s_waitcnt", [" ".join(parts)]))

    def finalize(self):
        out = []
        hist = []
        nnop = 0
        for it in self.items:
            if isinstance(it, str):
                out.append(it)
                continue
            req = 0
            dist = 0
            for p in reversed(hist[-24:]):
                n = need(p, it)
                if n > dist:
                    req = max(req, n - dist)
                dist += p.states()
                if dist >= 20:
                    break
            while req > 0:
                k = min(req, 16)
                nop = Ins("s_nop", [str(k - 1)])
                out.append(nop)
                hist.append(nop)
                req -= k
                nnop += 1
            out.append(it)
            hist.append(it)
        self.nnop = nnop
        return "\n".join(x if isinstance(x, str) else x.text() for x in out) + "\n"


def kernel_text(name, asm, nvgpr, nagpr=0, nsgpr=96, extra=""):
    acc = (nvgpr + 3) // 4 * 4
    nfv = acc + nagpr if nagpr else nvgpr
    body = asm.finalize()
    return f""".text
.globl {name}
.p2align 8
.type {name},@function
{name}:
{body}
.section .rodata,"a"
.p2align 6
.amdhsa_kernel {name}
  .amdhsa_next_free_vgpr {nfv}
  .amdhsa_next_free_sgpr {nsgpr}
  .amdhsa_accum_offset {acc}
  .amdhsa_group_segment_fixed_size 0
  .amdhsa_kernarg_size 120
  .amdhsa_user_sgpr_count 2
  .amdhsa_user_sgpr_kernarg_segment_ptr 1
  .amdhsa_system_sgpr_workgroup_id_x 1
{extra}.end_amdhsa_kernel
"""
```

```python
import sys, struct, os
sys.path.insert(0, "dev")
from asmlib import *

NAME = "sequential_preLN__ssm_conv_s4__dense_activation_relu__prompt"
STAMPS = os.environ.get("STAMPS", "0") == "1"

SY_OFF, SY_SZ = 0x0, 0x18000
FRP, FH, FH1 = 0x4000, 0x8000, 0x10000
W2P_OFF, W2P_SZ = 0x100000, 8 * 54 * 5 * 1024
H4_OFF, H4_SZ = 0x700000, 64 * 40960
H1_OFF, H1_SZ = 0xA00000, 64 * 110592
ST_OFF = 0x2000000

P_U, P_ARE, P_AIM, P_BRE, P_BIM, P_CRE, P_CIM, P_LDT = 16, 18, 20, 22, 24, 26, 28, 30
P_DSK, P_BX, P_W1, P_W2 = 32, 34, 36, 38
P_OUT, P_DBG, P_WS = 40, 42, 44
S_WAVE = 3
R_SY, R_DBG = 64, 68
S_NONCE, S_SPIN, S_M0W, S_D2 = 72, 73, 74, 75
R_W1 = 52
S_XCC = 0
S_MIS = 18
MODE_L = 147456
VW1 = 248
SPIN_MAX = 400000

KS_SZ = 23296
WT_L, WT_P = 93184, 8256
UB_L = 126208
CSP_L, CS_L = 144640, 148480
XH_L, XH_P = 147200, 4160
LDS_SZ = 163840
Q_EARLY = 22
NCODE = 4
POISON = os.environ.get("POISON", "1") == "1"
GATHER = eval(os.environ.get("GATHER", "{100: [0,1,2,3,4], 20: [5], 26: [6], 31: [7]}"))
HLD = os.environ.get("HLD", "sc1")
LOG2E = 1.4426950408889634


def f32(x):
    return "0x%08x" % struct.unpack("<I", struct.pack("<f", x))[0]


def stamp(a, i):
    if STAMPS:
        if os.environ.get("STAMPCLK", "0") == "1":
            a.s_memtime(S(76 + 2 * i, 2))
        else:
            a.s_memrealtime(S(76 + 2 * i, 2))


def srd(a, d, p, off, size):
    if off == 0:
        a.s_mov_b32(S(d), S(p))
        a.s_mov_b32(S(d + 1), S(p + 1))
    else:
        a.s_add_u32(S(d), S(p), off if isinstance(off, str) else hex(off))
        a.s_addc_u32(S(d + 1), S(p + 1), 0)
    a.s_mov_b32(S(d + 2), hex(size))
    a.s_mov_b32(S(d + 3), "0x20000")


def srd2(a, d, p, off, soff, size):
    a.s_add_u32(S(d), S(p), soff)
    a.s_addc_u32(S(d + 1), S(p + 1), 0)
    a.s_add_u32(S(d), S(d), hex(off))
    a.s_addc_u32(S(d + 1), S(d + 1), 0)
    a.s_mov_b32(S(d + 2), hex(size))
    a.s_mov_b32(S(d + 3), "0x20000")


def cmuln(a, dsts, xs, ws, tmps):
    n = len(dsts)
    for i in range(n):
        a.v_pk_mul_f32(V(tmps[i], 2), V(xs[i], 2), V(ws[i], 2), mods="op_sel:[0,0] op_sel_hi:[1,0]")
    for i in range(n):
        a.v_pk_fma_f32(V(dsts[i], 2), V(xs[i], 2), V(ws[i], 2), V(tmps[i], 2), mods="op_sel:[1,1,0] op_sel_hi:[0,1,1] neg_lo:[1,0,0]")


def rnd2(a, x0, x1, t):
    a.v_cvt_pk_bf16_f32(V(t), V(x0), V(x1))
    a.v_lshlrev_b32(V(x0), 16, V(t))
    a.v_and_b32(V(x1), "0xffff0000", V(t))


def ln_stats2(a, s1, s2, rs, nm, t0, t1, n):
    inv = f32(1.0 / n)
    for i in range(2):
        a.v_mul_f32(V(s1[i]), inv, V(s1[i]))
    for i in range(2):
        a.v_mul_f32(V(s2[i]), inv, V(s2[i]))
    for i in range(2):
        a.v_fma_f32(V(s2[i]), "-" + V(s1[i]), V(s1[i]), V(s2[i]))
    for i in range(2):
        a.v_max_f32(V(s2[i]), 0, V(s2[i]))
    rnd2(a, s2[0], s2[1], t0)
    rnd2(a, s1[0], s1[1], t1)
    for i in range(2):
        a.v_add_f32(V(s2[i]), f32(1e-5), V(s2[i]))
    rnd2(a, s2[0], s2[1], t0)
    for i in range(2):
        a.v_sqrt_f32(V(s2[i]), V(s2[i]))
    rnd2(a, s2[0], s2[1], t0)
    for i in range(2):
        a.v_rcp_f32(V(rs[i]), V(s2[i]))
    for i in range(2):
        a.v_mul_f32(V(nm[i]), "-" + V(s1[i]), V(rs[i]))


_lab = [0]


def newlab(p):
    _lab[0] += 1
    return f"L{p}_{_lab[0]}"


def spin_branch(a, loop, done_fallthrough=True):
    out = newlab("to")
    a.s_sub_u32(S(S_SPIN), S(S_SPIN), 1)
    a.s_cmp_lt_i32(S(S_SPIN), 0)
    a.s_cbranch_scc1(out)
    a.s_cbranch_vccnz(loop)
    a.label(out)


def flag_loads(a, voff, base, count, dst):
    n = (count + 63) // 64
    t = None
    for q in range(n):
        t = a.buffer_load_dwordx2(V(dst + 2 * q, 2), V(voff + q), S(R_SY, 4), base, mods="offen sc1")
    return t


def xcc_mismatch(a, voff, count, dst, sacc):
    n = (count + 63) // 64
    a.s_and_b32(S(6), S(2), 7)
    for q in range(n):
        a.v_bfe_u32(V(dst + 2 * q), V(voff + q), 7, 3)
        a.v_cmp_eq_u32(S(48, 2), S(6), V(dst + 2 * q))
        a.v_cmp_ne_u32("vcc", S(S_XCC), V(dst + 2 * q + 1))
        a.s_and_b64(S(48, 2), S(48, 2), "vcc")
        a.s_or_b64(S(sacc, 2), S(sacc, 2), S(48, 2))


def flag_addr(a, voff, count, vlane):
    n = (count + 63) // 64
    for q in range(n):
        if q:
            a.v_add_u32(V(voff + q), 64 * q, V(vlane))
            a.v_min_u32(V(voff + q), count - 1, V(voff + q))
        else:
            a.v_min_u32(V(voff), count - 1, V(vlane))
        a.v_lshlrev_b32(V(voff + q), 7, V(voff + q))


def flag_check(a, dst, count):
    n = (count + 63) // 64
    for q in range(n):
        a.v_xor_b32(V(dst + 2 * q), S(S_NONCE), V(dst + 2 * q))
    for q in range(1, n):
        a.v_or_b32(V(dst), V(dst), V(dst + 2 * q))
    a.v_cmp_ne_u32("vcc", 0, V(dst))


def poll_flags(a, voff, base, count, dst, sleep=0):
    lp = newlab("poll")
    a.label(lp)
    flag_loads(a, voff, base, count, dst)
    a.wait(vm=0)
    flag_check(a, dst, count)
    if sleep:
        a.s_sleep(sleep)
    spin_branch(a, lp)


def set_flag(a, soff, vt, sc="sc1"):
    skip = newlab("nf")
    a.s_cmp_lg_u32(S(S_WAVE), 0)
    a.s_cbranch_scc1(skip)
    a.v_mov_b32(V(vt + 2), 0)
    a.v_mov_b32(V(vt), S(S_NONCE))
    a.v_mov_b32(V(vt + 1), S(S_XCC))
    a.s_mov_b64("exec", 1)
    a.buffer_store_dwordx2(V(vt, 2), V(vt + 2), S(R_SY, 4), soff, mods=f"offen {sc}")
    a.s_mov_b64("exec", -1)
    a.label(skip)


def kgen_loads(a, s_d):
    VL = 1
    PR = 8
    a.s_lshl_b32(S(5), S(s_d), 8)
    a.v_lshl_add_u32(V(2), V(VL), 2, S(5))
    a.s_lshl_b32(S(5), S(s_d), 1)
    a.v_mov_b32(V(3), S(5))
    t_ldt = a.global_load_ushort(V(PR + 6), V(3), S(P_LDT, 2))
    for i, p in enumerate((P_ARE, P_AIM, P_BRE, P_BIM, P_CRE, P_CIM)):
        t_par = a.global_load_dword(V(PR + i), V(2), S(p, 2))
    t_dsk = a.global_load_ushort(V(PR + 7), V(3), S(P_DSK, 2))
    return t_ldt, t_dsk


def kgen(a, tks, s_lds, s_wt, hook):
    VL = 1
    PR = 8
    t_ldt, t_dsk = tks
    hook(-1)
    VW, VRA, VRB = 4, 5, 6
    a.v_lshl_add_u32(V(VW), V(VL), 3, S(s_lds))
    a.v_and_b32(V(16), 15, V(VL))
    a.v_lshrrev_b32(V(17), 4, V(VL))
    a.v_and_b32(V(18), 1, V(17))
    a.v_lshlrev_b32(V(18), 8, V(18))
    a.v_lshrrev_b32(V(19), 1, V(17))
    a.v_lshl_add_u32(V(18), V(19), 7, V(18))
    a.v_add_u32(V(18), S(s_lds), V(18))
    a.v_mul_u32_u24(V(19), 528, V(16))
    a.v_add_u32(V(VRA), V(18), V(19))
    a.v_min_u32(V(19), 8, V(16))
    a.v_mul_u32_u24(V(19), 528, V(19))
    a.v_add_u32(V(VRB), V(18), V(19))
    a.s_mov_b32(S(50), f32(LOG2E))
    a.s_mov_b32(S(51), f32(LOG2E - struct.unpack("<f", struct.pack("<f", LOG2E))[0]))
    a.s_mov_b32(S(52), f32(16.0))
    a.s_mov_b32(S(53), f32(16.0))
    a.s_mov_b32(S(54), f32(512.0))
    a.s_mov_b32(S(55), f32(512.0))
    TA1, TA2, TA3, TB3, TA4, TB4 = 224, 225, 226, 227, 228, 229
    TABO = 0
    a.s_add_u32(S(56), S(s_lds), TABO + 16)
    a.v_lshlrev_b32(V(TA1), 6, V(16))
    a.v_lshl_add_u32(V(TA1), V(17), 4, V(TA1))
    a.v_lshrrev_b32(V(TA2), 1, V(TA1))
    a.v_add_u32(V(TA1), S(56), V(TA1))
    a.v_add_u32(V(TA2), S(56), V(TA2))
    a.v_add_u32(V(TA2), 1024, V(TA2))
    a.v_cmp_eq_u32("vcc", 0, V(17))
    a.v_mov_b32(V(30), 8)
    a.v_mov_b32(V(31), 256)
    a.v_cndmask_b32(V(30), V(30), 16, "vcc")
    a.v_cndmask_b32(V(31), V(31), 8, "vcc")
    a.v_lshlrev_b32(V(TA3), 9, V(17))
    a.v_mad_u32_u24(V(TA3), V(30), V(16), V(TA3))
    a.v_add_u32(V(TA3), S(56), V(TA3))
    a.v_add_u32(V(TB3), V(TA3), V(31))
    a.v_lshl_add_u32(V(TA4), V(30), 4, V(TA3))
    a.v_add_u32(V(TB4), V(TA4), V(31))
    DT = 20
    a.wvm(t_ldt)
    a.v_lshlrev_b32(V(21), 16, V(PR + 6))
    a.v_mul_f32(V(22), S(50), V(21))
    a.v_fma_f32(V(23), V(21), S(50), "-" + V(22))
    a.v_fma_f32(V(23), V(21), S(51), V(23))
    a.v_exp_f32(V(22), V(22))
    a.v_mul_f32(V(23), f32(0.6931471805599453), V(23))
    a.v_fma_f32(V(22), V(22), V(23), V(22))
    a.v_cvt_pk_bf16_f32(V(22), V(22), V(22))
    a.v_lshlrev_b32(V(DT), 16, V(22))
    a.v_mul_f32(V(22), S(50), V(DT))
    a.v_mul_f32(V(23), "0.15915494", V(DT))
    Z = [24, 26]; B = [28, 30]; C = [32, 34]
    a.wvm(t_dsk)
    stamp(a, 1)
    hook(100)
    for base, pi in ((Z, 0), (B, 2), (C, 4)):
        for comp in range(2):
            a.v_lshlrev_b32(V(base[0] + comp), 16, V(PR + pi + comp))
            a.v_and_b32(V(base[1] + comp), "0xffff0000", V(PR + pi + comp))
    for s in range(2):
        a.v_pk_mul_f32(V(Z[s], 2), V(Z[s], 2), V(22, 2))
    for s in range(2):
        a.v_pk_mul_f32(V(B[s], 2), V(B[s], 2), V(DT, 2), mods="op_sel_hi:[1,0]")
    T = [36, 38]
    T2 = [216, 218]
    XC = [40, 42]
    W1 = [44, 46]; W16 = [48, 50]; W512 = [52, 54]
    ARG = [56, 58, 60, 62, 64, 66]
    EX = [68, 70, 72, 74, 76, 78]
    dsts = [W1[0], W1[1], W16[0], W16[1], W512[0], W512[1]]
    for s in range(2):
        a.v_pk_mul_f32(V(ARG[2 + s], 2), V(Z[s], 2), S(52, 2))
        a.v_pk_mul_f32(V(ARG[4 + s], 2), V(Z[s], 2), S(54, 2))
    cmuln(a, XC, C, B, T)
    srcs = [Z[0], Z[1], ARG[2], ARG[3], ARG[4], ARG[5]]
    for i in range(6):
        a.v_fract_f32(V(ARG[i] + 1), V(srcs[i] + 1))
    for s in range(2):
        a.v_xor_b32(V(XC[s] + 1), "0x80000000", V(XC[s] + 1))
    for i in range(6):
        a.v_exp_f32(V(EX[i]), V(srcs[i]))
        a.v_cos_f32(V(dsts[i]), V(ARG[i] + 1))
        a.v_sin_f32(V(dsts[i] + 1), V(ARG[i] + 1))
    for i in range(6):
        neg = " neg_hi:[1,0]" if i in (2, 3) else ""
        a.v_pk_mul_f32(V(dsts[i], 2), V(dsts[i], 2), V(EX[i], 2), mods="op_sel_hi:[1,0]" + neg)
    PK = [80, 82, 84, 86]
    npk = [0]

    def put_rows(rows):
        ps = []
        for row, r in rows:
            p = PK[npk[0] % 4]
            npk[0] += 1
            ps.append(p)
            a.v_cvt_pk_bf16_f32(V(p), V(r[0]), V(r[0] + 1))
            a.v_cvt_pk_bf16_f32(V(p + 1), V(r[1]), V(r[1] + 1))
        for (row, r), p in zip(rows, ps):
            a.ds_write_b64(V(VW), V(p, 2), mods=f"offset:{row*528}")

    XR0 = 25
    a.v_mov_b32(V(220), "0x3f80")
    a.v_mov_b32(V(221), "0x3f80")
    a.ds_write_b64(V(VW), V(220, 2), mods="offset:0")
    E4 = [56, 58]; E8 = [60, 62]; E12 = [64, 66]; CUR = [68, 70]
    E1024 = [72, 74]; E1536 = [76, 78]
    yprog = [(1, W1, None, None)]
    cur = W1
    for j in range(2, 16):
        dst = {4: E4, 8: E8, 12: E12}.get(j, CUR)
        yprog.append((j, dst, cur, W1))
        cur = dst
    yprog += [(16, W512, None, None), (17, CUR, W512, E4), (18, CUR, W512, E8), (19, CUR, W512, E12),
              (20, E1024, W512, W512), (21, CUR, E1024, E8), (22, E1536, E1024, W512), (23, CUR, E1536, E8), (24, CUR, E1024, E1024)]
    YA, YB, XF, XF2 = 88, 120, 152, 184
    ACC = 8
    reads = []
    for i in range(32):
        ds_, xs_, ws_, ts_, rows = [], [], [], [], []
        if i:
            ds_ += XC; xs_ += XC; ws_ += W16; ts_ += T
        rows.append((XR0 + i if i < 16 else i - 16, XC))
        if yprog:
            row, dst, x, w = yprog.pop(0)
            if x is not None:
                ds_ += dst; xs_ += x; ws_ += w; ts_ += T2
            rows.append((row, dst))
        cmuln(a, ds_, xs_, ws_, ts_)
        put_rows(rows)
        hook(i)
        if i == 14:
            for m in range(4):
                a.ds_read_b128(V(YA + 4 * m, 4), V(VRA), mods=f"offset:{16*m}")
        if i == 15:
            for m in range(4, 8):
                a.ds_read_b128(V(YA + 4 * m, 4), V(VRA), mods=f"offset:{16*m}")
        if i == 16:
            reads += [(XF + 4 * m, VRA, XR0 * 528 + 16 * m) for m in range(8)]
        if i == 23:
            reads += [(YB + 4 * m, VRB, 16 * 528 + 16 * m) for m in range(8)]
        for _ in range(2):
            if reads:
                d, ad, off = reads.pop(0)
                a.ds_read_b128(V(d, 4), V(ad), mods=f"offset:{off}")
    assert not reads and not yprog
    t_pre = a.nds
    tk = []
    for m in range(8):
        tk.append(a.ds_read_b128(V(XF2 + 4 * m, 4), V(VRA), mods=f"offset:{16*m}"))
    stamp(a, 2)
    a.v_lshlrev_b32(V(32), 16, V(PR + 7))
    a.v_cmp_eq_u32("vcc", 0, V(VL))
    a.v_cndmask_b32(V(32), 0, V(32), "vcc")
    a.v_mov_b32(V(33), 0)
    a.v_mov_b32(V(34), S(56))
    a.wds(t_pre)
    for m in range(8):
        a.v_mfma_f32_16x16x32_bf16(V(ACC, 4), V(YA + 4 * m, 4), V(XF + 4 * m, 4), V(ACC, 4) if m else 0)
        a.v_mfma_f32_16x16x32_bf16(V(ACC + 8, 4), V(YB + 4 * m, 4), V(XF + 4 * m, 4), V(ACC + 8, 4) if m else 0)
    a.wait(lgkm=0)
    for m in range(8):
        a.v_mfma_f32_16x16x32_bf16(V(ACC + 4, 4), V(YA + 4 * m, 4), V(XF2 + 4 * m, 4), V(ACC + 4, 4) if m else 0)
        a.v_mfma_f32_16x16x32_bf16(V(ACC + 12, 4), V(YB + 4 * m, 4), V(XF2 + 4 * m, 4), V(ACC + 12, 4) if m else 0)
        if m == 4:
            a.v_add_f32(V(ACC), V(ACC), V(32))
            a.v_subrev_u32(V(38), 4, V(34))
            a.ds_write_b32(V(38), V(33))
            a.ds_write_b128(V(TA1), V(ACC, 4))
            a.ds_write_b64(V(TA3), V(ACC + 8, 2), mods=f"offset:{384*4}")
            a.ds_write_b64(V(TB3), V(ACC + 10, 2), mods=f"offset:{384*4}")
    a.v_lshl_add_u32(V(35), V(VL), 4, S(56))
    a.v_lshl_add_u32(V(36), V(VL), 3, S(56))
    a.v_add_u32(V(37), 2048, V(36))
    a.v_subrev_u32(V(38), 4, V(35))
    a.v_lshl_add_u32(V(60), V(VL), 4, S(s_wt))
    a.v_lshl_add_u32(V(61), V(VL), 5, S(s_wt))
    a.v_lshl_add_u32(V(62), V(VL), 6, S(s_wt))
    R0, R0P, R1, R1P, R2, R3 = 40, 44, 48, 45, 52, 56
    a.ds_read_b128(V(R0, 4), V(35))
    t0 = a.ds_read_b32(V(R0P), V(38))
    a.ds_write2_b32(V(TA2), V(ACC + 4), V(ACC + 6), mods="offset0:0 offset1:1")
    a.ds_write_b64(V(TA4), V(ACC + 12, 2), mods=f"offset:{384*4}")
    a.ds_write_b64(V(TB4), V(ACC + 14, 2), mods=f"offset:{384*4}")
    a.ds_read2_b64(V(R1, 4), V(36), mods="offset0:128 offset1:129")
    t1 = a.ds_read_b32(V(R1P), V(34), mods=f"offset:{255*4}")
    t2 = a.ds_read2_b64(V(R2, 4), V(36), mods="offset0:192 offset1:193")
    t3 = a.ds_read2_b64(V(R3, 4), V(37), mods="offset0:0 offset1:1")

    def emit_out(region, q, vreg):
        voff = (60, 60, 61, 62)[region]
        imm = 64 + (0, 1024, 2048, 4096)[region] + 16 * q
        a.ds_write_b128(V(voff), V(vreg, 4), mods=f"offset:{imm}")

    OUT = 88
    cv = lambda d, x, y: a.v_cvt_pk_bf16_f32(V(d), V(x), V(y))
    a.wds(t0)
    cv(OUT, R0, R0P); cv(OUT + 1, R0 + 1, R0); cv(OUT + 2, R0 + 2, R0 + 1); cv(OUT + 3, R0 + 3, R0 + 2)
    emit_out(0, 0, OUT)
    a.wds(t1)
    a.v_cndmask_b32(V(R1P), V(R1), V(R1P), "vcc")
    o = OUT + 4
    cv(o + 1, R1, R1); cv(o + 2, R1 + 1, R1); cv(o + 3, R1 + 2, R1 + 1); cv(o, R1, R1P)
    emit_out(1, 0, o)
    a.wds(t2)
    A_, B_, C_ = R2, R2 + 1, R2 + 2
    o = OUT + 8
    for i, (x, y) in enumerate([(A_, A_), (A_, A_), (A_, A_), (B_, A_), (B_, B_), (B_, B_), (C_, B_), (C_, C_)]):
        cv(o + i, x, y)
    emit_out(2, 0, o); emit_out(2, 1, o + 4)
    a.wds(t3)
    A_, B_, C_ = R3, R3 + 1, R3 + 2
    o = OUT + 16
    seq = [(A_, A_)] * 5 + [(B_, A_)] + [(B_, B_)] * 6 + [(C_, B_)] + [(C_, C_)] * 3
    for i, (x, y) in enumerate(seq):
        cv(o + i, x, y)
        if i % 4 == 3:
            emit_out(3, i // 4, o + i - 3)


def w1_addr(a, t0, t1):
    a.s_mov_b32(S(48), 3456 - 224)
    for q in range(7):
        a.v_add_u32(V(t0), 256 * q, V(0))
        a.v_mul_u32_u24(V(t1), 4682, V(t0))
        a.v_lshrrev_b32(V(t1), 16, V(t1))
        a.v_lshlrev_b32(V(t0), 4, V(t0))
        a.v_mad_u32_u24(V(VW1 + q), V(t1), S(48), V(t0))


def w1_srd(a):
    a.s_lshr_b32(S(6), S(2), 4)
    a.s_mul_i32(S(6), S(6), 216)
    a.s_and_b32(S(S_D2), S(6), 15)
    a.s_sub_u32(S(6), S(6), S(S_D2))
    a.s_add_u32(S(R_W1), S(P_W1), S(6))
    a.s_addc_u32(S(R_W1 + 1), S(P_W1 + 1), 0)
    a.s_sub_u32(S(R_W1 + 2), 640 * 3456, S(6))
    a.s_mov_b32(S(R_W1 + 3), "0x20000")
    a.s_lshl_b32(S(S_M0W), S(S_WAVE), 10)


def w1_dma(a, q):
    a.s_add_u32("m0", S(S_M0W), 4096 * q)
    a.s_mov_b32(S(63), (q // 7) * 128 * 3456)
    return a.buffer_load_dwordx4(V(VW1 + q % 7), S(R_W1, 4), S(63), mods="offen lds")


def conv_first(a):
    S_DG = 60
    a.s_and_b32(S(6), S(2), 7)
    a.s_mul_i32(S(6), S(6), 20)
    a.s_lshr_b32(S(7), S(2), 3)
    a.s_add_u32(S(S_DG), S(6), S(7))
    a.s_lshl_b32(S(6), S(S_DG), 2)
    a.s_add_u32(S(6), S(6), S(S_WAVE))
    return kgen_loads(a, 6)


def h_store_addr(a, vj, vg, voff):
    a.v_mul_u32_u24(V(voff), 40960, V(vg))
    a.v_lshl_add_u32(V(voff), V(vj), 4, V(voff))
    srd(a, 12, P_WS, H4_OFF, H4_SZ)
    a.s_mul_i32(S(58), S(S_WAVE), 16 * 40960)
    a.s_lshl_b32(S(57), S(60), 8)
    a.s_add_u32(S(58), S(58), S(57))


def conv_role(a, ktk):
    VL = 1
    S_DG, S_KS, S_WT = 60, 61, 59
    a.s_mul_i32(S(S_KS), S(S_WAVE), KS_SZ)
    a.s_mul_i32(S(S_WT), S(S_WAVE), WT_P)
    a.s_add_u32(S(S_WT), S(S_WT), WT_L)
    XR = 232
    tk = {}

    def hook(i):
        if i < 0:
            srd(a, 8, P_U, 0, 2048 * 640 * 2)
            a.v_mul_u32_u24(V(7), 10240, V(0))
            a.s_lshl_b32(S(6), S(S_DG), 3)
            a.s_add_u32(S(7), S(6), 5120)
            w1_addr(a, 24, 25)
        else:
            for e in GATHER.get(i, []):
                tk["x"] = a.buffer_load_dwordx2(V(XR + 2 * e, 2), V(7), S(8, 4), S(6 if e < 4 else 7), mods=f"offen offset:{(e%4)*1280}")

    kgen(a, ktk, S_KS, S_WT, hook)
    stamp(a, 3)
    SR = 8
    a.v_lshlrev_b32(V(2), 6, V(0))
    a.v_mov_b32(V(3), 0)

    def stat_loads():
        for i in range(4):
            a.buffer_load_dwordx4(V(SR + 4 * i, 4), V(2), S(R_SY, 4), 0, mods=f"offen offset:{16*i} sc1")
        a.buffer_load_dword(V(24), V(3), S(R_DBG, 4), 0, mods="offen sc1")

    stat_loads()
    a.v_mov_b32(V(25), 0)
    a.s_mul_i32(S(5), S(S_WAVE), 4608)
    a.s_add_u32(S(5), S(5), UB_L)
    a.v_lshl_add_u32(V(26), V(VL), 2, S(5))
    a.ds_write_b32(V(26), V(25))
    a.ds_write_b32(V(26), V(25), mods="offset:2304")
    a.v_and_b32(V(27), 15, V(VL))
    a.v_lshrrev_b32(V(28), 4, V(VL))
    a.v_lshl_add_u32(V(29), V(27), 2, S(S_WT))
    a.ds_write_b32(V(29), V(25))
    VA, VBQ = 32, 40
    a.v_lshl_add_u32(V(VA), V(VL), 2, S(S_WT))
    for c in range(1, 8):
        a.v_add_u32(V(VA + c), 1024 * c, V(VA))
    a.v_sub_u32(V(VBQ), V(27), V(28))
    a.v_add_u32(V(VBQ), 3, V(VBQ))
    a.v_lshl_add_u32(V(VBQ), V(VBQ), 4, S(5))
    a.s_mov_b32(S(46), "0x05040100")
    a.s_mov_b32(S(47), "0x07060302")
    XS, F = 48, 64
    a.wvm(tk["x"])
    for c in range(4):
        for k in range(4):
            a.v_perm_b32(V(XS + 4 * c + k), V(XR + 2 * (2 * k + 1) + (c >> 1)), V(XR + 2 * (2 * k) + (c >> 1)), S(46 + (c & 1)))
    a.v_lshlrev_b32(V(41), 4, V(0))
    a.v_add_u32(V(41), XH_L, V(41))
    for c in range(4):
        a.ds_write_b128(V(41), V(XS + 4 * c, 4), mods=f"offset:{c*XH_P}")
    for i in range(16):
        a.v_lshlrev_b32(V(F + 2 * i), 16, V(XS + i))
        a.v_and_b32(V(F + 2 * i + 1), "0xffff0000", V(XS + i))
    a.v_and_b32(V(42), 1, V(0))
    a.v_mul_u32_u24(V(42), 2304, V(42))
    a.v_lshrrev_b32(V(43), 1, V(0))
    a.v_lshl_add_u32(V(42), V(43), 4, V(42))
    a.v_add_u32(V(42), UB_L + 256, V(42))
    h_store_addr(a, 27, 28, 255)
    for q in range(4):
        a.v_mov_b32(V(212 + q), -1)
    lp, first = newlab("st"), newlab("stf")
    a.s_branch(first)
    a.label(lp)
    stat_loads()
    a.label(first)
    a.wait(vm=0)
    a.v_readfirstlane_b32(S(S_NONCE), V(24))
    a.v_min3_u32(V(25), V(SR + 1), V(SR + 3), V(SR + 5))
    a.v_max3_u32(V(26), V(SR + 1), V(SR + 3), V(SR + 5))
    a.v_min3_u32(V(25), V(25), V(SR + 7), V(SR + 9))
    a.v_max3_u32(V(26), V(26), V(SR + 7), V(SR + 9))
    a.v_min3_u32(V(25), V(25), V(SR + 11), V(SR + 13))
    a.v_max3_u32(V(26), V(26), V(SR + 11), V(SR + 13))
    a.v_min3_u32(V(25), V(25), V(SR + 15), V(24))
    a.v_max3_u32(V(26), V(26), V(SR + 15), V(24))
    a.v_max_u32(V(26), 1, V(26))
    a.v_cmp_ne_u32("vcc", V(25), V(26))
    spin_branch(a, lp)
    stamp(a, 4)
    if POISON:
        for q in range(4):
            a.s_add_u32(S(57), S(58), 4 * q * 40960)
            t_poi = a.buffer_store_dwordx4(V(212, 4), V(255), S(12, 4), S(57), mods="offen sc1")
    RS, NM = 96, 104
    for e in range(8):
        a.v_and_b32(V(RS + e), "0xffff0000", V(SR + 2 * e))
        a.v_lshlrev_b32(V(NM + e), 16, V(SR + 2 * e))
    for e in range(8):
        a.v_rcp_f32(V(RS + e), V(RS + e))
    for k in range(4):
        a.v_pk_mul_f32(V(NM + 2 * k, 2), V(NM + 2 * k, 2), V(RS + 2 * k, 2), mods="neg_lo:[1,0] neg_hi:[1,0]")
    for c in range(4):
        for k in range(4):
            f = F + 2 * (4 * c + k)
            a.v_pk_fma_f32(V(f, 2), V(f, 2), V(RS + 2 * k, 2), V(NM + 2 * k, 2))
        for k in range(4):
            f = F + 2 * (4 * c + k)
            a.v_cvt_pk_bf16_f32(V(XS + 4 * c + k), V(f), V(f + 1))
        a.ds_write_b128(V(42), V(XS + 4 * c, 4), mods=f"offset:{c*4608}")
    OPS = [48, 112]
    ACC = 216
    XQ, XFL = 8, 176
    subs = [(g, h) for g in range(4) for h in range(2)]

    def loadsA(si):
        g, h = subs[si]
        base = OPS[si % 2]
        out = []
        for c in range(8):
            o = 8 + 64 * g + 8 * h
            out.append(("ds_read2_b32", (V(base + 4 * c, 2), V(VA + c)), f"offset0:{o} offset1:{o-2}"))
            out.append(("ds_read2_b32", (V(base + 4 * c + 2, 2), V(VA + c)), f"offset0:{o-4} offset1:{o-6}"))
        return out

    def loadsB(si):
        g, h = subs[si]
        base = OPS[si % 2]
        par = 1 - h
        return [("ds_read_b128", (V(base + 32 + 4 * c, 4), V(VBQ)), f"offset:{par*2304 + (13 + 16*c - 4*g)*16}") for c in range(8)]

    a.s_mul_i32(S(6), S(S_WAVE), XH_P)
    a.s_add_u32(S(6), S(6), XH_L)
    a.v_lshlrev_b32(V(44), 5, V(27))
    a.v_lshl_add_u32(V(44), V(28), 3, V(44))
    a.v_add_u32(V(44), S(6), V(44))
    flag_addr(a, 45, 96, VL)
    w1_srd(a)
    a.wait(lgkm=0)
    a.s_barrier()
    stamp(a, 5)
    for op, args, mods in loadsB(0) + loadsA(0):
        a.I(op, *args, mods=mods)
    started = set()
    t_rp = None
    nq = 0
    for si in range(8):
        base = OPS[si % 2]
        nxt = []
        if si < 7:
            la, lb = loadsA(si + 1), loadsB(si + 1)
            for c in range(8):
                nxt += [la[2 * c], la[2 * c + 1], lb[c]]
        if si == 0:
            nxt += [("ds_read_b64", (V(XQ + 2 * T, 2), V(44)), f"offset:{512*T}") for T in range(8)]
        extra = []
        if si == 1:
            for i in range(16):
                extra.append(("v_lshlrev_b32", (V(XFL + 2 * i), 16, V(XQ + i)), ""))
                extra.append(("v_and_b32", (V(XFL + 2 * i + 1), "0xffff0000", V(XQ + i)), ""))
        a.wait(lgkm=0)
        if si == 7:
            t_rp = flag_loads(a, 45, S(62), 96, 208)
        if si == 4:
            a.s_mov_b32(S(62), FRP)
        order = [(c, gp) for c in range(8) for gp in range(8 - c)]
        for n, (c, gp) in enumerate(order):
            T = c + gp
            a.v_mfma_f32_16x16x32_bf16(V(ACC + 4 * T, 4), V(base + 4 * c, 4), V(base + 32 + 4 * gp, 4), V(ACC + 4 * T, 4) if T in started else 0)
            started.add(T)
            if nxt:
                op, args, mods = nxt.pop(0)
                a.I(op, *args, mods=mods)
            if extra:
                op, args, mods = extra.pop(0)
                a.I(op, *args, mods=mods)
            if n in (26, 30, 34) and nq < Q_EARLY:
                w1_dma(a, nq); nq += 1
    assert nq == Q_EARLY
    stamp(a, 6)
    for T in range(8):
        for hh in range(2):
            r = ACC + 4 * T + 2 * hh
            a.v_pk_add_f32(V(r, 2), V(r, 2), V(XFL + 4 * T + 2 * hh, 2))
        p = 48 + 2 * T
        a.v_cvt_pk_bf16_f32(V(p), V(ACC + 4 * T), V(ACC + 4 * T + 1))
        a.v_cvt_pk_bf16_f32(V(p + 1), V(ACC + 4 * T + 2), V(ACC + 4 * T + 3))
        a.ds_write_b64(V(44), V(p, 2), mods=f"offset:{512*T}")
    a.v_bfe_u32(V(8), V(VL), 2, 2)
    a.v_mul_u32_u24(V(8), XH_P, V(8))
    a.v_lshl_add_u32(V(8), V(28), 6, V(8))
    a.v_and_b32(V(9), 3, V(VL))
    a.v_lshl_add_u32(V(8), V(9), 3, V(8))
    a.s_lshl_b32(S(6), S(S_WAVE), 10)
    a.s_add_u32(S(6), S(6), XH_L)
    a.v_add_u32(V(8), S(6), V(8))
    if POISON:
        a.wvm(t_poi)
    a.wait(lgkm=0)
    a.s_barrier()
    HO = 64
    tks = []
    for i in range(4):
        a.ds_read_b64_tr_b16(V(HO + 4 * i, 2), V(8), mods=f"offset:{256*i}")
        tks.append(a.ds_read_b64_tr_b16(V(HO + 4 * i + 2, 2), V(8), mods=f"offset:{256*i+32}"))
    for i in range(4):
        a.wds(tks[i])
        a.s_add_u32(S(7), S(58), 4 * i * 40960)
        t_st = a.buffer_store_dwordx4(V(HO + 4 * i, 4), V(255), S(12, 4), S(7), mods="offen sc1")
    a.s_lshl_b32(S(6), S(2), 7)
    a.s_add_u32(S(6), S(6), FH)
    if not POISON:
        a.wvm(t_st)
    a.s_barrier()
    set_flag(a, S(6), 10)
    stamp(a, 7)
    a.nvm -= 1
    for q in range(Q_EARLY, 35):
        w1_dma(a, q)
    a.wvm(t_rp)
    ok = newlab("rpok")
    flag_check(a, 208, 96)
    a.s_cbranch_vccz(ok)
    poll_flags(a, 45, S(62), 96, 208)
    a.label(ok)


def repack_addr(a, vo):
    a.s_mov_b32(S(48), 1280 - 160)
    for i in range(5):
        a.v_add_u32(V(4), 64 * i, V(1))
        a.v_mul_u32_u24(V(3), 6554, V(4))
        a.v_lshrrev_b32(V(3), 16, V(3))
        a.v_lshlrev_b32(V(4), 4, V(4))
        a.v_mad_u32_u24(V(vo + i), V(3), S(48), V(4))
    a.v_lshrrev_b32(V(4), 2, V(1))
    a.v_mul_u32_u24(V(4), 160, V(4))
    a.v_and_b32(V(3), 3, V(1))
    a.v_lshl_add_u32(V(vo + 5), V(3), 3, V(4))


def repack_load(a, s_idx, s_keep, vo, vd, rsrc):
    a.s_and_b32(S(s_keep), S(s_idx), 7)
    a.s_lshr_b32(S(s_keep + 1), S(s_idx), 3)
    a.s_mul_i32(S(6), S(s_keep + 1), 32 * 1280)
    a.s_mul_i32(S(7), S(s_keep), 160)
    a.s_add_u32(S(6), S(6), S(7))
    return [a.buffer_load_dwordx4(V(vd + 4 * i, 4), V(vo + i), S(rsrc, 4), S(6), mods="offen") for i in range(5)]


def repack_proc(a, s_keep, vo, vd, tks, s_lds):
    a.v_lshl_add_u32(V(4), V(1), 4, S(s_lds))
    a.v_add_u32(V(5), S(s_lds), V(vo + 5))
    a.v_lshlrev_b32(V(7), 4, V(1))
    a.s_mul_i32(S(49), S(s_keep), 54)
    a.s_add_u32(S(49), S(49), S(s_keep + 1))
    a.s_mul_i32(S(49), S(49), 5 * 1024)
    a.s_add_u32(S(50), S(49), 4096)
    for i in range(5):
        a.wvm(tks[i])
        a.ds_write_b128(V(4), V(vd + 4 * i, 4), mods=f"offset:{1024*i}")
    if vd == 104:
        stamp(a, 4)
    rt = []
    for t in range(5):
        a.ds_read_b64_tr_b16(V(vd + 4 * t, 2), V(5), mods=f"offset:{32*t}")
        rt.append(a.ds_read_b64_tr_b16(V(vd + 4 * t + 2, 2), V(5), mods=f"offset:{32*t+16*160}"))
    for t in range(5):
        a.wds(rt[t])
        a.buffer_store_dwordx4(V(vd + 4 * t, 4), V(7), S(12, 4), S(49 if t < 4 else 50), mods=f"offen offset:{1024*(t%4)} sc1")


def aux_first(a):
    VL = 1
    S_AI, S_O = 60, 57
    a.s_sub_u32(S(S_AI), S(2), 160)
    a.s_mul_i32(S(S_O), S(S_AI), 3)
    a.s_add_u32(S(S_O), S(S_O), S(S_WAVE))
    a.s_cmp_eq_u32(S(S_WAVE), 3)
    a.s_cselect_b32(S(S_O), 4096, S(S_O))
    a.v_lshrrev_b32(V(2), 3, V(VL))
    a.v_mul_u32_u24(V(2), 1280, V(2))
    a.v_and_b32(V(3), 7, V(VL))
    a.v_lshl_add_u32(V(2), V(3), 4, V(2))
    a.s_mul_i32(S(6), S(S_O), 10240)
    a.wait(lgkm=0)
    srd(a, 8, P_U, 0, 2048 * 640 * 2)
    return [a.buffer_load_dwordx4(V(16 + 4 * i, 4), V(2), S(8, 4), S(6), mods=f"offen offset:{128*i}") for i in range(10)]


def code_prefetch(a):
    a.s_getpc_b64(S(6, 2))
    a.label("L_PC")
    a.s_sub_u32(S(6), S(6), "L_PC-" + NAME + "_kernel")
    a.s_subb_u32(S(7), S(7), 0)
    a.v_lshlrev_b32(V(2), 7, V(1))
    for i in range(NCODE):
        a.v_min_u32(V(3), "L_END-" + NAME + "_kernel", V(2))
        a.global_load_dword(V(244 + i), V(3), S(6, 2))
        a.v_add_u32(V(2), 8192, V(2))


def aux_role(a, xt):
    VL = 1
    S_AI, S_GW, S_KS, S_O = 60, 61, 62, 57
    XB = 16
    a.s_lshl_b32(S(S_GW), S(S_AI), 2)
    a.s_add_u32(S(S_GW), S(S_GW), S(S_WAVE))
    a.s_mul_i32(S(S_KS), S(S_WAVE), KS_SZ)
    repack_addr(a, 64)
    a.v_mov_b32(V(12), MODE_L)
    notag = newlab("nt")
    a.s_cmp_lg_u32(S(S_WAVE), 3)
    a.s_cbranch_scc1(notag)
    lp = newlab("nn")
    save = a.nvm
    a.v_mov_b32(V(11), 0)
    a.label(lp)
    a.buffer_load_dword(V(13), V(11), S(R_DBG, 4), 0, mods="offen sc1")
    a.wait(vm=0)
    a.v_cmp_eq_u32("vcc", 0, V(13))
    spin_branch(a, lp)
    a.ds_write_b32(V(12), V(13))
    a.nvm = save
    a.label(notag)
    srd(a, 24, P_W2, 0, 1728 * 640 * 2)
    t2 = repack_load(a, S_GW, 4, 64, 104, 24)
    a.s_add_u32(S(56), S(S_AI), 384)
    a.s_cmp_eq_u32(S(S_WAVE), 3)
    a.s_cselect_b32(S(56), S(56), 4096)
    t3 = repack_load(a, 56, 58, 64, 72, 24)
    w1_addr(a, 4, 5)
    srd(a, 28, P_W1, 0, 640 * 1728 * 2)
    srd(a, 12, P_WS, W2P_OFF, W2P_SZ)
    a.v_lshlrev_b32(V(6), 7, V(VL))
    a.s_mov_b32(S(46), "0x3f803f80")
    for i in range(10):
        a.wvm(xt[i])
        for q in range(4):
            x = V(XB + 4 * i + q)
            first = (i == 0 and q < 2)
            a.v_dot2_f32_bf16(V(8 + (q & 1)), x, S(46), 0 if first else V(8 + (q & 1)))
            a.v_dot2_f32_bf16(V(10 + (q & 1)), x, x, 0 if first else V(10 + (q & 1)))
    a.wait(lgkm=0)
    a.s_barrier()
    a.ds_read_b32(V(15), V(12))
    a.v_add_f32(V(8), V(8), V(9))
    a.v_add_f32(V(10), V(10), V(11))
    for m in ("quad_perm:[1,0,3,2]", "quad_perm:[2,3,0,1]", "row_half_mirror"):
        a.v_add_f32_dpp(V(8), V(8), V(8), mods=f"{m} row_mask:0xf bank_mask:0xf")
        a.v_add_f32_dpp(V(10), V(10), V(10), mods=f"{m} row_mask:0xf bank_mask:0xf")
    inv = f32(1.0 / 640)
    a.v_mul_f32(V(8), inv, V(8))
    a.v_mul_f32(V(10), inv, V(10))
    a.v_fma_f32(V(10), "-" + V(8), V(8), V(10))
    a.v_max_f32(V(10), 0, V(10))
    a.v_cvt_pk_bf16_f32(V(9), V(10), V(10))
    a.v_lshlrev_b32(V(10), 16, V(9))
    a.v_add_f32(V(10), f32(1e-5), V(10))
    a.v_cvt_pk_bf16_f32(V(9), V(10), V(10))
    a.v_lshlrev_b32(V(10), 16, V(9))
    a.v_sqrt_f32(V(10), V(10))
    a.v_cvt_pk_bf16_f32(V(14), V(8), V(10))
    a.v_and_b32(V(3), 7, V(VL))
    a.v_cmp_eq_u32("vcc", 0, V(3))
    a.v_mov_b32(V(9), "0x40000000")
    a.v_cndmask_b32(V(9), V(9), V(VL), "vcc")
    a.s_lshl_b32(S(6), S(S_O), 6)
    a.s_cmp_ge_u32(S(S_O), 256)
    a.s_cselect_b32(S(6), "0x40000000", S(6))
    a.wait(lgkm=0)
    a.v_readfirstlane_b32(S(S_NONCE), V(15))
    a.buffer_store_dwordx2(V(14, 2), V(9), S(R_SY, 4), S(6), mods="offen sc1")
    stamp(a, 1)
    repack_proc(a, 4, 64, 104, t2, S_KS)
    join = newlab("aj")
    a.s_cmp_ge_u32(S(56), 432)
    a.s_cbranch_scc1(join)
    repack_proc(a, 58, 64, 72, t3, S_KS)
    a.label(join)
    stamp(a, 5)
    a.s_lshl_b32(S(6), S(S_GW), 13)
    a.buffer_load_dword(V(238), V(6), S(28, 4), S(6), mods="offen")
    w1_srd(a)
    a.wait(vm=1)
    stamp(a, 6)
    a.s_barrier()
    a.s_lshl_b32(S(6), S(S_AI), 7)
    a.s_add_u32(S(6), S(6), FRP)
    set_flag(a, S(6), 10)
    stamp(a, 2)
    for q in range(35):
        w1_dma(a, q)
    flag_addr(a, 45, 96, VL)
    a.s_mov_b32(S(62), FRP)
    poll_flags(a, 45, S(62), 96, 208)
    stamp(a, 3)


def gemms(a):
    VL = 1
    S_CT, S_TB, S_CT2, S_RB2 = 56, 57, 58, 59
    R_H, R_X, R_W2 = 8, 12, 20
    t_dma = a.nvm
    a.s_mov_b64(S(S_MIS, 2), 0)
    xcc_mismatch(a, 45, 96, 208, S_MIS)
    a.s_and_b32(S(4), S(2), 7)
    a.s_lshl_b32(S(5), S(4), 1)
    a.s_bfe_u32(S(6), S(2), "0x10003")
    a.s_add_u32(S(60), S(5), S(6))
    a.s_lshr_b32(S(S_CT), S(2), 4)
    a.s_lshl_b32(S(S_TB), S(60), 2)
    a.s_add_u32(S(S_TB), S(S_TB), S(S_WAVE))
    a.s_lshl_b32(S(5), S(60), 1)
    a.s_bfe_u32(S(6), S(2), "0x10004")
    a.s_add_u32(S(S_RB2), S(5), S(6))
    a.s_lshr_b32(S(S_CT2), S(2), 5)
    a.v_lshlrev_b32(V(5), 4, V(VL))
    a.v_and_b32(V(2), 15, V(VL))
    a.v_lshrrev_b32(V(3), 4, V(VL))
    a.s_mul_i32(S(7), S(S_CT2), 270 * 1024)
    srd2(a, R_W2, P_WS, W2P_OFF, S(7), 270 * 1024)
    a.s_mul_i32(S(46), S(S_WAVE), 5 * 1024)
    ACC, SQ, BB = 16, 72, 96
    W2V = 192

    def w2dst(s, t):
        if s < 10:
            return A(56 + 20 * s + 4 * t, 4)
        if s < 12:
            return A(20 * (s - 10) + 4 * t, 4)
        return V(W2V + 20 * (s - 12) + 4 * t, 4)

    def wload(n):
        s, t = divmod(n, 5)
        if t == 0:
            a.s_add_u32(S(49), S(46), s * 20 * 1024)
        if t == 4:
            a.s_add_u32(S(49), S(49), 4096)
        a.buffer_load_dwordx4(w2dst(s, t), V(5), S(R_W2, 4), S(49), mods=f"offen offset:{1024*(t%4)} sc1")

    a.s_mul_i32(S(7), S(S_TB), 110592)
    srd2(a, R_X, P_WS, H1_OFF, S(7), 110592)
    a.s_mul_i32(S(47), S(S_CT), 27 * 256)
    a.v_min_u32(V(94), 53, V(VL))
    a.v_lshl_add_u32(V(94), V(94), 7, S(47))
    wq = list(range(70))
    NPRE = int(os.environ.get("NPRE", "25"))
    for _ in range(NPRE):
        wload(wq.pop(0))
    a.v_lshrrev_b32(V(6), 2, V(VL))
    a.v_mul_u32_u24(V(6), 224, V(6))
    a.v_and_b32(V(7), 3, V(VL))
    a.v_lshl_add_u32(V(6), V(7), 3, V(6))
    a.v_add_u32(V(6), S(S_D2), V(6))
    a.v_add_u32(V(7), 9 * 7168, V(6))
    a.v_add_u32(V(4), 18 * 7168, V(6))
    VAB = [6, 7, 4]
    a.v_mul_u32_u24(V(8), 224, V(0))
    a.v_add_u32(V(8), S(S_D2), V(8))
    a.v_and_b32(V(9), 127, V(0))
    a.v_mul_u32_u24(V(9), 224, V(9))
    a.v_add_u32(V(9), S(S_D2), V(9))
    a.v_add_u32(V(9), 512 * 224, V(9))
    a.v_mov_b32(V(10), "0x3f80")
    a.v_mov_b32(V(11), 0)
    a.wvm(t_dma)
    a.s_barrier()
    a.ds_write_b64(V(8), V(10, 2), mods="offset:216")
    a.ds_write_b64(V(8), V(10, 2), mods=f"offset:{256*224+216}")
    a.ds_write_b64(V(9), V(10, 2), mods="offset:216")
    skip = newlab("pf")
    a.s_cmp_lt_u32(S(2), 160)
    a.s_cbranch_scc1(skip)
    a.s_cmp_eq_u32(S(S_WAVE), 0)
    a.s_cbranch_scc1(skip)
    srd(a, 24, P_WS, W2P_OFF, W2P_SZ)
    a.s_sub_u32(S(5), S(2), 160)
    a.s_lshr_b32(S(5), S(5), 3)
    a.s_mul_i32(S(5), S(5), 192 * 128)
    a.v_subrev_u32(V(8), 64, V(0))
    a.v_lshlrev_b32(V(8), 7, V(8))
    for i in range(int(os.environ.get("NPF", "8"))):
        a.s_add_u32(S(6), S(5), i * 2304 * 128)
        a.buffer_load_dword(V(84 + i), V(8), S(24, 4), S(6), mods="offen sc1")
    a.label(skip)
    skip = newlab("ph")
    a.s_cmp_lg_u32(S(S_WAVE), 0)
    a.s_cbranch_scc1(skip)
    flag_addr(a, 8, 160, VL)
    a.s_mov_b32(S(47), FH)
    poll_flags(a, 8, S(47), 160, 16)
    xcc_mismatch(a, 8, 160, 16, S_MIS)
    a.s_cmp_lg_u64(S(S_MIS, 2), 0)
    a.s_cselect_b32(S(6), 1, 0)
    a.v_mov_b32(V(8), MODE_L)
    a.v_mov_b32(V(9), S(6))
    a.ds_write_b32(V(8), V(9))
    a.label(skip)
    a.s_mul_i32(S(7), S(S_TB), 40960)
    srd2(a, R_H, P_WS, H4_OFF, S(7), 40960)

    def areads(ks):
        out = []
        for t in range(7):
            for hh in range(2):
                out.append((A(28 * (ks % 2) + 4 * t + 2 * hh, 2), V(VAB[ks // 9]), f"offset:{(ks%9)*7168 + hh*3584 + 32*t}"))
        return out

    a.s_mov_b32(S(63), 64)
    ON = 12
    for i in range(4):
        a.v_mov_b32(V(ON + i), "0x3f803f80")
    a.s_mul_i32(S(47), S(S_WAVE), 5 * 7168)
    a.v_add_u32(V(80), S(47), V(6))
    a.s_lshl_b32(S(47), S(S_WAVE), 9)
    a.s_add_u32(S(47), S(47), CSP_L)
    a.v_lshl_add_u32(V(81), V(3), 4, S(47))
    a.wait(lgkm=0)
    a.s_barrier()
    stamp(a, 8)
    a.label("L_G1")
    btk = {}

    def bload(n):
        if n % 4 == 0:
            a.s_mov_b32(S(48), n * 1024)
        btk[n] = a.buffer_load_dwordx4(V(BB + 4 * n, 4), V(5), S(R_H, 4), S(48), mods=f"offen offset:{(n%4)*1024} sc1")

    def touch(n):
        a.buffer_load_dword(V(95), V(94), S(R_X, 4), 0, mods="offen sc1")

    queue = [(bload, n) for n in range(40)] + [(touch, 0)] + [(wload, n) for n in wq if n < 50]
    wq = [n for n in wq if n >= 50]
    for _ in range(12):
        f, n = queue.pop(0); f(n)
    a.s_cmp_lg_u32(S(63), 64)
    a.s_cbranch_scc1("L_G1B")
    for kk in range(6):
        if kk < 5:
            for t in range(7):
                for hh in range(2):
                    a.ds_read_b64_tr_b16(A(28 * (kk % 2) + 4 * t + 2 * hh, 2), V(80), mods=f"offset:{kk*7168 + hh*3584 + 32*t}")
        if kk:
            a.wait(lgkm=14 if kk < 5 else 0)
            for t in range(7):
                a.v_mfma_f32_16x16x32_bf16(V(ACC + 4 * t, 4), A(28 * ((kk - 1) % 2) + 4 * t, 4), V(ON, 4), V(ACC + 4 * t, 4) if kk > 1 else 0)
    a.s_mov_b32("exec_lo", "0x00010001")
    a.s_mov_b32("exec_hi", "0x00010001")
    for t in range(7):
        a.ds_write_b128(V(81), V(ACC + 4 * t, 4), mods=f"offset:{64*t}")
    a.s_mov_b64("exec", -1)
    a.label("L_G1B")
    for d, ad, mods in areads(0):
        a.ds_read_b64_tr_b16(d, ad, mods=mods)
    for ks in range(20):
        if ks == 4:
            a.s_cmp_lg_u32(S(63), 64)
            a.s_cbranch_scc1("L_G1C")
            a.s_barrier()
            a.label("L_G1C")
            a.v_and_b32(V(9), 31, V(VL))
            a.v_lshlrev_b32(V(9), 4, V(9))
            a.v_add_u32(V(9), CSP_L, V(9))
            for w in range(4):
                a.ds_read_b128(V(96 + 4 * w, 4), V(9), mods=f"offset:{512*w}")
            a.s_lshl_b32(S(47), S(S_WAVE), 9)
            a.v_add_u32(V(9), S(47), V(9))
        if ks == 5:
            for hh in range(4):
                a.v_add_f32(V(96 + hh), V(96 + hh), V(100 + hh))
                a.v_add_f32(V(104 + hh), V(104 + hh), V(108 + hh))
            for hh in range(4):
                a.v_add_f32(V(96 + hh), V(96 + hh), V(104 + hh))
            a.ds_write_b128(V(9), V(96, 4), mods=f"offset:{CS_L-CSP_L}")
        b = BB + 8 * ks
        a.wvm(btk[2 * ks + 1])
        a.v_swap_b32(V(b + 2), V(b + 4))
        a.v_swap_b32(V(b + 3), V(b + 5))
        nxt = areads(ks + 1) if ks < 19 else []
        a.wait(lgkm=0)
        nl = int(os.environ.get("NL", "3"))
        if ks == 17:
            queue += [(wload, n) for n in range(60, 70)]
        for p in range(2):
            a.v_mfma_f32_16x16x32_bf16(V(SQ + 4 * p, 4), V(b + 4 * p, 4), V(b + 4 * p, 4), V(SQ + 4 * p, 4) if ks else 0)
            if nxt:
                d, ad, mods = nxt.pop(0)
                a.ds_read_b64_tr_b16(d, ad, mods=mods)
        for t in range(7):
            for p in range(2):
                acc = ACC + 8 * t + 4 * p
                a.v_mfma_f32_16x16x32_bf16(V(acc, 4), A(28 * (ks % 2) + 4 * t, 4), V(b + 4 * p, 4), V(acc, 4) if ks else 0)
                if nxt:
                    d, ad, mods = nxt.pop(0)
                    a.ds_read_b64_tr_b16(d, ad, mods=mods)
                if p == 1 and t % 2 == 0 and nl and queue:
                    f, n = queue.pop(0); f(n)
                    nl -= 1
    stamp(a, 9)
    queue += [(wload, n) for n in range(50, 60)]
    while queue:
        f, n = queue.pop(0); f(n)
    CSR = 96
    for t in range(7):
        a.ds_read_b128(V(CSR + 4 * t, 4), V(81), mods=f"offset:{CS_L-CSP_L+64*t}")
    a.v_mov_b32(V(14), MODE_L)
    a.ds_read_b32(V(14), V(14))
    a.v_and_b32(V(10), 3, V(2))
    a.v_lshrrev_b32(V(11), 2, V(2))
    a.v_lshl_add_u32(V(11), V(11), 4, V(2))
    a.v_lshlrev_b32(V(11), 2, V(11))
    a.v_lshlrev_b32(V(12), 2, V(2))
    a.v_add_u32(V(12), 192, V(12))
    S1 = [124, 125]; S2 = [82, 83]
    for r in (1, 2, 3):
        a.v_cmp_eq_u32("vcc", r, V(10))
        for p in range(2):
            a.v_cndmask_b32(V(SQ + 4 * p), V(SQ + 4 * p), V(SQ + 4 * p + r), "vcc")
    for p in range(2):
        a.ds_bpermute_b32(V(S2[p]), V(11), V(SQ + 4 * p))
        a.ds_bpermute_b32(V(S1[p]), V(12), V(ACC + 8 * 6 + 4 * p))
    a.s_mul_i32(S(47), S(S_CT), 27 * 256)
    a.s_add_u32(S(48), S(47), 4096)
    a.v_cmp_eq_u32("vcc", 3, V(3))
    a.v_mov_b32(V(13), "0x40000000")
    a.v_cndmask_b32(V(13), V(5), V(13), "vcc")
    a.wait(lgkm=0)
    if POISON:
        a.v_cmp_u_f32("vcc", V(S2[0]), V(S2[1]))
        a.s_cbranch_vccnz("L_G1RETRY")
        a.label("L_G1OK")
    RS = [84, 86]; NM = [88, 90]
    ln_stats2(a, S1, S2, RS, NM, 92, 93, 640)
    OB = 128
    a.v_readfirstlane_b32(S(61), V(14))
    a.s_lshl_b32(S(62), S(60), 4)
    a.s_add_u32(S(62), S(62), S(S_CT))
    a.s_lshl_b32(S(62), S(62), 7)
    a.s_add_u32(S(62), S(62), FH1)
    slow, done = newlab("slow"), newlab("done")
    a.s_cmp_lg_u32(S(61), 0)
    a.s_cbranch_scc1(slow)
    nvm0 = a.nvm
    for variant in ("", "sc1"):
        a.nvm = nvm0
        for t in range(7):
            ob = OB + 4 * t
            for p in range(2):
                for hh in range(2):
                    r = ACC + 8 * t + 4 * p + 2 * hh
                    a.v_pk_mul_f32(V(r, 2), V(r, 2), V(RS[p], 2), mods="op_sel_hi:[1,0]")
            for p in range(2):
                for hh in range(2):
                    r = ACC + 8 * t + 4 * p + 2 * hh
                    a.v_pk_fma_f32(V(r, 2), V(CSR + 4 * t + 2 * hh, 2), V(NM[p], 2), V(r, 2), mods="op_sel_hi:[1,0,1]")
            for p in range(2):
                for hh in range(2):
                    r = ACC + 8 * t + 4 * p + 2 * hh
                    a.v_cvt_pk_bf16_f32(V(ob + 2 * p + hh), V(r), V(r + 1))
            for i in range(4):
                a.v_pk_max_i16(V(ob + i), V(ob + i), 0)
            t_st = a.buffer_store_dwordx4(V(ob, 4), V(13 if t == 6 else 5), S(R_X, 4), S(47 if t < 4 else 48), mods=f"offen offset:{1024*(t%4)} {variant}")
        a.wait(vm=0)
        a.s_barrier()
        set_flag(a, S(62), 10, variant)
        if variant == "":
            a.s_branch(done)
            a.label(slow)
    a.label(done)
    stamp(a, 10)
    while queue:
        f, n = queue.pop(0); f(n)
    HR = 232
    a.s_lshl_b32(S(4), S(S_RB2), 1)
    a.s_lshr_b32(S(5), S(S_WAVE), 1)
    a.s_add_u32(S(5), S(5), S(4))
    a.s_mul_i32(S(7), S(5), 40960)
    srd2(a, R_H, P_WS, H4_OFF, S(7), 40960)
    a.s_mul_i32(S(47), S(S_CT2), 20 * 256)
    a.s_and_b32(S(5), S(S_WAVE), 1)
    a.s_lshl_b32(S(5), S(5), 3)
    a.s_add_u32(S(47), S(47), S(5))
    a.s_add_u32(S(48), S(47), 4096)
    for t in range(5):
        a.buffer_load_dwordx2(V(HR + 2 * t, 2), V(5), S(R_H, 4), S(47 if t < 4 else 48), mods=f"offen offset:{1024*(t%4)} sc1")
    skip = newlab("p1")
    a.s_cmp_lg_u32(S(S_WAVE), 0)
    a.s_cbranch_scc1(skip)
    flag_addr(a, 8, 16, VL)
    a.s_lshl_b32(S(47), S(60), 11)
    a.s_add_u32(S(47), S(47), FH1)
    poll_flags(a, 8, S(47), 16, 12)
    a.s_cmp_eq_u32(S(61), 0)
    a.s_cbranch_scc1(skip)
    a.I("buffer_inv", mods="sc1")
    a.wait(vm=0)
    a.label(skip)
    RB = [24, 28]
    for p in range(2):
        a.s_add_u32(S(5), S(4), p)
        a.s_mul_i32(S(7), S(5), 110592)
        srd2(a, RB[p], P_WS, H1_OFF, S(7), 110592)
    a.s_lshl_b32(S(47), S(S_WAVE), 11)
    a.s_barrier()
    stamp(a, 11)
    ND = 6
    htk = {}

    def hload(n):
        s, r = divmod(n, 4)
        p, hh = divmod(r, 2)
        if r == 0:
            a.s_add_u32(S(48), S(47), s * 8192)
        htk[n] = a.buffer_load_dwordx4(V(BB + 16 * (s % ND) + 8 * p + 4 * hh, 4), V(5), S(RB[p], 4), S(48), mods=f"offen offset:{1024*hh} {HLD}")

    NS = 14
    nissued = 0
    for _ in range(12):
        hload(nissued); nissued += 1
    for s in range(NS):
        a.wvm(htk[4 * s + 3])
        b = BB + 16 * (s % ND)
        for p in range(2):
            a.v_swap_b32(V(b + 8 * p + 2), V(b + 8 * p + 4))
            a.v_swap_b32(V(b + 8 * p + 3), V(b + 8 * p + 5))
        n = 0
        lim = min(4 * NS, 4 * (s + ND))
        budget = 5
        for t in range(5):
            for bt in range(4):
                acc = ACC + (bt * 5 + t) * 4
                a.v_mfma_f32_16x16x32_bf16(V(acc, 4), w2dst(s, t), V(b + 4 * bt, 4), V(acc, 4) if s else 0)
                n += 1
                if n % 4 == 2 and nissued < lim and budget:
                    hload(nissued); nissued += 1; budget -= 1
    assert nissued == 4 * NS
    stamp(a, 12)
    a.s_mul_i32(S(48), S(S_WAVE), 20 * 1024)
    a.v_add_u32(V(6), S(48), V(5))
    for bt in range(4):
        for t in range(5):
            a.ds_write_b128(V(6), V(ACC + (bt * 5 + t) * 4, 4), mods=f"offset:{(bt*5+t)*1024}")
    a.v_add_u32(V(7), S(46), V(5))
    a.v_add_u32(V(8), 40 * 1024, V(7))
    srd(a, 12, P_OUT, 0, 2048 * 640 * 2)
    a.v_mul_u32_u24(V(9), 1280, V(2))
    a.v_lshl_add_u32(V(9), V(3), 3, V(9))
    a.s_lshl_b32(S(48), S(S_RB2), 2)
    a.s_add_u32(S(48), S(48), S(S_WAVE))
    a.s_mul_i32(S(48), S(48), 16 * 1280)
    a.s_mul_i32(S(49), S(S_CT2), 160)
    a.s_add_u32(S(48), S(48), S(49))
    a.wait(lgkm=0)
    a.s_barrier()
    RD = 96
    rt = []
    for t in range(5):
        for w in range(4):
            x = a.ds_read_b128(V(RD + (t * 4 + w) * 4, 4), V(7 if w < 2 else 8), mods=f"offset:{(w%2)*20*1024 + t*1024}")
        rt.append(x)
    for t in range(5):
        a.wds(rt[t])
        r = RD + t * 16
        for hh in range(2):
            a.v_pk_add_f32(V(r + 2 * hh, 2), V(r + 2 * hh, 2), V(r + 4 + 2 * hh, 2))
            a.v_pk_add_f32(V(r + 8 + 2 * hh, 2), V(r + 8 + 2 * hh, 2), V(r + 12 + 2 * hh, 2))
        for hh in range(2):
            a.v_pk_add_f32(V(r + 2 * hh, 2), V(r + 2 * hh, 2), V(r + 8 + 2 * hh, 2))
        for hh in range(2):
            a.v_cvt_pk_bf16_f32(V(r + 4 + hh), V(r + 2 * hh), V(r + 2 * hh + 1))
        for hh in range(2):
            a.v_lshlrev_b32(V(r + 2 * hh), 16, V(r + 4 + hh))
            a.v_and_b32(V(r + 2 * hh + 1), "0xffff0000", V(r + 4 + hh))
            a.v_lshlrev_b32(V(r + 8 + 2 * hh), 16, V(HR + 2 * t + hh))
            a.v_and_b32(V(r + 8 + 2 * hh + 1), "0xffff0000", V(HR + 2 * t + hh))
        for hh in range(2):
            a.v_pk_add_f32(V(r + 2 * hh, 2), V(r + 2 * hh, 2), V(r + 8 + 2 * hh, 2))
        for hh in range(2):
            a.v_cvt_pk_bf16_f32(V(r + 4 + hh), V(r + 2 * hh), V(r + 2 * hh + 1))
        a.buffer_store_dwordx2(V(r + 4, 2), V(9), S(12, 4), S(48), mods=f"offen offset:{32*t}")


def gemm1_retry(a):
    a.label("L_G1RETRY")
    a.s_sub_u32(S(63), S(63), 1)
    a.s_cbranch_scc1("L_G1OK")
    if STAMPS:
        a.v_mov_b32(V(8), 4)
        a.v_mov_b32(V(9), 1)
        a.s_mov_b64("exec", 1)
        a.buffer_atomic_add(V(9), V(8), S(R_DBG, 4), 0, mods="offen sc1")
        a.s_mov_b64("exec", -1)
    a.wait(vm=0)
    a.s_branch("L_G1")


NSTAMP = 13


def gen():
    a = Asm()
    a.s_load_dwordx16(S(16, 16), S(0, 2), 0)
    a.s_load_dwordx8(S(32, 8), S(0, 2), 64)
    a.s_load_dwordx4(S(40, 4), S(0, 2), 96)
    a.s_load_dwordx2(S(44, 2), S(0, 2), 112)
    a.s_memrealtime(S(4, 2))
    if STAMPS:
        for i in range(1, NSTAMP):
            a.s_mov_b32(S(76 + 2 * i), 0)
    stamp(a, 0)
    a.s_cmp_ge_u32(S(2), 256)
    a.s_cbranch_scc1("L_END")
    a.v_lshrrev_b32(V(1), 6, V(0))
    a.v_readfirstlane_b32(S(S_WAVE), V(1))
    a.v_and_b32(V(1), 63, V(0))

    def common_setup():
        a.s_mov_b32(S(S_SPIN), SPIN_MAX)
        a.s_getreg_b32(S(S_XCC), "hwreg(HW_REG_XCC_ID, 0, 4)")
        srd(a, R_DBG, P_DBG, 0, 256)
        srd(a, R_SY, P_WS, SY_OFF, SY_SZ)

    a.s_cmp_lt_u32(S(2), 160)
    a.s_cbranch_scc1("L_CONV")
    a.s_cmp_lg_u32(S(S_WAVE), 3)
    a.s_cbranch_scc1("L_NOCODE")
    code_prefetch(a)
    a.label("L_NOCODE")
    a.nvm = 0
    xt = aux_first(a)
    nvm_aux = a.nvm
    a.s_branch("L_AUX")
    a.label("L_CONV")
    a.nvm = 0
    a.wait(lgkm=0)
    ktk = conv_first(a)
    common_setup()
    a.s_lshl_b32(S(6), S(S_WAVE), 3)
    a.s_add_u32(S(6), S(6), S(2))
    a.s_cmp_ge_u32(S(6), 8)
    a.s_cbranch_scc1("L_NOTAG")
    a.s_or_b32(S(4), S(4), 1)
    a.v_mov_b32(V(24), S(4))
    a.v_mov_b32(V(25), 0)
    a.v_mov_b32(V(26), 0)
    a.s_mov_b64("exec", 1)
    a.buffer_atomic_cmpswap(V(24, 2), V(26), S(R_DBG, 4), 0, mods="offen sc1")
    a.s_mov_b64("exec", -1)
    a.nvm -= 1
    a.label("L_NOTAG")
    conv_role(a, ktk)
    a.s_branch("L_COMMON")
    if POISON:
        gemm1_retry(a)
    a.label("L_AUX")
    a.nvm = nvm_aux
    common_setup()
    aux_role(a, xt)
    a.label("L_COMMON")
    gemms(a)
    if STAMPS:
        a.wait(vm=0)
        a.s_memrealtime(S(4, 2))
        a.wait(lgkm=0)
        srd(a, 8, P_WS, ST_OFF, 0x100000)
        a.s_lshl_b32(S(6), S(2), 2)
        a.s_add_u32(S(6), S(6), S(S_WAVE))
        a.s_lshl_b32(S(6), S(6), 6)
        for i in range(NSTAMP):
            a.v_mov_b32(V(8 + i), S(76 + 2 * i))
        a.v_mov_b32(V(8 + NSTAMP), S(4))
        a.v_mov_b32(V(2), 0)
        a.s_mov_b64("exec", 1)
        for q in range(4):
            a.buffer_store_dwordx4(V(8 + 4 * q, 4), V(2), S(8, 4), S(6), mods=f"offen offset:{16*q}")
    a.label("L_END")
    a.s_endpgm()
    return kernel_text(NAME + "_kernel", a, 256, nagpr=256, nsgpr=102)


def main(path):
    ref = open(f"cdna_kernels/{NAME}.s.ref").read().splitlines()
    head = [l for l in ref if l.startswith(";") and "@launch" not in l]
    out = "\n".join(head) + "\n"
    out += f"; @launch grid=(256,1,1) block=(256,1,1) lds={LDS_SZ}\n"
    out += '.amdgcn_target "amdgcn-amd-amdhsa--gfx950"\n'
    out += gen()
    open(path, "w").write(out)


if __name__ == "__main__":
    main(sys.argv[1] if len(sys.argv) > 1 else f"cdna_kernels/{NAME}.s")
```

```python
import sys, struct, os
sys.path.insert(0, "dev")
from asmlib import *

NAME = "sequential_preLN__ssm_conv_s4__dense_activation_relu__prompt"
STAMPS = os.environ.get("STAMPS", "0") == "1"

SY_OFF, SY_SZ = 0x0, 0x18000
FRP, FH, FH1 = 0x4000, 0x8000, 0x10000
W2P_OFF, W2P_SZ = 0x100000, 8 * 54 * 5 * 1024
H4_OFF, H4_SZ = 0x700000, 64 * 40960
H1_OFF, H1_SZ = 0xA00000, 64 * 110592
ST_OFF = 0x2000000

P_U, P_ARE, P_AIM, P_BRE, P_BIM, P_CRE, P_CIM, P_LDT = 16, 18, 20, 22, 24, 26, 28, 30
P_DSK, P_BX, P_W1, P_W2 = 32, 34, 36, 38
P_OUT, P_DBG, P_WS = 40, 42, 44
S_WAVE = 3
R_SY, R_DBG = 64, 68
S_NONCE, S_SPIN, S_M0W, S_D2 = 72, 73, 74, 75
R_W1 = 52
S_XCC = 0
S_MIS = 18
MODE_L = 147456
VW1 = 248
SPIN_MAX = 400000

KS_SZ = 23296
WT_L, WT_P = 93184, 8256
UB_L = 126208
CSP_L, CS_L = 144640, 148480
XH_L, XH_P = 147200, 4160
LDS_SZ = 163840
Q_EARLY = 21
NCODE = 4
W2Q = eval(os.environ.get("W2Q", "[(3, 10), (4, 10), (5, 10)]"))
POISON = os.environ.get("POISON", "1") == "1"
GATHER = eval(os.environ.get("GATHER", "{100: [0,1,2,3,4], 20: [5], 26: [6], 31: [7]}"))
HLD = os.environ.get("HLD", "sc1")
LOG2E = 1.4426950408889634


def f32(x):
    return "0x%08x" % struct.unpack("<I", struct.pack("<f", x))[0]


def stamp(a, i):
    if STAMPS:
        if os.environ.get("STAMPCLK", "0") == "1":
            a.s_memtime(S(76 + 2 * i, 2))
        else:
            a.s_memrealtime(S(76 + 2 * i, 2))


def srd(a, d, p, off, size):
    if off == 0:
        a.s_mov_b32(S(d), S(p))
        a.s_mov_b32(S(d + 1), S(p + 1))
    else:
        a.s_add_u32(S(d), S(p), off if isinstance(off, str) else hex(off))
        a.s_addc_u32(S(d + 1), S(p + 1), 0)
    a.s_mov_b32(S(d + 2), hex(size))
    a.s_mov_b32(S(d + 3), "0x20000")


def srd2(a, d, p, off, soff, size):
    a.s_add_u32(S(d), S(p), soff)
    a.s_addc_u32(S(d + 1), S(p + 1), 0)
    a.s_add_u32(S(d), S(d), hex(off))
    a.s_addc_u32(S(d + 1), S(d + 1), 0)
    a.s_mov_b32(S(d + 2), hex(size))
    a.s_mov_b32(S(d + 3), "0x20000")


def cmuln(a, dsts, xs, ws, tmps):
    n = len(dsts)
    for i in range(n):
        a.v_pk_mul_f32(V(tmps[i], 2), V(xs[i], 2), V(ws[i], 2), mods="op_sel:[0,0] op_sel_hi:[1,0]")
    for i in range(n):
        a.v_pk_fma_f32(V(dsts[i], 2), V(xs[i], 2), V(ws[i], 2), V(tmps[i], 2), mods="op_sel:[1,1,0] op_sel_hi:[0,1,1] neg_lo:[1,0,0]")


def rnd2(a, x0, x1, t):
    a.v_cvt_pk_bf16_f32(V(t), V(x0), V(x1))
    a.v_lshlrev_b32(V(x0), 16, V(t))
    a.v_and_b32(V(x1), "0xffff0000", V(t))


def ln_stats2(a, s1, s2, rs, nm, t0, t1, n):
    inv = f32(1.0 / n)
    for i in range(2):
        a.v_mul_f32(V(s1[i]), inv, V(s1[i]))
    for i in range(2):
        a.v_mul_f32(V(s2[i]), inv, V(s2[i]))
    for i in range(2):
        a.v_fma_f32(V(s2[i]), "-" + V(s1[i]), V(s1[i]), V(s2[i]))
    for i in range(2):
        a.v_max_f32(V(s2[i]), 0, V(s2[i]))
    rnd2(a, s2[0], s2[1], t0)
    rnd2(a, s1[0], s1[1], t1)
    for i in range(2):
        a.v_add_f32(V(s2[i]), f32(1e-5), V(s2[i]))
    rnd2(a, s2[0], s2[1], t0)
    for i in range(2):
        a.v_sqrt_f32(V(s2[i]), V(s2[i]))
    rnd2(a, s2[0], s2[1], t0)
    for i in range(2):
        a.v_rcp_f32(V(rs[i]), V(s2[i]))
    for i in range(2):
        a.v_mul_f32(V(nm[i]), "-" + V(s1[i]), V(rs[i]))


_lab = [0]


def newlab(p):
    _lab[0] += 1
    return f"L{p}_{_lab[0]}"


def spin_branch(a, loop, done_fallthrough=True):
    out = newlab("to")
    a.s_sub_u32(S(S_SPIN), S(S_SPIN), 1)
    a.s_cmp_lt_i32(S(S_SPIN), 0)
    a.s_cbranch_scc1(out)
    a.s_cbranch_vccnz(loop)
    a.label(out)


def flag_loads(a, voff, base, count, dst):
    n = (count + 63) // 64
    t = None
    for q in range(n):
        t = a.buffer_load_dwordx2(V(dst + 2 * q, 2), V(voff + q), S(R_SY, 4), base, mods="offen sc1")
    return t


def xcc_mismatch(a, voff, count, dst, sacc):
    n = (count + 63) // 64
    a.s_and_b32(S(6), S(2), 7)
    for q in range(n):
        a.v_bfe_u32(V(dst + 2 * q), V(voff + q), 7, 3)
        a.v_cmp_eq_u32(S(48, 2), S(6), V(dst + 2 * q))
        a.v_cmp_ne_u32("vcc", S(S_XCC), V(dst + 2 * q + 1))
        a.s_and_b64(S(48, 2), S(48, 2), "vcc")
        a.s_or_b64(S(sacc, 2), S(sacc, 2), S(48, 2))


def flag_addr(a, voff, count, vlane):
    n = (count + 63) // 64
    for q in range(n):
        if q:
            a.v_add_u32(V(voff + q), 64 * q, V(vlane))
            a.v_min_u32(V(voff + q), count - 1, V(voff + q))
        else:
            a.v_min_u32(V(voff), count - 1, V(vlane))
        a.v_lshlrev_b32(V(voff + q), 7, V(voff + q))


def flag_check(a, dst, count):
    n = (count + 63) // 64
    for q in range(n):
        a.v_xor_b32(V(dst + 2 * q), S(S_NONCE), V(dst + 2 * q))
    for q in range(1, n):
        a.v_or_b32(V(dst), V(dst), V(dst + 2 * q))
    a.v_cmp_ne_u32("vcc", 0, V(dst))


def poll_flags(a, voff, base, count, dst, sleep=0):
    lp = newlab("poll")
    a.label(lp)
    flag_loads(a, voff, base, count, dst)
    a.wait(vm=0)
    flag_check(a, dst, count)
    if sleep:
        a.s_sleep(sleep)
    spin_branch(a, lp)


def set_flag(a, soff, vt, sc="sc1"):
    skip = newlab("nf")
    a.s_cmp_lg_u32(S(S_WAVE), 0)
    a.s_cbranch_scc1(skip)
    a.v_mov_b32(V(vt + 2), 0)
    a.v_mov_b32(V(vt), S(S_NONCE))
    a.v_mov_b32(V(vt + 1), S(S_XCC))
    a.s_mov_b64("exec", 1)
    a.buffer_store_dwordx2(V(vt, 2), V(vt + 2), S(R_SY, 4), soff, mods=f"offen {sc}")
    a.s_mov_b64("exec", -1)
    a.label(skip)


def kgen_loads(a, s_d):
    VL = 1
    PR = 8
    a.s_lshl_b32(S(5), S(s_d), 8)
    a.v_lshl_add_u32(V(2), V(VL), 2, S(5))
    a.s_lshl_b32(S(5), S(s_d), 1)
    a.v_mov_b32(V(3), S(5))
    t_ldt = a.global_load_ushort(V(PR + 6), V(3), S(P_LDT, 2))
    for i, p in enumerate((P_ARE, P_AIM, P_BRE, P_BIM, P_CRE, P_CIM)):
        t_par = a.global_load_dword(V(PR + i), V(2), S(p, 2))
    t_dsk = a.global_load_ushort(V(PR + 7), V(3), S(P_DSK, 2))
    return t_ldt, t_dsk


def kgen(a, tks, s_lds, s_wt, hook):
    VL = 1
    PR = 8
    t_ldt, t_dsk = tks
    hook(-1)
    VW, VRA, VRB = 4, 5, 6
    a.v_lshl_add_u32(V(VW), V(VL), 3, S(s_lds))
    a.v_and_b32(V(16), 15, V(VL))
    a.v_lshrrev_b32(V(17), 4, V(VL))
    a.v_and_b32(V(18), 1, V(17))
    a.v_lshlrev_b32(V(18), 8, V(18))
    a.v_lshrrev_b32(V(19), 1, V(17))
    a.v_lshl_add_u32(V(18), V(19), 7, V(18))
    a.v_add_u32(V(18), S(s_lds), V(18))
    a.v_mul_u32_u24(V(19), 528, V(16))
    a.v_add_u32(V(VRA), V(18), V(19))
    a.v_min_u32(V(19), 8, V(16))
    a.v_mul_u32_u24(V(19), 528, V(19))
    a.v_add_u32(V(VRB), V(18), V(19))
    a.s_mov_b32(S(50), f32(LOG2E))
    a.s_mov_b32(S(51), f32(LOG2E - struct.unpack("<f", struct.pack("<f", LOG2E))[0]))
    a.s_mov_b32(S(52), f32(16.0))
    a.s_mov_b32(S(53), f32(16.0))
    a.s_mov_b32(S(54), f32(512.0))
    a.s_mov_b32(S(55), f32(512.0))
    TA1, TA2, TA3, TB3, TA4, TB4 = 224, 225, 226, 227, 228, 229
    TABO = 0
    a.s_add_u32(S(56), S(s_lds), TABO + 16)
    a.v_lshlrev_b32(V(TA1), 6, V(16))
    a.v_lshl_add_u32(V(TA1), V(17), 4, V(TA1))
    a.v_lshrrev_b32(V(TA2), 1, V(TA1))
    a.v_add_u32(V(TA1), S(56), V(TA1))
    a.v_add_u32(V(TA2), S(56), V(TA2))
    a.v_add_u32(V(TA2), 1024, V(TA2))
    a.v_cmp_eq_u32("vcc", 0, V(17))
    a.v_mov_b32(V(30), 8)
    a.v_mov_b32(V(31), 256)
    a.v_cndmask_b32(V(30), V(30), 16, "vcc")
    a.v_cndmask_b32(V(31), V(31), 8, "vcc")
    a.v_lshlrev_b32(V(TA3), 9, V(17))
    a.v_mad_u32_u24(V(TA3), V(30), V(16), V(TA3))
    a.v_add_u32(V(TA3), S(56), V(TA3))
    a.v_add_u32(V(TB3), V(TA3), V(31))
    a.v_lshl_add_u32(V(TA4), V(30), 4, V(TA3))
    a.v_add_u32(V(TB4), V(TA4), V(31))
    DT = 20
    a.wvm(t_ldt)
    a.v_lshlrev_b32(V(21), 16, V(PR + 6))
    a.v_mul_f32(V(22), S(50), V(21))
    a.v_fma_f32(V(23), V(21), S(50), "-" + V(22))
    a.v_fma_f32(V(23), V(21), S(51), V(23))
    a.v_exp_f32(V(22), V(22))
    a.v_mul_f32(V(23), f32(0.6931471805599453), V(23))
    a.v_fma_f32(V(22), V(22), V(23), V(22))
    a.v_cvt_pk_bf16_f32(V(22), V(22), V(22))
    a.v_lshlrev_b32(V(DT), 16, V(22))
    a.v_mul_f32(V(22), S(50), V(DT))
    a.v_mul_f32(V(23), "0.15915494", V(DT))
    Z = [24, 26]; B = [28, 30]; C = [32, 34]
    a.wvm(t_dsk)
    stamp(a, 1)
    hook(100)
    for base, pi in ((Z, 0), (B, 2), (C, 4)):
        for comp in range(2):
            a.v_lshlrev_b32(V(base[0] + comp), 16, V(PR + pi + comp))
            a.v_and_b32(V(base[1] + comp), "0xffff0000", V(PR + pi + comp))
    for s in range(2):
        a.v_pk_mul_f32(V(Z[s], 2), V(Z[s], 2), V(22, 2))
    for s in range(2):
        a.v_pk_mul_f32(V(B[s], 2), V(B[s], 2), V(DT, 2), mods="op_sel_hi:[1,0]")
    T = [36, 38]
    T2 = [216, 218]
    XC = [40, 42]
    W1 = [44, 46]; W16 = [48, 50]; W512 = [52, 54]
    ARG = [56, 58, 60, 62, 64, 66]
    EX = [68, 70, 72, 74, 76, 78]
    dsts = [W1[0], W1[1], W16[0], W16[1], W512[0], W512[1]]
    for s in range(2):
        a.v_pk_mul_f32(V(ARG[2 + s], 2), V(Z[s], 2), S(52, 2))
        a.v_pk_mul_f32(V(ARG[4 + s], 2), V(Z[s], 2), S(54, 2))
    cmuln(a, XC, C, B, T)
    srcs = [Z[0], Z[1], ARG[2], ARG[3], ARG[4], ARG[5]]
    for i in range(6):
        a.v_fract_f32(V(ARG[i] + 1), V(srcs[i] + 1))
    for s in range(2):
        a.v_xor_b32(V(XC[s] + 1), "0x80000000", V(XC[s] + 1))
    for i in range(6):
        a.v_exp_f32(V(EX[i]), V(srcs[i]))
        a.v_cos_f32(V(dsts[i]), V(ARG[i] + 1))
        a.v_sin_f32(V(dsts[i] + 1), V(ARG[i] + 1))
    for i in range(6):
        neg = " neg_hi:[1,0]" if i in (2, 3) else ""
        a.v_pk_mul_f32(V(dsts[i], 2), V(dsts[i], 2), V(EX[i], 2), mods="op_sel_hi:[1,0]" + neg)
    PK = [80, 82, 84, 86]
    npk = [0]

    def put_rows(rows):
        ps = []
        for row, r in rows:
            p = PK[npk[0] % 4]
            npk[0] += 1
            ps.append(p)
            a.v_cvt_pk_bf16_f32(V(p), V(r[0]), V(r[0] + 1))
            a.v_cvt_pk_bf16_f32(V(p + 1), V(r[1]), V(r[1] + 1))
        for (row, r), p in zip(rows, ps):
            a.ds_write_b64(V(VW), V(p, 2), mods=f"offset:{row*528}")

    XR0 = 25
    a.v_mov_b32(V(220), "0x3f80")
    a.v_mov_b32(V(221), "0x3f80")
    a.ds_write_b64(V(VW), V(220, 2), mods="offset:0")
    E4 = [56, 58]; E8 = [60, 62]; E12 = [64, 66]; CUR = [68, 70]
    E1024 = [72, 74]; E1536 = [76, 78]
    yprog = [(1, W1, None, None)]
    cur = W1
    for j in range(2, 16):
        dst = {4: E4, 8: E8, 12: E12}.get(j, CUR)
        yprog.append((j, dst, cur, W1))
        cur = dst
    yprog += [(16, W512, None, None), (17, CUR, W512, E4), (18, CUR, W512, E8), (19, CUR, W512, E12),
              (20, E1024, W512, W512), (21, CUR, E1024, E8), (22, E1536, E1024, W512), (23, CUR, E1536, E8), (24, CUR, E1024, E1024)]
    YA, YB, XF, XF2 = 88, 120, 152, 184
    ACC = 8
    reads = []
    for i in range(32):
        ds_, xs_, ws_, ts_, rows = [], [], [], [], []
        if i:
            ds_ += XC; xs_ += XC; ws_ += W16; ts_ += T
        rows.append((XR0 + i if i < 16 else i - 16, XC))
        if yprog:
            row, dst, x, w = yprog.pop(0)
            if x is not None:
                ds_ += dst; xs_ += x; ws_ += w; ts_ += T2
            rows.append((row, dst))
        cmuln(a, ds_, xs_, ws_, ts_)
        put_rows(rows)
        hook(i)
        if i == 14:
            for m in range(4):
                a.ds_read_b128(V(YA + 4 * m, 4), V(VRA), mods=f"offset:{16*m}")
        if i == 15:
            for m in range(4, 8):
                a.ds_read_b128(V(YA + 4 * m, 4), V(VRA), mods=f"offset:{16*m}")
        if i == 16:
            reads += [(XF + 4 * m, VRA, XR0 * 528 + 16 * m) for m in range(8)]
        if i == 23:
            reads += [(YB + 4 * m, VRB, 16 * 528 + 16 * m) for m in range(8)]
        for _ in range(2):
            if reads:
                d, ad, off = reads.pop(0)
                a.ds_read_b128(V(d, 4), V(ad), mods=f"offset:{off}")
    assert not reads and not yprog
    t_pre = a.nds
    tk = []
    for m in range(8):
        tk.append(a.ds_read_b128(V(XF2 + 4 * m, 4), V(VRA), mods=f"offset:{16*m}"))
    stamp(a, 2)
    a.v_lshlrev_b32(V(32), 16, V(PR + 7))
    a.v_cmp_eq_u32("vcc", 0, V(VL))
    a.v_cndmask_b32(V(32), 0, V(32), "vcc")
    a.v_mov_b32(V(33), 0)
    a.v_mov_b32(V(34), S(56))
    a.wds(t_pre)
    for m in range(8):
        a.v_mfma_f32_16x16x32_bf16(V(ACC, 4), V(YA + 4 * m, 4), V(XF + 4 * m, 4), V(ACC, 4) if m else 0)
        a.v_mfma_f32_16x16x32_bf16(V(ACC + 8, 4), V(YB + 4 * m, 4), V(XF + 4 * m, 4), V(ACC + 8, 4) if m else 0)
    a.wait(lgkm=0)
    for m in range(8):
        a.v_mfma_f32_16x16x32_bf16(V(ACC + 4, 4), V(YA + 4 * m, 4), V(XF2 + 4 * m, 4), V(ACC + 4, 4) if m else 0)
        a.v_mfma_f32_16x16x32_bf16(V(ACC + 12, 4), V(YB + 4 * m, 4), V(XF2 + 4 * m, 4), V(ACC + 12, 4) if m else 0)
        if m == 4:
            a.v_add_f32(V(ACC), V(ACC), V(32))
            a.v_subrev_u32(V(38), 4, V(34))
            a.ds_write_b32(V(38), V(33))
            a.ds_write_b128(V(TA1), V(ACC, 4))
            a.ds_write_b64(V(TA3), V(ACC + 8, 2), mods=f"offset:{384*4}")
            a.ds_write_b64(V(TB3), V(ACC + 10, 2), mods=f"offset:{384*4}")
    a.v_lshl_add_u32(V(35), V(VL), 4, S(56))
    a.v_lshl_add_u32(V(36), V(VL), 3, S(56))
    a.v_add_u32(V(37), 2048, V(36))
    a.v_subrev_u32(V(38), 4, V(35))
    a.v_lshl_add_u32(V(60), V(VL), 4, S(s_wt))
    a.v_lshl_add_u32(V(61), V(VL), 5, S(s_wt))
    a.v_lshl_add_u32(V(62), V(VL), 6, S(s_wt))
    R0, R0P, R1, R1P, R2, R3 = 40, 44, 48, 45, 52, 56
    a.ds_read_b128(V(R0, 4), V(35))
    t0 = a.ds_read_b32(V(R0P), V(38))
    a.ds_write2_b32(V(TA2), V(ACC + 4), V(ACC + 6), mods="offset0:0 offset1:1")
    a.ds_write_b64(V(TA4), V(ACC + 12, 2), mods=f"offset:{384*4}")
    a.ds_write_b64(V(TB4), V(ACC + 14, 2), mods=f"offset:{384*4}")
    a.ds_read2_b64(V(R1, 4), V(36), mods="offset0:128 offset1:129")
    t1 = a.ds_read_b32(V(R1P), V(34), mods=f"offset:{255*4}")
    t2 = a.ds_read2_b64(V(R2, 4), V(36), mods="offset0:192 offset1:193")
    t3 = a.ds_read2_b64(V(R3, 4), V(37), mods="offset0:0 offset1:1")

    def emit_out(region, q, vreg):
        voff = (60, 60, 61, 62)[region]
        imm = 64 + (0, 1024, 2048, 4096)[region] + 16 * q
        a.ds_write_b128(V(voff), V(vreg, 4), mods=f"offset:{imm}")

    OUT = 88
    cv = lambda d, x, y: a.v_cvt_pk_bf16_f32(V(d), V(x), V(y))
    a.wds(t0)
    cv(OUT, R0, R0P); cv(OUT + 1, R0 + 1, R0); cv(OUT + 2, R0 + 2, R0 + 1); cv(OUT + 3, R0 + 3, R0 + 2)
    emit_out(0, 0, OUT)
    a.wds(t1)
    a.v_cndmask_b32(V(R1P), V(R1), V(R1P), "vcc")
    o = OUT + 4
    cv(o + 1, R1, R1); cv(o + 2, R1 + 1, R1); cv(o + 3, R1 + 2, R1 + 1); cv(o, R1, R1P)
    emit_out(1, 0, o)
    a.wds(t2)
    A_, B_, C_ = R2, R2 + 1, R2 + 2
    o = OUT + 8
    for i, (x, y) in enumerate([(A_, A_), (A_, A_), (A_, A_), (B_, A_), (B_, B_), (B_, B_), (C_, B_), (C_, C_)]):
        cv(o + i, x, y)
    emit_out(2, 0, o); emit_out(2, 1, o + 4)
    a.wds(t3)
    A_, B_, C_ = R3, R3 + 1, R3 + 2
    o = OUT + 16
    seq = [(A_, A_)] * 5 + [(B_, A_)] + [(B_, B_)] * 6 + [(C_, B_)] + [(C_, C_)] * 3
    for i, (x, y) in enumerate(seq):
        cv(o + i, x, y)
        if i % 4 == 3:
            emit_out(3, i // 4, o + i - 3)


def w1_addr(a, t0, t1):
    a.s_mov_b32(S(48), 3456 - 224)
    for q in range(7):
        a.v_add_u32(V(t0), 256 * q, V(0))
        a.v_mul_u32_u24(V(t1), 4682, V(t0))
        a.v_lshrrev_b32(V(t1), 16, V(t1))
        a.v_lshlrev_b32(V(t0), 4, V(t0))
        a.v_mad_u32_u24(V(VW1 + q), V(t1), S(48), V(t0))


def w1_srd(a):
    a.s_lshr_b32(S(6), S(2), 4)
    a.s_mul_i32(S(6), S(6), 216)
    a.s_and_b32(S(S_D2), S(6), 15)
    a.s_sub_u32(S(6), S(6), S(S_D2))
    a.s_add_u32(S(R_W1), S(P_W1), S(6))
    a.s_addc_u32(S(R_W1 + 1), S(P_W1 + 1), 0)
    a.s_sub_u32(S(R_W1 + 2), 640 * 3456, S(6))
    a.s_mov_b32(S(R_W1 + 3), "0x20000")
    a.s_lshl_b32(S(S_M0W), S(S_WAVE), 10)


def w1_dma(a, q, perm=None):
    g = q // 7
    if perm is None or perm[g] == g:
        a.s_add_u32("m0", S(S_M0W), 4096 * q)
        a.s_mov_b32(S(63), g * 128 * 3456)
    else:
        if q % 7 == 0:
            a.s_bitcmp1_b32(S(2), 3)
            a.s_cselect_b32(S(50), perm[g], g)
            a.s_mul_i32(S(51), S(50), 7 * 4096)
            a.s_add_u32(S(51), S(51), S(S_M0W))
            a.s_mul_i32(S(50), S(50), 128 * 3456)
        a.s_add_u32("m0", S(51), 4096 * (q % 7))
        a.s_mov_b32(S(63), S(50))
    return a.buffer_load_dwordx4(V(VW1 + q % 7), S(R_W1, 4), S(63), mods="offen lds")


def w2_quarter_setup(a, vt):
    srd(a, 24, P_WS, W2P_OFF, W2P_SZ)
    a.s_lshr_b32(S(6), S(2), 3)
    a.s_mul_i32(S(6), S(6), 540 * 128)
    a.v_min_u32(V(vt), 179, V(0))
    a.v_lshl_add_u32(V(vt), V(vt), 7, S(6))


def w2_quarter_load(a, vt, i, dst):
    a.s_mov_b32(S(63), i * 180 * 128)
    a.buffer_load_dword(V(dst), V(vt), S(24, 4), S(63), mods="offen sc1")


def conv_first(a):
    S_DG = 60
    a.s_and_b32(S(6), S(2), 7)
    a.s_mul_i32(S(6), S(6), 20)
    a.s_lshr_b32(S(7), S(2), 3)
    a.s_add_u32(S(S_DG), S(6), S(7))
    a.s_lshl_b32(S(6), S(S_DG), 2)
    a.s_add_u32(S(6), S(6), S(S_WAVE))
    return kgen_loads(a, 6)


def h_store_addr(a, vj, vg, voff):
    a.v_mul_u32_u24(V(voff), 40960, V(vg))
    a.v_lshl_add_u32(V(voff), V(vj), 4, V(voff))
    srd(a, 12, P_WS, H4_OFF, H4_SZ)
    a.s_mul_i32(S(58), S(S_WAVE), 16 * 40960)
    a.s_lshl_b32(S(57), S(60), 8)
    a.s_add_u32(S(58), S(58), S(57))


def conv_role(a, ktk):
    VL = 1
    S_DG, S_KS, S_WT = 60, 61, 59
    a.s_mul_i32(S(S_KS), S(S_WAVE), KS_SZ)
    a.s_mul_i32(S(S_WT), S(S_WAVE), WT_P)
    a.s_add_u32(S(S_WT), S(S_WT), WT_L)
    XR = 232
    tk = {}

    def hook(i):
        if i < 0:
            srd(a, 8, P_U, 0, 2048 * 640 * 2)
            a.v_mul_u32_u24(V(7), 10240, V(0))
            a.s_lshl_b32(S(6), S(S_DG), 3)
            a.s_add_u32(S(7), S(6), 5120)
            w1_addr(a, 24, 25)
        else:
            for e in GATHER.get(i, []):
                tk["x"] = a.buffer_load_dwordx2(V(XR + 2 * e, 2), V(7), S(8, 4), S(6 if e < 4 else 7), mods=f"offen offset:{(e%4)*1280}")

    kgen(a, ktk, S_KS, S_WT, hook)
    stamp(a, 3)
    SR = 8
    a.v_lshlrev_b32(V(2), 6, V(0))
    a.v_mov_b32(V(3), 0)

    def stat_loads():
        for i in range(4):
            a.buffer_load_dwordx4(V(SR + 4 * i, 4), V(2), S(R_SY, 4), 0, mods=f"offen offset:{16*i} sc1")
        a.buffer_load_dword(V(24), V(3), S(R_DBG, 4), 0, mods="offen sc1")

    stat_loads()
    a.v_mov_b32(V(25), 0)
    a.s_mul_i32(S(5), S(S_WAVE), 4608)
    a.s_add_u32(S(5), S(5), UB_L)
    a.v_lshl_add_u32(V(26), V(VL), 2, S(5))
    a.ds_write_b32(V(26), V(25))
    a.ds_write_b32(V(26), V(25), mods="offset:2304")
    a.v_and_b32(V(27), 15, V(VL))
    a.v_lshrrev_b32(V(28), 4, V(VL))
    a.v_lshl_add_u32(V(29), V(27), 2, S(S_WT))
    a.ds_write_b32(V(29), V(25))
    VA, VBQ = 32, 40
    a.v_lshl_add_u32(V(VA), V(VL), 2, S(S_WT))
    for c in range(1, 8):
        a.v_add_u32(V(VA + c), 1024 * c, V(VA))
    a.v_sub_u32(V(VBQ), V(27), V(28))
    a.v_add_u32(V(VBQ), 3, V(VBQ))
    a.v_lshl_add_u32(V(VBQ), V(VBQ), 4, S(5))
    a.s_mov_b32(S(46), "0x05040100")
    a.s_mov_b32(S(47), "0x07060302")
    XS, F = 48, 64
    a.wvm(tk["x"])
    for c in range(4):
        for k in range(4):
            a.v_perm_b32(V(XS + 4 * c + k), V(XR + 2 * (2 * k + 1) + (c >> 1)), V(XR + 2 * (2 * k) + (c >> 1)), S(46 + (c & 1)))
    a.v_lshlrev_b32(V(41), 4, V(0))
    a.v_add_u32(V(41), XH_L, V(41))
    for c in range(4):
        a.ds_write_b128(V(41), V(XS + 4 * c, 4), mods=f"offset:{c*XH_P}")
    for i in range(16):
        a.v_lshlrev_b32(V(F + 2 * i), 16, V(XS + i))
        a.v_and_b32(V(F + 2 * i + 1), "0xffff0000", V(XS + i))
    a.v_and_b32(V(42), 1, V(0))
    a.v_mul_u32_u24(V(42), 2304, V(42))
    a.v_lshrrev_b32(V(43), 1, V(0))
    a.v_lshl_add_u32(V(42), V(43), 4, V(42))
    a.v_add_u32(V(42), UB_L + 256, V(42))
    h_store_addr(a, 27, 28, 255)
    for q in range(4):
        a.v_mov_b32(V(212 + q), -1)
    lp, first = newlab("st"), newlab("stf")
    a.s_branch(first)
    a.label(lp)
    stat_loads()
    a.label(first)
    a.wait(vm=0)
    a.v_readfirstlane_b32(S(S_NONCE), V(24))
    a.v_min3_u32(V(25), V(SR + 1), V(SR + 3), V(SR + 5))
    a.v_max3_u32(V(26), V(SR + 1), V(SR + 3), V(SR + 5))
    a.v_min3_u32(V(25), V(25), V(SR + 7), V(SR + 9))
    a.v_max3_u32(V(26), V(26), V(SR + 7), V(SR + 9))
    a.v_min3_u32(V(25), V(25), V(SR + 11), V(SR + 13))
    a.v_max3_u32(V(26), V(26), V(SR + 11), V(SR + 13))
    a.v_min3_u32(V(25), V(25), V(SR + 15), V(24))
    a.v_max3_u32(V(26), V(26), V(SR + 15), V(24))
    a.v_max_u32(V(26), 1, V(26))
    a.v_cmp_ne_u32("vcc", V(25), V(26))
    spin_branch(a, lp)
    stamp(a, 4)
    if POISON:
        for q in range(4):
            a.s_add_u32(S(57), S(58), 4 * q * 40960)
            t_poi = a.buffer_store_dwordx4(V(212, 4), V(255), S(12, 4), S(57), mods="offen sc1")
    RS, NM = 96, 104
    for e in range(8):
        a.v_and_b32(V(RS + e), "0xffff0000", V(SR + 2 * e))
        a.v_lshlrev_b32(V(NM + e), 16, V(SR + 2 * e))
    for e in range(8):
        a.v_rcp_f32(V(RS + e), V(RS + e))
    for k in range(4):
        a.v_pk_mul_f32(V(NM + 2 * k, 2), V(NM + 2 * k, 2), V(RS + 2 * k, 2), mods="neg_lo:[1,0] neg_hi:[1,0]")
    for c in range(4):
        for k in range(4):
            f = F + 2 * (4 * c + k)
            a.v_pk_fma_f32(V(f, 2), V(f, 2), V(RS + 2 * k, 2), V(NM + 2 * k, 2))
        for k in range(4):
            f = F + 2 * (4 * c + k)
            a.v_cvt_pk_bf16_f32(V(XS + 4 * c + k), V(f), V(f + 1))
        a.ds_write_b128(V(42), V(XS + 4 * c, 4), mods=f"offset:{c*4608}")
    OPS = [48, 112]
    ACC = 216
    XQ, XFL = 8, 176
    subs = [(g, h) for g in range(4) for h in range(2)]

    def loadsA(si):
        g, h = subs[si]
        base = OPS[si % 2]
        out = []
        for c in range(8):
            o = 8 + 64 * g + 8 * h
            out.append(("ds_read2_b32", (V(base + 4 * c, 2), V(VA + c)), f"offset0:{o} offset1:{o-2}"))
            out.append(("ds_read2_b32", (V(base + 4 * c + 2, 2), V(VA + c)), f"offset0:{o-4} offset1:{o-6}"))
        return out

    def loadsB(si):
        g, h = subs[si]
        base = OPS[si % 2]
        par = 1 - h
        return [("ds_read_b128", (V(base + 32 + 4 * c, 4), V(VBQ)), f"offset:{par*2304 + (13 + 16*c - 4*g)*16}") for c in range(8)]

    a.s_mul_i32(S(6), S(S_WAVE), XH_P)
    a.s_add_u32(S(6), S(6), XH_L)
    a.v_lshlrev_b32(V(44), 5, V(27))
    a.v_lshl_add_u32(V(44), V(28), 3, V(44))
    a.v_add_u32(V(44), S(6), V(44))
    flag_addr(a, 45, 96, VL)
    w1_srd(a)
    w2_quarter_setup(a, 47)
    a.wait(lgkm=0)
    a.s_barrier()
    stamp(a, 5)
    for op, args, mods in loadsB(0) + loadsA(0):
        a.I(op, *args, mods=mods)
    started = set()
    t_rp = None
    nq = 0
    for si in range(8):
        base = OPS[si % 2]
        nxt = []
        if si < 7:
            la, lb = loadsA(si + 1), loadsB(si + 1)
            for c in range(8):
                nxt += [la[2 * c], la[2 * c + 1], lb[c]]
        if si == 0:
            nxt += [("ds_read_b64", (V(XQ + 2 * T, 2), V(44)), f"offset:{512*T}") for T in range(8)]
        extra = []
        if si == 1:
            for i in range(16):
                extra.append(("v_lshlrev_b32", (V(XFL + 2 * i), 16, V(XQ + i)), ""))
                extra.append(("v_and_b32", (V(XFL + 2 * i + 1), "0xffff0000", V(XQ + i)), ""))
        a.wait(lgkm=0)
        if si == 7:
            t_rp = flag_loads(a, 45, S(62), 96, 208)
        if si == 4:
            a.s_mov_b32(S(62), FRP)
        order = [(c, gp) for c in range(8) for gp in range(8 - c)]
        for n, (c, gp) in enumerate(order):
            T = c + gp
            a.v_mfma_f32_16x16x32_bf16(V(ACC + 4 * T, 4), V(base + 4 * c, 4), V(base + 32 + 4 * gp, 4), V(ACC + 4 * T, 4) if T in started else 0)
            started.add(T)
            if nxt:
                op, args, mods = nxt.pop(0)
                a.I(op, *args, mods=mods)
            if extra:
                op, args, mods = extra.pop(0)
                a.I(op, *args, mods=mods)
            if n in (25, 28, 31, 34) and nq < Q_EARLY:
                w1_dma(a, nq); nq += 1
            if (si, n) in W2Q:
                w2_quarter_load(a, 47, W2Q.index((si, n)), 29)
    assert nq == Q_EARLY
    stamp(a, 6)
    for T in range(8):
        for hh in range(2):
            r = ACC + 4 * T + 2 * hh
            a.v_pk_add_f32(V(r, 2), V(r, 2), V(XFL + 4 * T + 2 * hh, 2))
        p = 48 + 2 * T
        a.v_cvt_pk_bf16_f32(V(p), V(ACC + 4 * T), V(ACC + 4 * T + 1))
        a.v_cvt_pk_bf16_f32(V(p + 1), V(ACC + 4 * T + 2), V(ACC + 4 * T + 3))
        a.ds_write_b64(V(44), V(p, 2), mods=f"offset:{512*T}")
    a.v_bfe_u32(V(8), V(VL), 2, 2)
    a.v_mul_u32_u24(V(8), XH_P, V(8))
    a.v_lshl_add_u32(V(8), V(28), 6, V(8))
    a.v_and_b32(V(9), 3, V(VL))
    a.v_lshl_add_u32(V(8), V(9), 3, V(8))
    a.s_lshl_b32(S(6), S(S_WAVE), 10)
    a.s_add_u32(S(6), S(6), XH_L)
    a.v_add_u32(V(8), S(6), V(8))
    if POISON:
        a.wvm(t_poi)
    a.wait(lgkm=0)
    a.s_barrier()
    HO = 64
    tks = []
    for i in range(4):
        a.ds_read_b64_tr_b16(V(HO + 4 * i, 2), V(8), mods=f"offset:{256*i}")
        tks.append(a.ds_read_b64_tr_b16(V(HO + 4 * i + 2, 2), V(8), mods=f"offset:{256*i+32}"))
    for i in range(4):
        a.wds(tks[i])
        a.s_add_u32(S(7), S(58), 4 * i * 40960)
        t_st = a.buffer_store_dwordx4(V(HO + 4 * i, 4), V(255), S(12, 4), S(7), mods="offen sc1")
    a.s_lshl_b32(S(6), S(2), 7)
    a.s_add_u32(S(6), S(6), FH)
    if not POISON:
        a.wvm(t_st)
    a.s_barrier()
    set_flag(a, S(6), 10)
    stamp(a, 7)
    a.nvm -= 1
    for q in range(Q_EARLY, 35):
        w1_dma(a, q)
    a.wvm(t_rp)
    ok = newlab("rpok")
    flag_check(a, 208, 96)
    a.s_cbranch_vccz(ok)
    poll_flags(a, 45, S(62), 96, 208)
    a.label(ok)


def repack_addr(a, vo):
    a.s_mov_b32(S(48), 1280 - 160)
    for i in range(5):
        a.v_add_u32(V(4), 64 * i, V(1))
        a.v_mul_u32_u24(V(3), 6554, V(4))
        a.v_lshrrev_b32(V(3), 16, V(3))
        a.v_lshlrev_b32(V(4), 4, V(4))
        a.v_mad_u32_u24(V(vo + i), V(3), S(48), V(4))
    a.v_lshrrev_b32(V(4), 2, V(1))
    a.v_mul_u32_u24(V(4), 160, V(4))
    a.v_and_b32(V(3), 3, V(1))
    a.v_lshl_add_u32(V(vo + 5), V(3), 3, V(4))


def repack_load(a, s_idx, s_keep, vo, vd, rsrc):
    a.s_and_b32(S(s_keep), S(s_idx), 7)
    a.s_lshr_b32(S(s_keep + 1), S(s_idx), 3)
    a.s_mul_i32(S(6), S(s_keep + 1), 32 * 1280)
    a.s_mul_i32(S(7), S(s_keep), 160)
    a.s_add_u32(S(6), S(6), S(7))
    return [a.buffer_load_dwordx4(V(vd + 4 * i, 4), V(vo + i), S(rsrc, 4), S(6), mods="offen") for i in range(5)]


def repack_proc(a, s_keep, vo, vd, tks, s_lds):
    a.v_lshl_add_u32(V(4), V(1), 4, S(s_lds))
    a.v_add_u32(V(5), S(s_lds), V(vo + 5))
    a.v_lshlrev_b32(V(7), 4, V(1))
    a.s_mul_i32(S(49), S(s_keep), 54)
    a.s_add_u32(S(49), S(49), S(s_keep + 1))
    a.s_mul_i32(S(49), S(49), 5 * 1024)
    a.s_add_u32(S(50), S(49), 4096)
    for i in range(5):
        a.wvm(tks[i])
        a.ds_write_b128(V(4), V(vd + 4 * i, 4), mods=f"offset:{1024*i}")
    if vd == 104:
        stamp(a, 4)
    rt = []
    for t in range(5):
        a.ds_read_b64_tr_b16(V(vd + 4 * t, 2), V(5), mods=f"offset:{32*t}")
        rt.append(a.ds_read_b64_tr_b16(V(vd + 4 * t + 2, 2), V(5), mods=f"offset:{32*t+16*160}"))
    for t in range(5):
        a.wds(rt[t])
        a.buffer_store_dwordx4(V(vd + 4 * t, 4), V(7), S(12, 4), S(49 if t < 4 else 50), mods=f"offen offset:{1024*(t%4)} sc1")


def aux_first(a):
    VL = 1
    S_AI, S_O = 60, 57
    a.s_sub_u32(S(S_AI), S(2), 160)
    a.s_mul_i32(S(S_O), S(S_AI), 3)
    a.s_add_u32(S(S_O), S(S_O), S(S_WAVE))
    a.s_cmp_eq_u32(S(S_WAVE), 3)
    a.s_cselect_b32(S(S_O), 4096, S(S_O))
    a.v_lshrrev_b32(V(2), 3, V(VL))
    a.v_mul_u32_u24(V(2), 1280, V(2))
    a.v_and_b32(V(3), 7, V(VL))
    a.v_lshl_add_u32(V(2), V(3), 4, V(2))
    a.s_mul_i32(S(6), S(S_O), 10240)
    a.wait(lgkm=0)
    srd(a, 8, P_U, 0, 2048 * 640 * 2)
    return [a.buffer_load_dwordx4(V(16 + 4 * i, 4), V(2), S(8, 4), S(6), mods=f"offen offset:{128*i}") for i in range(10)]


def code_prefetch(a):
    a.s_getpc_b64(S(6, 2))
    a.label("L_PC")
    a.s_sub_u32(S(6), S(6), "L_PC-" + NAME + "_kernel")
    a.s_subb_u32(S(7), S(7), 0)
    a.v_lshlrev_b32(V(2), 7, V(1))
    for i in range(NCODE):
        a.v_min_u32(V(3), "L_END-" + NAME + "_kernel", V(2))
        a.global_load_dword(V(244 + i), V(3), S(6, 2))
        a.v_add_u32(V(2), 8192, V(2))


def aux_role(a, xt):
    VL = 1
    S_AI, S_GW, S_KS, S_O = 60, 61, 62, 57
    XB = 16
    a.s_lshl_b32(S(S_GW), S(S_AI), 2)
    a.s_add_u32(S(S_GW), S(S_GW), S(S_WAVE))
    a.s_mul_i32(S(S_KS), S(S_WAVE), KS_SZ)
    repack_addr(a, 64)
    a.v_mov_b32(V(12), MODE_L)
    notag = newlab("nt")
    a.s_cmp_lg_u32(S(S_WAVE), 3)
    a.s_cbranch_scc1(notag)
    lp = newlab("nn")
    save = a.nvm
    a.v_mov_b32(V(11), 0)
    a.label(lp)
    a.buffer_load_dword(V(13), V(11), S(R_DBG, 4), 0, mods="offen sc1")
    a.wait(vm=0)
    a.v_cmp_eq_u32("vcc", 0, V(13))
    spin_branch(a, lp)
    a.ds_write_b32(V(12), V(13))
    a.nvm = save
    a.label(notag)
    srd(a, 24, P_W2, 0, 1728 * 640 * 2)
    t2 = repack_load(a, S_GW, 4, 64, 104, 24)
    a.s_add_u32(S(56), S(S_AI), 384)
    a.s_cmp_eq_u32(S(S_WAVE), 3)
    a.s_cselect_b32(S(56), S(56), 4096)
    t3 = repack_load(a, 56, 58, 64, 72, 24)
    w1_addr(a, 4, 5)
    srd(a, 28, P_W1, 0, 640 * 1728 * 2)
    srd(a, 12, P_WS, W2P_OFF, W2P_SZ)
    a.v_lshlrev_b32(V(6), 7, V(VL))
    a.s_lshl_b32(S(6), S(S_GW), 13)
    a.buffer_load_dword(V(238), V(6), S(28, 4), S(6), mods="offen")
    a.s_mov_b32(S(46), "0x3f803f80")
    for i in range(10):
        a.wvm(xt[i])
        for q in range(4):
            x = V(XB + 4 * i + q)
            first = (i == 0 and q < 2)
            a.v_dot2_f32_bf16(V(8 + (q & 1)), x, S(46), 0 if first else V(8 + (q & 1)))
            a.v_dot2_f32_bf16(V(10 + (q & 1)), x, x, 0 if first else V(10 + (q & 1)))
    a.wait(lgkm=0)
    stamp(a, 7)
    a.s_barrier()
    a.ds_read_b32(V(15), V(12))
    a.v_add_f32(V(8), V(8), V(9))
    a.v_add_f32(V(10), V(10), V(11))
    for m in ("quad_perm:[1,0,3,2]", "quad_perm:[2,3,0,1]", "row_half_mirror"):
        a.v_add_f32_dpp(V(8), V(8), V(8), mods=f"{m} row_mask:0xf bank_mask:0xf")
        a.v_add_f32_dpp(V(10), V(10), V(10), mods=f"{m} row_mask:0xf bank_mask:0xf")
    inv = f32(1.0 / 640)
    a.v_mul_f32(V(8), inv, V(8))
    a.v_mul_f32(V(10), inv, V(10))
    a.v_fma_f32(V(10), "-" + V(8), V(8), V(10))
    a.v_max_f32(V(10), 0, V(10))
    a.v_cvt_pk_bf16_f32(V(9), V(10), V(10))
    a.v_lshlrev_b32(V(10), 16, V(9))
    a.v_add_f32(V(10), f32(1e-5), V(10))
    a.v_cvt_pk_bf16_f32(V(9), V(10), V(10))
    a.v_lshlrev_b32(V(10), 16, V(9))
    a.v_sqrt_f32(V(10), V(10))
    a.v_cvt_pk_bf16_f32(V(14), V(8), V(10))
    a.v_and_b32(V(3), 7, V(VL))
    a.v_cmp_eq_u32("vcc", 0, V(3))
    a.v_mov_b32(V(9), "0x40000000")
    a.v_cndmask_b32(V(9), V(9), V(VL), "vcc")
    a.s_lshl_b32(S(6), S(S_O), 6)
    a.s_cmp_ge_u32(S(S_O), 256)
    a.s_cselect_b32(S(6), "0x40000000", S(6))
    a.wait(lgkm=0)
    a.v_readfirstlane_b32(S(S_NONCE), V(15))
    a.buffer_store_dwordx2(V(14, 2), V(9), S(R_SY, 4), S(6), mods="offen sc1")
    stamp(a, 1)
    repack_proc(a, 4, 64, 104, t2, S_KS)
    join = newlab("aj")
    a.s_cmp_ge_u32(S(56), 432)
    a.s_cbranch_scc1(join)
    repack_proc(a, 58, 64, 72, t3, S_KS)
    a.label(join)
    stamp(a, 5)
    a.s_lshr_b32(S(5), S(S_AI), 3)
    a.s_lshl_b32(S(5), S(5), 15)
    a.v_lshlrev_b32(V(2), 7, V(0))

    def w1pf(i):
        a.s_add_u32(S(6), S(5), i * 3072 * 128)
        a.buffer_load_dword(V(238 + i), V(2), S(28, 4), S(6), mods="offen")

    NB = int(os.environ.get("W1PFB", "2"))
    for i in range(NB):
        w1pf(i)
    w1_srd(a)
    a.wait(vm=NB)
    stamp(a, 6)
    a.s_barrier()
    a.s_lshl_b32(S(6), S(S_AI), 7)
    a.s_add_u32(S(6), S(6), FRP)
    set_flag(a, S(6), 10)
    stamp(a, 2)
    for i in range(NB, 6):
        w1pf(i)
    for q in range(35):
        w1_dma(a, q)
    flag_addr(a, 45, 96, VL)
    a.s_mov_b32(S(62), FRP)
    poll_flags(a, 45, S(62), 96, 208)
    stamp(a, 3)
    w2_quarter_setup(a, 47)
    for i in range(3):
        w2_quarter_load(a, 47, i, 238)
    srd(a, 28, P_WS, H1_OFF, H1_SZ)
    a.s_mul_i32(S(5), S(S_AI), 576 * 128)
    a.v_min_u32(V(2), 191, V(0))
    a.v_lshlrev_b32(V(2), 7, V(2))
    for i in range(3):
        a.s_add_u32(S(6), S(5), i * 192 * 128)
        a.buffer_load_dword(V(239), V(2), S(28, 4), S(6), mods="offen sc1")


def gemms(a):
    VL = 1
    S_CT, S_TB, S_CT2, S_RB2 = 56, 57, 58, 59
    R_H, R_X, R_W2 = 8, 12, 20
    t_dma = a.nvm
    a.s_mov_b64(S(S_MIS, 2), 0)
    xcc_mismatch(a, 45, 96, 208, S_MIS)
    a.s_and_b32(S(4), S(2), 7)
    a.s_lshl_b32(S(5), S(4), 1)
    a.s_bfe_u32(S(6), S(2), "0x10003")
    a.s_add_u32(S(60), S(5), S(6))
    a.s_lshr_b32(S(S_CT), S(2), 4)
    a.s_lshl_b32(S(S_TB), S(60), 2)
    a.s_add_u32(S(S_TB), S(S_TB), S(S_WAVE))
    a.s_lshl_b32(S(5), S(60), 1)
    a.s_bfe_u32(S(6), S(2), "0x10004")
    a.s_add_u32(S(S_RB2), S(5), S(6))
    a.s_lshr_b32(S(S_CT2), S(2), 5)
    a.v_lshlrev_b32(V(5), 4, V(VL))
    a.v_and_b32(V(2), 15, V(VL))
    a.v_lshrrev_b32(V(3), 4, V(VL))
    a.s_mul_i32(S(7), S(S_CT2), 270 * 1024)
    srd2(a, R_W2, P_WS, W2P_OFF, S(7), 270 * 1024)
    a.s_mul_i32(S(46), S(S_WAVE), 5 * 1024)
    ACC, SQ, BB = 16, 72, 96
    W2V = 192

    def w2dst(s, t):
        if s < 10:
            return A(56 + 20 * s + 4 * t, 4)
        if s < 12:
            return A(20 * (s - 10) + 4 * t, 4)
        return V(W2V + 20 * (s - 12) + 4 * t, 4)

    def wload(n):
        s, t = divmod(n, 5)
        if t == 0:
            a.s_add_u32(S(49), S(46), s * 20 * 1024)
        if t == 4:
            a.s_add_u32(S(49), S(49), 4096)
        a.buffer_load_dwordx4(w2dst(s, t), V(5), S(R_W2, 4), S(49), mods=f"offen offset:{1024*(t%4)} sc1")

    a.s_mul_i32(S(7), S(S_TB), 110592)
    srd2(a, R_X, P_WS, H1_OFF, S(7), 110592)
    a.s_mul_i32(S(47), S(S_CT), 27 * 256)
    a.v_min_u32(V(94), 53, V(VL))
    a.v_lshl_add_u32(V(94), V(94), 7, S(47))
    wq = list(range(70))
    NPRE = int(os.environ.get("NPRE", "20"))
    for _ in range(NPRE):
        wload(wq.pop(0))
    a.v_lshrrev_b32(V(6), 2, V(VL))
    a.v_mul_u32_u24(V(6), 224, V(6))
    a.v_and_b32(V(7), 3, V(VL))
    a.v_lshl_add_u32(V(6), V(7), 3, V(6))
    a.v_add_u32(V(6), S(S_D2), V(6))
    a.v_add_u32(V(7), 9 * 7168, V(6))
    a.v_add_u32(V(4), 18 * 7168, V(6))
    VAB = [6, 7, 4]
    a.v_mul_u32_u24(V(8), 224, V(0))
    a.v_add_u32(V(8), S(S_D2), V(8))
    a.v_and_b32(V(9), 127, V(0))
    a.v_mul_u32_u24(V(9), 224, V(9))
    a.v_add_u32(V(9), S(S_D2), V(9))
    a.v_add_u32(V(9), 512 * 224, V(9))
    a.v_mov_b32(V(10), "0x3f80")
    a.v_mov_b32(V(11), 0)
    a.wvm(t_dma)
    a.s_barrier()
    a.ds_write_b64(V(8), V(10, 2), mods="offset:216")
    a.ds_write_b64(V(8), V(10, 2), mods=f"offset:{256*224+216}")
    a.ds_write_b64(V(9), V(10, 2), mods="offset:216")
    skip = newlab("ph")
    a.s_cmp_lg_u32(S(S_WAVE), 0)
    a.s_cbranch_scc1(skip)
    flag_addr(a, 8, 160, VL)
    a.s_mov_b32(S(47), FH)
    poll_flags(a, 8, S(47), 160, 16)
    xcc_mismatch(a, 8, 160, 16, S_MIS)
    a.s_cmp_lg_u64(S(S_MIS, 2), 0)
    a.s_cselect_b32(S(6), 1, 0)
    a.v_mov_b32(V(8), MODE_L)
    a.v_mov_b32(V(9), S(6))
    a.ds_write_b32(V(8), V(9))
    a.label(skip)
    a.s_mul_i32(S(7), S(S_TB), 40960)
    srd2(a, R_H, P_WS, H4_OFF, S(7), 40960)

    def areads(ks):
        out = []
        for t in range(7):
            for hh in range(2):
                out.append((A(28 * (ks % 2) + 4 * t + 2 * hh, 2), V(VAB[ks // 9]), f"offset:{(ks%9)*7168 + hh*3584 + 32*t}"))
        return out

    a.s_mov_b32(S(63), 64)
    ON = 12
    for i in range(4):
        a.v_mov_b32(V(ON + i), "0x3f803f80")
    a.s_mul_i32(S(47), S(S_WAVE), 5 * 7168)
    a.v_add_u32(V(80), S(47), V(6))
    a.s_lshl_b32(S(47), S(S_WAVE), 9)
    a.s_add_u32(S(47), S(47), CSP_L)
    a.v_lshl_add_u32(V(81), V(3), 4, S(47))
    a.wait(lgkm=0)
    a.s_barrier()
    stamp(a, 8)
    a.label("L_G1")
    btk = {}

    def bload(n):
        if n % 4 == 0:
            a.s_mov_b32(S(48), n * 1024)
        btk[n] = a.buffer_load_dwordx4(V(BB + 4 * n, 4), V(5), S(R_H, 4), S(48), mods=f"offen offset:{(n%4)*1024} sc1")

    def touch(n):
        a.buffer_load_dword(V(95), V(94), S(R_X, 4), 0, mods="offen sc1")

    queue = [(bload, n) for n in range(40)] + [(wload, n) for n in wq if n < 50]
    wq = [n for n in wq if n >= 50]
    for _ in range(12):
        f, n = queue.pop(0); f(n)
    a.s_cmp_lg_u32(S(63), 64)
    a.s_cbranch_scc1("L_G1B")
    for kk in range(6):
        if kk < 5:
            for t in range(7):
                for hh in range(2):
                    a.ds_read_b64_tr_b16(A(28 * (kk % 2) + 4 * t + 2 * hh, 2), V(80), mods=f"offset:{kk*7168 + hh*3584 + 32*t}")
        if kk:
            a.wait(lgkm=14 if kk < 5 else 0)
            for t in range(7):
                a.v_mfma_f32_16x16x32_bf16(V(ACC + 4 * t, 4), A(28 * ((kk - 1) % 2) + 4 * t, 4), V(ON, 4), V(ACC + 4 * t, 4) if kk > 1 else 0)
    a.s_mov_b32("exec_lo", "0x00010001")
    a.s_mov_b32("exec_hi", "0x00010001")
    for t in range(7):
        a.ds_write_b128(V(81), V(ACC + 4 * t, 4), mods=f"offset:{64*t}")
    a.s_mov_b64("exec", -1)
    a.label("L_G1B")
    for d, ad, mods in areads(0):
        a.ds_read_b64_tr_b16(d, ad, mods=mods)
    for ks in range(20):
        if ks == 4:
            a.s_cmp_lg_u32(S(63), 64)
            a.s_cbranch_scc1("L_G1C")
            a.s_barrier()
            a.label("L_G1C")
            a.v_and_b32(V(9), 31, V(VL))
            a.v_lshlrev_b32(V(9), 4, V(9))
            a.v_add_u32(V(9), CSP_L, V(9))
            for w in range(4):
                a.ds_read_b128(V(96 + 4 * w, 4), V(9), mods=f"offset:{512*w}")
            a.s_lshl_b32(S(47), S(S_WAVE), 9)
            a.v_add_u32(V(9), S(47), V(9))
        if ks == 5:
            for hh in range(4):
                a.v_add_f32(V(96 + hh), V(96 + hh), V(100 + hh))
                a.v_add_f32(V(104 + hh), V(104 + hh), V(108 + hh))
            for hh in range(4):
                a.v_add_f32(V(96 + hh), V(96 + hh), V(104 + hh))
            a.ds_write_b128(V(9), V(96, 4), mods=f"offset:{CS_L-CSP_L}")
        b = BB + 8 * ks
        a.wvm(btk[2 * ks + 1])
        a.v_swap_b32(V(b + 2), V(b + 4))
        a.v_swap_b32(V(b + 3), V(b + 5))
        nxt = areads(ks + 1) if ks < 19 else []
        a.wait(lgkm=0)
        nl = int(os.environ.get("NL", "3"))
        if ks == 17:
            queue += [(wload, n) for n in range(60, 70)]
        for p in range(2):
            a.v_mfma_f32_16x16x32_bf16(V(SQ + 4 * p, 4), V(b + 4 * p, 4), V(b + 4 * p, 4), V(SQ + 4 * p, 4) if ks else 0)
            if nxt:
                d, ad, mods = nxt.pop(0)
                a.ds_read_b64_tr_b16(d, ad, mods=mods)
        for t in range(7):
            for p in range(2):
                acc = ACC + 8 * t + 4 * p
                a.v_mfma_f32_16x16x32_bf16(V(acc, 4), A(28 * (ks % 2) + 4 * t, 4), V(b + 4 * p, 4), V(acc, 4) if ks else 0)
                if nxt:
                    d, ad, mods = nxt.pop(0)
                    a.ds_read_b64_tr_b16(d, ad, mods=mods)
                if p == 1 and t % 2 == 0 and nl and queue:
                    f, n = queue.pop(0); f(n)
                    nl -= 1
    stamp(a, 9)
    queue += [(wload, n) for n in range(50, 60)]
    while queue:
        f, n = queue.pop(0); f(n)
    CSR = 96
    for t in range(7):
        a.ds_read_b128(V(CSR + 4 * t, 4), V(81), mods=f"offset:{CS_L-CSP_L+64*t}")
    a.v_mov_b32(V(14), MODE_L)
    a.ds_read_b32(V(14), V(14))
    a.v_and_b32(V(10), 3, V(2))
    a.v_lshrrev_b32(V(11), 2, V(2))
    a.v_lshl_add_u32(V(11), V(11), 4, V(2))
    a.v_lshlrev_b32(V(11), 2, V(11))
    a.v_lshlrev_b32(V(12), 2, V(2))
    a.v_add_u32(V(12), 192, V(12))
    S1 = [124, 125]; S2 = [82, 83]
    for r in (1, 2, 3):
        a.v_cmp_eq_u32("vcc", r, V(10))
        for p in range(2):
            a.v_cndmask_b32(V(SQ + 4 * p), V(SQ + 4 * p), V(SQ + 4 * p + r), "vcc")
    for p in range(2):
        a.ds_bpermute_b32(V(S2[p]), V(11), V(SQ + 4 * p))
        a.ds_bpermute_b32(V(S1[p]), V(12), V(ACC + 8 * 6 + 4 * p))
    a.s_mul_i32(S(47), S(S_CT), 27 * 256)
    a.s_add_u32(S(48), S(47), 4096)
    a.v_cmp_eq_u32("vcc", 3, V(3))
    a.v_mov_b32(V(13), "0x40000000")
    a.v_cndmask_b32(V(13), V(5), V(13), "vcc")
    a.wait(lgkm=0)
    if POISON:
        a.v_cmp_u_f32("vcc", V(S2[0]), V(S2[1]))
        a.s_cbranch_vccnz("L_G1RETRY")
        a.label("L_G1OK")
    RS = [84, 86]; NM = [88, 90]
    ln_stats2(a, S1, S2, RS, NM, 92, 93, 640)
    OB = 128
    a.v_readfirstlane_b32(S(61), V(14))
    a.s_lshl_b32(S(62), S(60), 4)
    a.s_add_u32(S(62), S(62), S(S_CT))
    a.s_lshl_b32(S(62), S(62), 7)
    a.s_add_u32(S(62), S(62), FH1)
    slow, done = newlab("slow"), newlab("done")
    a.s_cmp_lg_u32(S(61), 0)
    a.s_cbranch_scc1(slow)
    nvm0 = a.nvm
    for variant in ("", "sc1"):
        a.nvm = nvm0
        for t in range(7):
            ob = OB + 4 * t
            for p in range(2):
                for hh in range(2):
                    r = ACC + 8 * t + 4 * p + 2 * hh
                    a.v_pk_mul_f32(V(r, 2), V(r, 2), V(RS[p], 2), mods="op_sel_hi:[1,0]")
            for p in range(2):
                for hh in range(2):
                    r = ACC + 8 * t + 4 * p + 2 * hh
                    a.v_pk_fma_f32(V(r, 2), V(CSR + 4 * t + 2 * hh, 2), V(NM[p], 2), V(r, 2), mods="op_sel_hi:[1,0,1]")
            for p in range(2):
                for hh in range(2):
                    r = ACC + 8 * t + 4 * p + 2 * hh
                    a.v_cvt_pk_bf16_f32(V(ob + 2 * p + hh), V(r), V(r + 1))
            for i in range(4):
                a.v_pk_max_i16(V(ob + i), V(ob + i), 0)
            t_st = a.buffer_store_dwordx4(V(ob, 4), V(13 if t == 6 else 5), S(R_X, 4), S(47 if t < 4 else 48), mods=f"offen offset:{1024*(t%4)} {variant}")
        if variant == "":
            touch(0)
            a.wait(vm=1)
        else:
            a.wait(vm=0)
        a.s_barrier()
        set_flag(a, S(62), 10, variant)
        if variant == "":
            a.s_branch(done)
            a.label(slow)
    a.label(done)
    stamp(a, 10)
    while queue:
        f, n = queue.pop(0); f(n)
    HR = 232
    a.s_lshl_b32(S(4), S(S_RB2), 1)
    a.s_lshr_b32(S(5), S(S_WAVE), 1)
    a.s_add_u32(S(5), S(5), S(4))
    a.s_mul_i32(S(7), S(5), 40960)
    srd2(a, R_H, P_WS, H4_OFF, S(7), 40960)
    a.s_mul_i32(S(47), S(S_CT2), 20 * 256)
    a.s_and_b32(S(5), S(S_WAVE), 1)
    a.s_lshl_b32(S(5), S(5), 3)
    a.s_add_u32(S(47), S(47), S(5))
    a.s_add_u32(S(48), S(47), 4096)
    for t in range(5):
        a.buffer_load_dwordx2(V(HR + 2 * t, 2), V(5), S(R_H, 4), S(47 if t < 4 else 48), mods=f"offen offset:{1024*(t%4)} sc1")
    skip = newlab("p1")
    a.s_cmp_lg_u32(S(S_WAVE), 0)
    a.s_cbranch_scc1(skip)
    flag_addr(a, 8, 16, VL)
    a.s_lshl_b32(S(47), S(60), 11)
    a.s_add_u32(S(47), S(47), FH1)
    poll_flags(a, 8, S(47), 16, 12)
    a.s_cmp_eq_u32(S(61), 0)
    a.s_cbranch_scc1(skip)
    a.I("buffer_inv", mods="sc1")
    a.wait(vm=0)
    a.label(skip)
    RB = [24, 28]
    for p in range(2):
        a.s_add_u32(S(5), S(4), p)
        a.s_mul_i32(S(7), S(5), 110592)
        srd2(a, RB[p], P_WS, H1_OFF, S(7), 110592)
    a.s_lshl_b32(S(47), S(S_WAVE), 11)
    a.s_barrier()
    stamp(a, 11)
    ND = 6
    htk = {}

    def hload(n):
        s, r = divmod(n, 4)
        p, hh = divmod(r, 2)
        if r == 0:
            a.s_add_u32(S(48), S(47), s * 8192)
        htk[n] = a.buffer_load_dwordx4(V(BB + 16 * (s % ND) + 8 * p + 4 * hh, 4), V(5), S(RB[p], 4), S(48), mods=f"offen offset:{1024*hh} {HLD}")

    NS = 14
    nissued = 0
    for _ in range(12):
        hload(nissued); nissued += 1
    for s in range(NS):
        a.wvm(htk[4 * s + 3])
        b = BB + 16 * (s % ND)
        for p in range(2):
            a.v_swap_b32(V(b + 8 * p + 2), V(b + 8 * p + 4))
            a.v_swap_b32(V(b + 8 * p + 3), V(b + 8 * p + 5))
        n = 0
        lim = min(4 * NS, 4 * (s + ND))
        budget = 5
        for t in range(5):
            for bt in range(4):
                acc = ACC + (bt * 5 + t) * 4
                a.v_mfma_f32_16x16x32_bf16(V(acc, 4), w2dst(s, t), V(b + 4 * bt, 4), V(acc, 4) if s else 0)
                n += 1
                if n % 4 == 2 and nissued < lim and budget:
                    hload(nissued); nissued += 1; budget -= 1
    assert nissued == 4 * NS
    stamp(a, 12)
    a.s_mul_i32(S(48), S(S_WAVE), 20 * 1024)
    a.v_add_u32(V(6), S(48), V(5))
    for bt in range(4):
        for t in range(5):
            a.ds_write_b128(V(6), V(ACC + (bt * 5 + t) * 4, 4), mods=f"offset:{(bt*5+t)*1024}")
    a.v_add_u32(V(7), S(46), V(5))
    a.v_add_u32(V(8), 40 * 1024, V(7))
    srd(a, 12, P_OUT, 0, 2048 * 640 * 2)
    a.v_mul_u32_u24(V(9), 1280, V(2))
    a.v_lshl_add_u32(V(9), V(3), 3, V(9))
    a.s_lshl_b32(S(48), S(S_RB2), 2)
    a.s_add_u32(S(48), S(48), S(S_WAVE))
    a.s_mul_i32(S(48), S(48), 16 * 1280)
    a.s_mul_i32(S(49), S(S_CT2), 160)
    a.s_add_u32(S(48), S(48), S(49))
    a.wait(lgkm=0)
    a.s_barrier()
    RD = 96
    rt = []
    for t in range(5):
        for w in range(4):
            x = a.ds_read_b128(V(RD + (t * 4 + w) * 4, 4), V(7 if w < 2 else 8), mods=f"offset:{(w%2)*20*1024 + t*1024}")
        rt.append(x)
    for t in range(5):
        a.wds(rt[t])
        r = RD + t * 16
        for hh in range(2):
            a.v_pk_add_f32(V(r + 2 * hh, 2), V(r + 2 * hh, 2), V(r + 4 + 2 * hh, 2))
            a.v_pk_add_f32(V(r + 8 + 2 * hh, 2), V(r + 8 + 2 * hh, 2), V(r + 12 + 2 * hh, 2))
        for hh in range(2):
            a.v_pk_add_f32(V(r + 2 * hh, 2), V(r + 2 * hh, 2), V(r + 8 + 2 * hh, 2))
        for hh in range(2):
            a.v_cvt_pk_bf16_f32(V(r + 4 + hh), V(r + 2 * hh), V(r + 2 * hh + 1))
        for hh in range(2):
            a.v_lshlrev_b32(V(r + 2 * hh), 16, V(r + 4 + hh))
            a.v_and_b32(V(r + 2 * hh + 1), "0xffff0000", V(r + 4 + hh))
            a.v_lshlrev_b32(V(r + 8 + 2 * hh), 16, V(HR + 2 * t + hh))
            a.v_and_b32(V(r + 8 + 2 * hh + 1), "0xffff0000", V(HR + 2 * t + hh))
        for hh in range(2):
            a.v_pk_add_f32(V(r + 2 * hh, 2), V(r + 2 * hh, 2), V(r + 8 + 2 * hh, 2))
        for hh in range(2):
            a.v_cvt_pk_bf16_f32(V(r + 4 + hh), V(r + 2 * hh), V(r + 2 * hh + 1))
        a.buffer_store_dwordx2(V(r + 4, 2), V(9), S(12, 4), S(48), mods=f"offen offset:{32*t}")


def gemm1_retry(a):
    a.label("L_G1RETRY")
    a.s_sub_u32(S(63), S(63), 1)
    a.s_cbranch_scc1("L_G1OK")
    if STAMPS and os.environ.get("DBGT", "0") != "1":
        a.v_mov_b32(V(8), 4)
        a.v_mov_b32(V(9), 1)
        a.s_mov_b64("exec", 1)
        a.buffer_atomic_add(V(9), V(8), S(R_DBG, 4), 0, mods="offen sc1")
        a.s_mov_b64("exec", -1)
    a.wait(vm=0)
    a.s_branch("L_G1")


NSTAMP = 13


def gen():
    a = Asm()
    a.s_load_dwordx16(S(16, 16), S(0, 2), 0)
    a.s_load_dwordx8(S(32, 8), S(0, 2), 64)
    a.s_load_dwordx4(S(40, 4), S(0, 2), 96)
    a.s_load_dwordx2(S(44, 2), S(0, 2), 112)
    a.s_memrealtime(S(4, 2))
    if STAMPS:
        for i in range(1, NSTAMP):
            a.s_mov_b32(S(76 + 2 * i), 0)
    stamp(a, 0)
    a.s_cmp_ge_u32(S(2), 256)
    a.s_cbranch_scc1("L_END")
    a.v_lshrrev_b32(V(1), 6, V(0))
    a.v_readfirstlane_b32(S(S_WAVE), V(1))
    a.v_and_b32(V(1), 63, V(0))

    def common_setup():
        a.s_mov_b32(S(S_SPIN), SPIN_MAX)
        a.s_getreg_b32(S(S_XCC), "hwreg(HW_REG_XCC_ID, 0, 4)")
        srd(a, R_DBG, P_DBG, 0, 256)
        srd(a, R_SY, P_WS, SY_OFF, SY_SZ)

    a.s_cmp_lt_u32(S(2), 160)
    a.s_cbranch_scc1("L_CONV")
    a.s_cmp_lg_u32(S(S_WAVE), 3)
    a.s_cbranch_scc1("L_NOCODE")
    code_prefetch(a)
    a.label("L_NOCODE")
    a.nvm = 0
    xt = aux_first(a)
    nvm_aux = a.nvm
    a.s_branch("L_AUX")
    a.label("L_CONV")
    a.nvm = 0
    a.wait(lgkm=0)
    ktk = conv_first(a)
    common_setup()
    a.s_lshl_b32(S(6), S(S_WAVE), 3)
    a.s_add_u32(S(6), S(6), S(2))
    a.s_cmp_ge_u32(S(6), 8)
    a.s_cbranch_scc1("L_NOTAG")
    a.s_or_b32(S(4), S(4), 1)
    a.v_mov_b32(V(24), S(4))
    a.v_mov_b32(V(25), 0)
    a.v_mov_b32(V(26), 0)
    a.s_mov_b64("exec", 1)
    a.buffer_atomic_cmpswap(V(24, 2), V(26), S(R_DBG, 4), 0, mods="offen sc1")
    a.s_mov_b64("exec", -1)
    a.nvm -= 1
    a.label("L_NOTAG")
    conv_role(a, ktk)
    a.s_branch("L_COMMON")
    if POISON:
        gemm1_retry(a)
    a.label("L_AUX")
    a.nvm = nvm_aux
    common_setup()
    aux_role(a, xt)
    a.label("L_COMMON")
    gemms(a)
    if STAMPS:
        a.wait(vm=0)
        a.s_memrealtime(S(4, 2))
        a.wait(lgkm=0)
        srd(a, 8, P_WS, ST_OFF, 0x100000)
        a.s_lshl_b32(S(6), S(2), 2)
        a.s_add_u32(S(6), S(6), S(S_WAVE))
        a.s_lshl_b32(S(6), S(6), 6)
        for i in range(NSTAMP):
            a.v_mov_b32(V(8 + i), S(76 + 2 * i))
        a.v_mov_b32(V(8 + NSTAMP), S(4))
        a.v_mov_b32(V(2), 0)
        a.s_mov_b64("exec", 1)
        for q in range(4):
            a.buffer_store_dwordx4(V(8 + 4 * q, 4), V(2), S(8, 4), S(6), mods=f"offen offset:{16*q}")
        if os.environ.get("DBGT", "0") == "1":
            a.v_not_b32(V(30), V(8))
            a.buffer_atomic_umax(V(30), V(2), S(R_DBG, 4), 0, mods="offen offset:4 sc1")
            for i in range(NSTAMP + 1):
                a.buffer_atomic_umax(V(8 + i), V(2), S(R_DBG, 4), 0, mods=f"offen offset:{8+4*i} sc1")
    a.label("L_END")
    a.s_endpgm()
    return kernel_text(NAME + "_kernel", a, 256, nagpr=256, nsgpr=102)


def main(path):
    ref = open(f"cdna_kernels/{NAME}.s.ref").read().splitlines()
    head = [l for l in ref if l.startswith(";") and "@launch" not in l]
    out = "\n".join(head) + "\n"
    out += f"; @launch grid=(256,1,1) block=(256,1,1) lds={LDS_SZ}\n"
    out += '.amdgcn_target "amdgcn-amd-amdhsa--gfx950"\n'
    out += gen()
    open(path, "w").write(out)


if __name__ == "__main__":
    main(sys.argv[1] if len(sys.argv) > 1 else f"cdna_kernels/{NAME}.s")
```

```python
import sys, struct, os
sys.path.insert(0, "dev")
from asmlib import *

NAME = "sequential_preLN__ssm_conv_s4__dense_activation_relu__prompt"
STAMPS = os.environ.get("STAMPS", "0") == "1"

SY_OFF, SY_SZ = 0x0, 0x18000
FRP, FH, FH1 = 0x4000, 0x8000, 0x10000
W2P_OFF, W2P_SZ = 0x100000, 8 * 54 * 5 * 1024
H4_OFF, H4_SZ = 0x700000, 64 * 40960
H1_OFF, H1_SZ = 0xA00000, 64 * 110592
ST_OFF = 0x2000000

P_U, P_ARE, P_AIM, P_BRE, P_BIM, P_CRE, P_CIM, P_LDT = 16, 18, 20, 22, 24, 26, 28, 30
P_DSK, P_BX, P_W1, P_W2 = 32, 34, 36, 38
P_OUT, P_DBG, P_WS = 40, 42, 44
S_WAVE = 3
R_SY, R_DBG = 64, 68
S_NONCE, S_SPIN, S_M0W, S_D2 = 72, 73, 74, 75
R_W1 = 52
S_XCC = 0
S_MIS = 18
MODE_L = 147456
VW1 = 248
SPIN_MAX = 400000

KS_SZ = 23296
WT_L, WT_P = 93184, 8256
UB_L = 126208
CSP_L, CS_L = 144640, 148480
XH_L, XH_P = 147200, 4160
LDS_SZ = 163840
Q_EARLY = 21
NCODE = 4
W2Q = eval(os.environ.get("W2Q", "[(3, 10), (4, 10), (5, 10)]"))
POISON = os.environ.get("POISON", "1") == "1"
GATHER = eval(os.environ.get("GATHER", "{100: [0,1,2,3,4], 20: [5], 26: [6], 31: [7]}"))
HLD = os.environ.get("HLD", "sc1")
LOG2E = 1.4426950408889634


def f32(x):
    return "0x%08x" % struct.unpack("<I", struct.pack("<f", x))[0]


def stamp(a, i):
    if STAMPS:
        if os.environ.get("STAMPCLK", "0") == "1":
            a.s_memtime(S(76 + 2 * i, 2))
        else:
            a.s_memrealtime(S(76 + 2 * i, 2))


def srd(a, d, p, off, size):
    if off == 0:
        a.s_mov_b32(S(d), S(p))
        a.s_mov_b32(S(d + 1), S(p + 1))
    else:
        a.s_add_u32(S(d), S(p), off if isinstance(off, str) else hex(off))
        a.s_addc_u32(S(d + 1), S(p + 1), 0)
    a.s_mov_b32(S(d + 2), hex(size))
    a.s_mov_b32(S(d + 3), "0x20000")


def srd2(a, d, p, off, soff, size):
    a.s_add_u32(S(d), S(p), soff)
    a.s_addc_u32(S(d + 1), S(p + 1), 0)
    a.s_add_u32(S(d), S(d), hex(off))
    a.s_addc_u32(S(d + 1), S(d + 1), 0)
    a.s_mov_b32(S(d + 2), hex(size))
    a.s_mov_b32(S(d + 3), "0x20000")


def cmuln(a, dsts, xs, ws, tmps):
    n = len(dsts)
    for i in range(n):
        a.v_pk_mul_f32(V(tmps[i], 2), V(xs[i], 2), V(ws[i], 2), mods="op_sel:[0,0] op_sel_hi:[1,0]")
    for i in range(n):
        a.v_pk_fma_f32(V(dsts[i], 2), V(xs[i], 2), V(ws[i], 2), V(tmps[i], 2), mods="op_sel:[1,1,0] op_sel_hi:[0,1,1] neg_lo:[1,0,0]")


def rnd2(a, x0, x1, t):
    a.v_cvt_pk_bf16_f32(V(t), V(x0), V(x1))
    a.v_lshlrev_b32(V(x0), 16, V(t))
    a.v_and_b32(V(x1), "0xffff0000", V(t))


def ln_stats2(a, s1, s2, rs, nm, t0, t1, n):
    inv = f32(1.0 / n)
    for i in range(2):
        a.v_mul_f32(V(s1[i]), inv, V(s1[i]))
    for i in range(2):
        a.v_mul_f32(V(s2[i]), inv, V(s2[i]))
    for i in range(2):
        a.v_fma_f32(V(s2[i]), "-" + V(s1[i]), V(s1[i]), V(s2[i]))
    for i in range(2):
        a.v_max_f32(V(s2[i]), 0, V(s2[i]))
    rnd2(a, s2[0], s2[1], t0)
    rnd2(a, s1[0], s1[1], t1)
    for i in range(2):
        a.v_add_f32(V(s2[i]), f32(1e-5), V(s2[i]))
    rnd2(a, s2[0], s2[1], t0)
    for i in range(2):
        a.v_sqrt_f32(V(s2[i]), V(s2[i]))
    rnd2(a, s2[0], s2[1], t0)
    for i in range(2):
        a.v_rcp_f32(V(rs[i]), V(s2[i]))
    for i in range(2):
        a.v_mul_f32(V(nm[i]), "-" + V(s1[i]), V(rs[i]))


_lab = [0]


def newlab(p):
    _lab[0] += 1
    return f"L{p}_{_lab[0]}"


def spin_branch(a, loop, done_fallthrough=True):
    out = newlab("to")
    a.s_sub_u32(S(S_SPIN), S(S_SPIN), 1)
    a.s_cmp_lt_i32(S(S_SPIN), 0)
    a.s_cbranch_scc1(out)
    a.s_cbranch_vccnz(loop)
    a.label(out)


def flag_loads(a, voff, base, count, dst):
    n = (count + 63) // 64
    t = None
    for q in range(n):
        t = a.buffer_load_dwordx2(V(dst + 2 * q, 2), V(voff + q), S(R_SY, 4), base, mods="offen sc1")
    return t


def xcc_mismatch(a, voff, count, dst, sacc):
    n = (count + 63) // 64
    a.s_and_b32(S(6), S(2), 7)
    for q in range(n):
        a.v_bfe_u32(V(dst + 2 * q), V(voff + q), 7, 3)
        a.v_cmp_eq_u32(S(48, 2), S(6), V(dst + 2 * q))
        a.v_cmp_ne_u32("vcc", S(S_XCC), V(dst + 2 * q + 1))
        a.s_and_b64(S(48, 2), S(48, 2), "vcc")
        a.s_or_b64(S(sacc, 2), S(sacc, 2), S(48, 2))


def flag_addr(a, voff, count, vlane):
    n = (count + 63) // 64
    for q in range(n):
        if q:
            a.v_add_u32(V(voff + q), 64 * q, V(vlane))
            a.v_min_u32(V(voff + q), count - 1, V(voff + q))
        else:
            a.v_min_u32(V(voff), count - 1, V(vlane))
        a.v_lshlrev_b32(V(voff + q), 7, V(voff + q))


def flag_check(a, dst, count):
    n = (count + 63) // 64
    for q in range(n):
        a.v_xor_b32(V(dst + 2 * q), S(S_NONCE), V(dst + 2 * q))
    for q in range(1, n):
        a.v_or_b32(V(dst), V(dst), V(dst + 2 * q))
    a.v_cmp_ne_u32("vcc", 0, V(dst))


def poll_flags(a, voff, base, count, dst, sleep=0):
    lp = newlab("poll")
    a.label(lp)
    flag_loads(a, voff, base, count, dst)
    a.wait(vm=0)
    flag_check(a, dst, count)
    if sleep:
        a.s_sleep(sleep)
    spin_branch(a, lp)


def set_flag(a, soff, vt, sc="sc1"):
    skip = newlab("nf")
    a.s_cmp_lg_u32(S(S_WAVE), 0)
    a.s_cbranch_scc1(skip)
    a.v_mov_b32(V(vt + 2), 0)
    a.v_mov_b32(V(vt), S(S_NONCE))
    a.v_mov_b32(V(vt + 1), S(S_XCC))
    a.s_mov_b64("exec", 1)
    a.buffer_store_dwordx2(V(vt, 2), V(vt + 2), S(R_SY, 4), soff, mods=f"offen {sc}")
    a.s_mov_b64("exec", -1)
    a.label(skip)


def kgen_loads(a, s_d):
    VL = 1
    PR = 8
    a.s_lshl_b32(S(5), S(s_d), 8)
    a.v_lshl_add_u32(V(2), V(VL), 2, S(5))
    a.s_lshl_b32(S(5), S(s_d), 1)
    a.v_mov_b32(V(3), S(5))
    t_ldt = a.global_load_ushort(V(PR + 6), V(3), S(P_LDT, 2))
    for i, p in enumerate((P_ARE, P_AIM, P_BRE, P_BIM, P_CRE, P_CIM)):
        t_par = a.global_load_dword(V(PR + i), V(2), S(p, 2))
    t_dsk = a.global_load_ushort(V(PR + 7), V(3), S(P_DSK, 2))
    return t_ldt, t_dsk


def kgen(a, tks, s_lds, s_wt, hook):
    VL = 1
    PR = 8
    t_ldt, t_dsk = tks
    hook(-1)
    VW, VRA, VRB = 4, 5, 6
    a.v_lshl_add_u32(V(VW), V(VL), 3, S(s_lds))
    a.v_and_b32(V(16), 15, V(VL))
    a.v_lshrrev_b32(V(17), 4, V(VL))
    a.v_and_b32(V(18), 1, V(17))
    a.v_lshlrev_b32(V(18), 8, V(18))
    a.v_lshrrev_b32(V(19), 1, V(17))
    a.v_lshl_add_u32(V(18), V(19), 7, V(18))
    a.v_add_u32(V(18), S(s_lds), V(18))
    a.v_mul_u32_u24(V(19), 528, V(16))
    a.v_add_u32(V(VRA), V(18), V(19))
    a.v_min_u32(V(19), 8, V(16))
    a.v_mul_u32_u24(V(19), 528, V(19))
    a.v_add_u32(V(VRB), V(18), V(19))
    a.s_mov_b32(S(50), f32(LOG2E))
    a.s_mov_b32(S(51), f32(LOG2E - struct.unpack("<f", struct.pack("<f", LOG2E))[0]))
    a.s_mov_b32(S(52), f32(16.0))
    a.s_mov_b32(S(53), f32(16.0))
    a.s_mov_b32(S(54), f32(512.0))
    a.s_mov_b32(S(55), f32(512.0))
    TA1, TA2, TA3, TB3, TA4, TB4 = 224, 225, 226, 227, 228, 229
    TABO = 0
    a.s_add_u32(S(56), S(s_lds), TABO + 16)
    a.v_lshlrev_b32(V(TA1), 6, V(16))
    a.v_lshl_add_u32(V(TA1), V(17), 4, V(TA1))
    a.v_lshrrev_b32(V(TA2), 1, V(TA1))
    a.v_add_u32(V(TA1), S(56), V(TA1))
    a.v_add_u32(V(TA2), S(56), V(TA2))
    a.v_add_u32(V(TA2), 1024, V(TA2))
    a.v_cmp_eq_u32("vcc", 0, V(17))
    a.v_mov_b32(V(30), 8)
    a.v_mov_b32(V(31), 256)
    a.v_cndmask_b32(V(30), V(30), 16, "vcc")
    a.v_cndmask_b32(V(31), V(31), 8, "vcc")
    a.v_lshlrev_b32(V(TA3), 9, V(17))
    a.v_mad_u32_u24(V(TA3), V(30), V(16), V(TA3))
    a.v_add_u32(V(TA3), S(56), V(TA3))
    a.v_add_u32(V(TB3), V(TA3), V(31))
    a.v_lshl_add_u32(V(TA4), V(30), 4, V(TA3))
    a.v_add_u32(V(TB4), V(TA4), V(31))
    DT = 20
    a.wvm(t_ldt)
    a.v_lshlrev_b32(V(21), 16, V(PR + 6))
    a.v_mul_f32(V(22), S(50), V(21))
    a.v_fma_f32(V(23), V(21), S(50), "-" + V(22))
    a.v_fma_f32(V(23), V(21), S(51), V(23))
    a.v_exp_f32(V(22), V(22))
    a.v_mul_f32(V(23), f32(0.6931471805599453), V(23))
    a.v_fma_f32(V(22), V(22), V(23), V(22))
    a.v_cvt_pk_bf16_f32(V(22), V(22), V(22))
    a.v_lshlrev_b32(V(DT), 16, V(22))
    a.v_mul_f32(V(22), S(50), V(DT))
    a.v_mul_f32(V(23), "0.15915494", V(DT))
    Z = [24, 26]; B = [28, 30]; C = [32, 34]
    a.wvm(t_dsk)
    stamp(a, 1)
    hook(100)
    for base, pi in ((Z, 0), (B, 2), (C, 4)):
        for comp in range(2):
            a.v_lshlrev_b32(V(base[0] + comp), 16, V(PR + pi + comp))
            a.v_and_b32(V(base[1] + comp), "0xffff0000", V(PR + pi + comp))
    for s in range(2):
        a.v_pk_mul_f32(V(Z[s], 2), V(Z[s], 2), V(22, 2))
    for s in range(2):
        a.v_pk_mul_f32(V(B[s], 2), V(B[s], 2), V(DT, 2), mods="op_sel_hi:[1,0]")
    T = [36, 38]
    T2 = [216, 218]
    XC = [40, 42]
    W1 = [44, 46]; W16 = [48, 50]; W512 = [52, 54]
    ARG = [56, 58, 60, 62, 64, 66]
    EX = [68, 70, 72, 74, 76, 78]
    dsts = [W1[0], W1[1], W16[0], W16[1], W512[0], W512[1]]
    for s in range(2):
        a.v_pk_mul_f32(V(ARG[2 + s], 2), V(Z[s], 2), S(52, 2))
        a.v_pk_mul_f32(V(ARG[4 + s], 2), V(Z[s], 2), S(54, 2))
    cmuln(a, XC, C, B, T)
    srcs = [Z[0], Z[1], ARG[2], ARG[3], ARG[4], ARG[5]]
    for i in range(6):
        a.v_fract_f32(V(ARG[i] + 1), V(srcs[i] + 1))
    for s in range(2):
        a.v_xor_b32(V(XC[s] + 1), "0x80000000", V(XC[s] + 1))
    for i in range(6):
        a.v_exp_f32(V(EX[i]), V(srcs[i]))
        a.v_cos_f32(V(dsts[i]), V(ARG[i] + 1))
        a.v_sin_f32(V(dsts[i] + 1), V(ARG[i] + 1))
    for i in range(6):
        neg = " neg_hi:[1,0]" if i in (2, 3) else ""
        a.v_pk_mul_f32(V(dsts[i], 2), V(dsts[i], 2), V(EX[i], 2), mods="op_sel_hi:[1,0]" + neg)
    PK = [80, 82, 84, 86]
    npk = [0]

    def put_rows(rows):
        ps = []
        for row, r in rows:
            p = PK[npk[0] % 4]
            npk[0] += 1
            ps.append(p)
            a.v_cvt_pk_bf16_f32(V(p), V(r[0]), V(r[0] + 1))
            a.v_cvt_pk_bf16_f32(V(p + 1), V(r[1]), V(r[1] + 1))
        for (row, r), p in zip(rows, ps):
            a.ds_write_b64(V(VW), V(p, 2), mods=f"offset:{row*528}")

    XR0 = 25
    a.v_mov_b32(V(220), "0x3f80")
    a.v_mov_b32(V(221), "0x3f80")
    a.ds_write_b64(V(VW), V(220, 2), mods="offset:0")
    E4 = [56, 58]; E8 = [60, 62]; E12 = [64, 66]; CUR = [68, 70]
    E1024 = [72, 74]; E1536 = [76, 78]
    yprog = [(1, W1, None, None)]
    cur = W1
    for j in range(2, 16):
        dst = {4: E4, 8: E8, 12: E12}.get(j, CUR)
        yprog.append((j, dst, cur, W1))
        cur = dst
    yprog += [(16, W512, None, None), (17, CUR, W512, E4), (18, CUR, W512, E8), (19, CUR, W512, E12),
              (20, E1024, W512, W512), (21, CUR, E1024, E8), (22, E1536, E1024, W512), (23, CUR, E1536, E8), (24, CUR, E1024, E1024)]
    YA, YB, XF, XF2 = 88, 120, 152, 184
    ACC = 8
    reads = []
    for i in range(32):
        ds_, xs_, ws_, ts_, rows = [], [], [], [], []
        if i:
            ds_ += XC; xs_ += XC; ws_ += W16; ts_ += T
        rows.append((XR0 + i if i < 16 else i - 16, XC))
        if yprog:
            row, dst, x, w = yprog.pop(0)
            if x is not None:
                ds_ += dst; xs_ += x; ws_ += w; ts_ += T2
            rows.append((row, dst))
        cmuln(a, ds_, xs_, ws_, ts_)
        put_rows(rows)
        hook(i)
        if i == 14:
            for m in range(4):
                a.ds_read_b128(V(YA + 4 * m, 4), V(VRA), mods=f"offset:{16*m}")
        if i == 15:
            for m in range(4, 8):
                a.ds_read_b128(V(YA + 4 * m, 4), V(VRA), mods=f"offset:{16*m}")
        if i == 16:
            reads += [(XF + 4 * m, VRA, XR0 * 528 + 16 * m) for m in range(8)]
        if i == 23:
            reads += [(YB + 4 * m, VRB, 16 * 528 + 16 * m) for m in range(8)]
        for _ in range(2):
            if reads:
                d, ad, off = reads.pop(0)
                a.ds_read_b128(V(d, 4), V(ad), mods=f"offset:{off}")
    assert not reads and not yprog
    t_pre = a.nds
    tk = []
    for m in range(8):
        tk.append(a.ds_read_b128(V(XF2 + 4 * m, 4), V(VRA), mods=f"offset:{16*m}"))
    stamp(a, 2)
    a.v_lshlrev_b32(V(32), 16, V(PR + 7))
    a.v_cmp_eq_u32("vcc", 0, V(VL))
    a.v_cndmask_b32(V(32), 0, V(32), "vcc")
    a.v_mov_b32(V(33), 0)
    a.v_mov_b32(V(34), S(56))
    a.wds(t_pre)
    for m in range(8):
        a.v_mfma_f32_16x16x32_bf16(V(ACC, 4), V(YA + 4 * m, 4), V(XF + 4 * m, 4), V(ACC, 4) if m else 0)
        a.v_mfma_f32_16x16x32_bf16(V(ACC + 8, 4), V(YB + 4 * m, 4), V(XF + 4 * m, 4), V(ACC + 8, 4) if m else 0)
    a.wait(lgkm=0)
    for m in range(8):
        a.v_mfma_f32_16x16x32_bf16(V(ACC + 4, 4), V(YA + 4 * m, 4), V(XF2 + 4 * m, 4), V(ACC + 4, 4) if m else 0)
        a.v_mfma_f32_16x16x32_bf16(V(ACC + 12, 4), V(YB + 4 * m, 4), V(XF2 + 4 * m, 4), V(ACC + 12, 4) if m else 0)
        if m == 4:
            a.v_add_f32(V(ACC), V(ACC), V(32))
            a.v_subrev_u32(V(38), 4, V(34))
            a.ds_write_b32(V(38), V(33))
            a.ds_write_b128(V(TA1), V(ACC, 4))
            a.ds_write_b64(V(TA3), V(ACC + 8, 2), mods=f"offset:{384*4}")
            a.ds_write_b64(V(TB3), V(ACC + 10, 2), mods=f"offset:{384*4}")
    a.v_lshl_add_u32(V(35), V(VL), 4, S(56))
    a.v_lshl_add_u32(V(36), V(VL), 3, S(56))
    a.v_add_u32(V(37), 2048, V(36))
    a.v_subrev_u32(V(38), 4, V(35))
    a.v_lshl_add_u32(V(60), V(VL), 4, S(s_wt))
    a.v_lshl_add_u32(V(61), V(VL), 5, S(s_wt))
    a.v_lshl_add_u32(V(62), V(VL), 6, S(s_wt))
    R0, R0P, R1, R1P, R2, R3 = 40, 44, 48, 45, 52, 56
    a.ds_read_b128(V(R0, 4), V(35))
    t0 = a.ds_read_b32(V(R0P), V(38))
    a.ds_write2_b32(V(TA2), V(ACC + 4), V(ACC + 6), mods="offset0:0 offset1:1")
    a.ds_write_b64(V(TA4), V(ACC + 12, 2), mods=f"offset:{384*4}")
    a.ds_write_b64(V(TB4), V(ACC + 14, 2), mods=f"offset:{384*4}")
    a.ds_read2_b64(V(R1, 4), V(36), mods="offset0:128 offset1:129")
    t1 = a.ds_read_b32(V(R1P), V(34), mods=f"offset:{255*4}")
    t2 = a.ds_read2_b64(V(R2, 4), V(36), mods="offset0:192 offset1:193")
    t3 = a.ds_read2_b64(V(R3, 4), V(37), mods="offset0:0 offset1:1")

    def emit_out(region, q, vreg):
        voff = (60, 60, 61, 62)[region]
        imm = 64 + (0, 1024, 2048, 4096)[region] + 16 * q
        a.ds_write_b128(V(voff), V(vreg, 4), mods=f"offset:{imm}")

    OUT = 88
    cv = lambda d, x, y: a.v_cvt_pk_bf16_f32(V(d), V(x), V(y))
    a.wds(t0)
    cv(OUT, R0, R0P); cv(OUT + 1, R0 + 1, R0); cv(OUT + 2, R0 + 2, R0 + 1); cv(OUT + 3, R0 + 3, R0 + 2)
    emit_out(0, 0, OUT)
    a.wds(t1)
    a.v_cndmask_b32(V(R1P), V(R1), V(R1P), "vcc")
    o = OUT + 4
    cv(o + 1, R1, R1); cv(o + 2, R1 + 1, R1); cv(o + 3, R1 + 2, R1 + 1); cv(o, R1, R1P)
    emit_out(1, 0, o)
    a.wds(t2)
    A_, B_, C_ = R2, R2 + 1, R2 + 2
    o = OUT + 8
    for i, (x, y) in enumerate([(A_, A_), (A_, A_), (A_, A_), (B_, A_), (B_, B_), (B_, B_), (C_, B_), (C_, C_)]):
        cv(o + i, x, y)
    emit_out(2, 0, o); emit_out(2, 1, o + 4)
    a.wds(t3)
    A_, B_, C_ = R3, R3 + 1, R3 + 2
    o = OUT + 16
    seq = [(A_, A_)] * 5 + [(B_, A_)] + [(B_, B_)] * 6 + [(C_, B_)] + [(C_, C_)] * 3
    for i, (x, y) in enumerate(seq):
        cv(o + i, x, y)
        if i % 4 == 3:
            emit_out(3, i // 4, o + i - 3)


def w1_addr(a, t0, t1):
    a.s_mov_b32(S(48), 3456 - 224)
    for q in range(7):
        a.v_add_u32(V(t0), 256 * q, V(0))
        a.v_mul_u32_u24(V(t1), 4682, V(t0))
        a.v_lshrrev_b32(V(t1), 16, V(t1))
        a.v_lshlrev_b32(V(t0), 4, V(t0))
        a.v_mad_u32_u24(V(VW1 + q), V(t1), S(48), V(t0))


def w1_srd(a):
    a.s_lshr_b32(S(6), S(2), 4)
    a.s_mul_i32(S(6), S(6), 216)
    a.s_and_b32(S(S_D2), S(6), 15)
    a.s_sub_u32(S(6), S(6), S(S_D2))
    a.s_add_u32(S(R_W1), S(P_W1), S(6))
    a.s_addc_u32(S(R_W1 + 1), S(P_W1 + 1), 0)
    a.s_sub_u32(S(R_W1 + 2), 640 * 3456, S(6))
    a.s_mov_b32(S(R_W1 + 3), "0x20000")
    a.s_lshl_b32(S(S_M0W), S(S_WAVE), 10)


def w1_dma(a, q, perm=None):
    g = q // 7
    if perm is None or perm[g] == g:
        a.s_add_u32("m0", S(S_M0W), 4096 * q)
        a.s_mov_b32(S(63), g * 128 * 3456)
    else:
        if q % 7 == 0:
            a.s_bitcmp1_b32(S(2), 3)
            a.s_cselect_b32(S(50), perm[g], g)
            a.s_mul_i32(S(51), S(50), 7 * 4096)
            a.s_add_u32(S(51), S(51), S(S_M0W))
            a.s_mul_i32(S(50), S(50), 128 * 3456)
        a.s_add_u32("m0", S(51), 4096 * (q % 7))
        a.s_mov_b32(S(63), S(50))
    return a.buffer_load_dwordx4(V(VW1 + q % 7), S(R_W1, 4), S(63), mods="offen lds")


def w2_quarter_setup(a, vt):
    srd(a, 24, P_WS, W2P_OFF, W2P_SZ)
    a.s_lshr_b32(S(6), S(2), 3)
    a.s_mul_i32(S(6), S(6), 540 * 128)
    a.v_min_u32(V(vt), 179, V(0))
    a.v_lshl_add_u32(V(vt), V(vt), 7, S(6))


def w2_quarter_load(a, vt, i, dst):
    a.s_mov_b32(S(63), i * 180 * 128)
    a.buffer_load_dword(V(dst), V(vt), S(24, 4), S(63), mods="offen sc1")


def conv_first(a):
    S_DG = 60
    a.s_and_b32(S(6), S(2), 7)
    a.s_mul_i32(S(6), S(6), 20)
    a.s_lshr_b32(S(7), S(2), 3)
    a.s_add_u32(S(S_DG), S(6), S(7))
    a.s_lshl_b32(S(6), S(S_DG), 2)
    a.s_add_u32(S(6), S(6), S(S_WAVE))
    return kgen_loads(a, 6)


def h_store_addr(a, vj, vg, voff):
    a.v_mul_u32_u24(V(voff), 40960, V(vg))
    a.v_lshl_add_u32(V(voff), V(vj), 4, V(voff))
    srd(a, 12, P_WS, H4_OFF, H4_SZ)
    a.s_mul_i32(S(58), S(S_WAVE), 16 * 40960)
    a.s_lshl_b32(S(57), S(60), 8)
    a.s_add_u32(S(58), S(58), S(57))


def conv_role(a, ktk):
    VL = 1
    S_DG, S_KS, S_WT = 60, 61, 59
    a.s_mul_i32(S(S_KS), S(S_WAVE), KS_SZ)
    a.s_mul_i32(S(S_WT), S(S_WAVE), WT_P)
    a.s_add_u32(S(S_WT), S(S_WT), WT_L)
    XR = 232
    tk = {}

    def hook(i):
        if i < 0:
            srd(a, 8, P_U, 0, 2048 * 640 * 2)
            a.v_mul_u32_u24(V(7), 10240, V(0))
            a.s_lshl_b32(S(6), S(S_DG), 3)
            a.s_add_u32(S(7), S(6), 5120)
            w1_addr(a, 24, 25)
        else:
            for e in GATHER.get(i, []):
                tk["x"] = a.buffer_load_dwordx2(V(XR + 2 * e, 2), V(7), S(8, 4), S(6 if e < 4 else 7), mods=f"offen offset:{(e%4)*1280}")

    kgen(a, ktk, S_KS, S_WT, hook)
    stamp(a, 3)
    SR = 8
    a.v_lshlrev_b32(V(2), 6, V(0))
    a.v_mov_b32(V(3), 0)

    def stat_loads():
        for i in range(4):
            a.buffer_load_dwordx4(V(SR + 4 * i, 4), V(2), S(R_SY, 4), 0, mods=f"offen offset:{16*i} sc1")
        a.buffer_load_dword(V(24), V(3), S(R_DBG, 4), 0, mods="offen sc1")

    stat_loads()
    a.v_mov_b32(V(25), 0)
    a.s_mul_i32(S(5), S(S_WAVE), 4608)
    a.s_add_u32(S(5), S(5), UB_L)
    a.v_lshl_add_u32(V(26), V(VL), 2, S(5))
    a.ds_write_b32(V(26), V(25))
    a.ds_write_b32(V(26), V(25), mods="offset:2304")
    a.v_and_b32(V(27), 15, V(VL))
    a.v_lshrrev_b32(V(28), 4, V(VL))
    a.v_lshl_add_u32(V(29), V(27), 2, S(S_WT))
    a.ds_write_b32(V(29), V(25))
    VA, VBQ = 32, 40
    a.v_lshl_add_u32(V(VA), V(VL), 2, S(S_WT))
    for c in range(1, 8):
        a.v_add_u32(V(VA + c), 1024 * c, V(VA))
    a.v_sub_u32(V(VBQ), V(27), V(28))
    a.v_add_u32(V(VBQ), 3, V(VBQ))
    a.v_lshl_add_u32(V(VBQ), V(VBQ), 4, S(5))
    a.s_mov_b32(S(46), "0x05040100")
    a.s_mov_b32(S(47), "0x07060302")
    XS, F = 48, 64
    a.wvm(tk["x"])
    for c in range(4):
        for k in range(4):
            a.v_perm_b32(V(XS + 4 * c + k), V(XR + 2 * (2 * k + 1) + (c >> 1)), V(XR + 2 * (2 * k) + (c >> 1)), S(46 + (c & 1)))
    a.v_lshlrev_b32(V(41), 4, V(0))
    a.v_add_u32(V(41), XH_L, V(41))
    for c in range(4):
        a.ds_write_b128(V(41), V(XS + 4 * c, 4), mods=f"offset:{c*XH_P}")
    for i in range(16):
        a.v_lshlrev_b32(V(F + 2 * i), 16, V(XS + i))
        a.v_and_b32(V(F + 2 * i + 1), "0xffff0000", V(XS + i))
    a.v_and_b32(V(42), 1, V(0))
    a.v_mul_u32_u24(V(42), 2304, V(42))
    a.v_lshrrev_b32(V(43), 1, V(0))
    a.v_lshl_add_u32(V(42), V(43), 4, V(42))
    a.v_add_u32(V(42), UB_L + 256, V(42))
    h_store_addr(a, 27, 28, 255)
    for q in range(4):
        a.v_mov_b32(V(212 + q), -1)
    lp, first = newlab("st"), newlab("stf")
    a.s_branch(first)
    a.label(lp)
    stat_loads()
    a.label(first)
    a.wait(vm=0)
    a.v_readfirstlane_b32(S(S_NONCE), V(24))
    a.v_min3_u32(V(25), V(SR + 1), V(SR + 3), V(SR + 5))
    a.v_max3_u32(V(26), V(SR + 1), V(SR + 3), V(SR + 5))
    a.v_min3_u32(V(25), V(25), V(SR + 7), V(SR + 9))
    a.v_max3_u32(V(26), V(26), V(SR + 7), V(SR + 9))
    a.v_min3_u32(V(25), V(25), V(SR + 11), V(SR + 13))
    a.v_max3_u32(V(26), V(26), V(SR + 11), V(SR + 13))
    a.v_min3_u32(V(25), V(25), V(SR + 15), V(24))
    a.v_max3_u32(V(26), V(26), V(SR + 15), V(24))
    a.v_max_u32(V(26), 1, V(26))
    a.v_cmp_ne_u32("vcc", V(25), V(26))
    spin_branch(a, lp)
    stamp(a, 4)
    if POISON:
        for q in range(4):
            a.s_add_u32(S(57), S(58), 4 * q * 40960)
            t_poi = a.buffer_store_dwordx4(V(212, 4), V(255), S(12, 4), S(57), mods="offen sc1")
    RS, NM = 96, 104
    for e in range(8):
        a.v_and_b32(V(RS + e), "0xffff0000", V(SR + 2 * e))
        a.v_lshlrev_b32(V(NM + e), 16, V(SR + 2 * e))
    for e in range(8):
        a.v_rcp_f32(V(RS + e), V(RS + e))
    for k in range(4):
        a.v_pk_mul_f32(V(NM + 2 * k, 2), V(NM + 2 * k, 2), V(RS + 2 * k, 2), mods="neg_lo:[1,0] neg_hi:[1,0]")
    for c in range(4):
        for k in range(4):
            f = F + 2 * (4 * c + k)
            a.v_pk_fma_f32(V(f, 2), V(f, 2), V(RS + 2 * k, 2), V(NM + 2 * k, 2))
        for k in range(4):
            f = F + 2 * (4 * c + k)
            a.v_cvt_pk_bf16_f32(V(XS + 4 * c + k), V(f), V(f + 1))
        a.ds_write_b128(V(42), V(XS + 4 * c, 4), mods=f"offset:{c*4608}")
    OPS = [48, 112]
    ACC = 216
    XQ, XFL = 8, 176
    subs = [(g, h) for g in range(4) for h in range(2)]

    def loadsA(si):
        g, h = subs[si]
        base = OPS[si % 2]
        out = []
        for c in range(8):
            o = 8 + 64 * g + 8 * h
            out.append(("ds_read2_b32", (V(base + 4 * c, 2), V(VA + c)), f"offset0:{o} offset1:{o-2}"))
            out.append(("ds_read2_b32", (V(base + 4 * c + 2, 2), V(VA + c)), f"offset0:{o-4} offset1:{o-6}"))
        return out

    def loadsB(si):
        g, h = subs[si]
        base = OPS[si % 2]
        par = 1 - h
        return [("ds_read_b128", (V(base + 32 + 4 * c, 4), V(VBQ)), f"offset:{par*2304 + (13 + 16*c - 4*g)*16}") for c in range(8)]

    a.s_mul_i32(S(6), S(S_WAVE), XH_P)
    a.s_add_u32(S(6), S(6), XH_L)
    a.v_lshlrev_b32(V(44), 5, V(27))
    a.v_lshl_add_u32(V(44), V(28), 3, V(44))
    a.v_add_u32(V(44), S(6), V(44))
    flag_addr(a, 45, 96, VL)
    w1_srd(a)
    w2_quarter_setup(a, 47)
    a.wait(lgkm=0)
    a.s_barrier()
    stamp(a, 5)
    for op, args, mods in loadsB(0) + loadsA(0):
        a.I(op, *args, mods=mods)
    started = set()
    t_rp = None
    nq = 0
    for si in range(8):
        base = OPS[si % 2]
        nxt = []
        if si < 7:
            la, lb = loadsA(si + 1), loadsB(si + 1)
            for c in range(8):
                nxt += [la[2 * c], la[2 * c + 1], lb[c]]
        if si == 0:
            nxt += [("ds_read_b64", (V(XQ + 2 * T, 2), V(44)), f"offset:{512*T}") for T in range(8)]
        extra = []
        if si == 1:
            for i in range(16):
                extra.append(("v_lshlrev_b32", (V(XFL + 2 * i), 16, V(XQ + i)), ""))
                extra.append(("v_and_b32", (V(XFL + 2 * i + 1), "0xffff0000", V(XQ + i)), ""))
        a.wait(lgkm=0)
        if si == 7:
            t_rp = flag_loads(a, 45, S(62), 96, 208)
        if si == 4:
            a.s_mov_b32(S(62), FRP)
        order = [(c, gp) for c in range(8) for gp in range(8 - c)]
        for n, (c, gp) in enumerate(order):
            T = c + gp
            a.v_mfma_f32_16x16x32_bf16(V(ACC + 4 * T, 4), V(base + 4 * c, 4), V(base + 32 + 4 * gp, 4), V(ACC + 4 * T, 4) if T in started else 0)
            started.add(T)
            if nxt:
                op, args, mods = nxt.pop(0)
                a.I(op, *args, mods=mods)
            if extra:
                op, args, mods = extra.pop(0)
                a.I(op, *args, mods=mods)
            if n in (25, 28, 31, 34) and nq < Q_EARLY:
                w1_dma(a, nq); nq += 1
            if (si, n) in W2Q:
                w2_quarter_load(a, 47, W2Q.index((si, n)), 29)
    assert nq == Q_EARLY
    stamp(a, 6)
    for T in range(8):
        for hh in range(2):
            r = ACC + 4 * T + 2 * hh
            a.v_pk_add_f32(V(r, 2), V(r, 2), V(XFL + 4 * T + 2 * hh, 2))
        p = 48 + 2 * T
        a.v_cvt_pk_bf16_f32(V(p), V(ACC + 4 * T), V(ACC + 4 * T + 1))
        a.v_cvt_pk_bf16_f32(V(p + 1), V(ACC + 4 * T + 2), V(ACC + 4 * T + 3))
        a.ds_write_b64(V(44), V(p, 2), mods=f"offset:{512*T}")
    a.v_bfe_u32(V(8), V(VL), 2, 2)
    a.v_mul_u32_u24(V(8), XH_P, V(8))
    a.v_lshl_add_u32(V(8), V(28), 6, V(8))
    a.v_and_b32(V(9), 3, V(VL))
    a.v_lshl_add_u32(V(8), V(9), 3, V(8))
    a.s_lshl_b32(S(6), S(S_WAVE), 10)
    a.s_add_u32(S(6), S(6), XH_L)
    a.v_add_u32(V(8), S(6), V(8))
    if POISON:
        a.wvm(t_poi)
    a.wait(lgkm=0)
    a.s_barrier()
    HO = 64
    tks = []
    for i in range(4):
        a.ds_read_b64_tr_b16(V(HO + 4 * i, 2), V(8), mods=f"offset:{256*i}")
        tks.append(a.ds_read_b64_tr_b16(V(HO + 4 * i + 2, 2), V(8), mods=f"offset:{256*i+32}"))
    for i in range(4):
        a.wds(tks[i])
        a.s_add_u32(S(7), S(58), 4 * i * 40960)
        t_st = a.buffer_store_dwordx4(V(HO + 4 * i, 4), V(255), S(12, 4), S(7), mods="offen sc1")
    a.s_lshl_b32(S(6), S(2), 7)
    a.s_add_u32(S(6), S(6), FH)
    if not POISON:
        a.wvm(t_st)
    a.s_barrier()
    set_flag(a, S(6), 10)
    stamp(a, 7)
    a.nvm -= 1
    for q in range(Q_EARLY, 35):
        w1_dma(a, q)
    a.wvm(t_rp)
    ok = newlab("rpok")
    flag_check(a, 208, 96)
    a.s_cbranch_vccz(ok)
    poll_flags(a, 45, S(62), 96, 208)
    a.label(ok)


def repack_addr(a, vo):
    a.s_mov_b32(S(48), 1280 - 160)
    for i in range(5):
        a.v_add_u32(V(4), 64 * i, V(1))
        a.v_mul_u32_u24(V(3), 6554, V(4))
        a.v_lshrrev_b32(V(3), 16, V(3))
        a.v_lshlrev_b32(V(4), 4, V(4))
        a.v_mad_u32_u24(V(vo + i), V(3), S(48), V(4))
    a.v_lshrrev_b32(V(4), 2, V(1))
    a.v_mul_u32_u24(V(4), 160, V(4))
    a.v_and_b32(V(3), 3, V(1))
    a.v_lshl_add_u32(V(vo + 5), V(3), 3, V(4))


def repack_load(a, s_idx, s_keep, vo, vd, rsrc):
    a.s_and_b32(S(s_keep), S(s_idx), 7)
    a.s_lshr_b32(S(s_keep + 1), S(s_idx), 3)
    a.s_mul_i32(S(6), S(s_keep + 1), 32 * 1280)
    a.s_mul_i32(S(7), S(s_keep), 160)
    a.s_add_u32(S(6), S(6), S(7))
    return [a.buffer_load_dwordx4(V(vd + 4 * i, 4), V(vo + i), S(rsrc, 4), S(6), mods="offen") for i in range(5)]


def repack_proc(a, s_keep, vo, vd, tks, s_lds):
    a.v_lshl_add_u32(V(4), V(1), 4, S(s_lds))
    a.v_add_u32(V(5), S(s_lds), V(vo + 5))
    a.v_lshlrev_b32(V(7), 4, V(1))
    a.s_mul_i32(S(49), S(s_keep), 54)
    a.s_add_u32(S(49), S(49), S(s_keep + 1))
    a.s_mul_i32(S(49), S(49), 5 * 1024)
    a.s_add_u32(S(50), S(49), 4096)
    for i in range(5):
        a.wvm(tks[i])
        a.ds_write_b128(V(4), V(vd + 4 * i, 4), mods=f"offset:{1024*i}")
    if vd == 104:
        stamp(a, 4)
    rt = []
    for t in range(5):
        a.ds_read_b64_tr_b16(V(vd + 4 * t, 2), V(5), mods=f"offset:{32*t}")
        rt.append(a.ds_read_b64_tr_b16(V(vd + 4 * t + 2, 2), V(5), mods=f"offset:{32*t+16*160}"))
    for t in range(5):
        a.wds(rt[t])
        a.buffer_store_dwordx4(V(vd + 4 * t, 4), V(7), S(12, 4), S(49 if t < 4 else 50), mods=f"offen offset:{1024*(t%4)} sc1")


def aux_first(a):
    VL = 1
    S_AI, S_O = 60, 57
    a.s_sub_u32(S(S_AI), S(2), 160)
    a.s_mul_i32(S(S_O), S(S_AI), 3)
    a.s_add_u32(S(S_O), S(S_O), S(S_WAVE))
    a.s_cmp_eq_u32(S(S_WAVE), 3)
    a.s_cselect_b32(S(S_O), 4096, S(S_O))
    a.v_lshrrev_b32(V(2), 3, V(VL))
    a.v_mul_u32_u24(V(2), 1280, V(2))
    a.v_and_b32(V(3), 7, V(VL))
    a.v_lshl_add_u32(V(2), V(3), 4, V(2))
    a.s_mul_i32(S(6), S(S_O), 10240)
    a.wait(lgkm=0)
    srd(a, 8, P_U, 0, 2048 * 640 * 2)
    return [a.buffer_load_dwordx4(V(16 + 4 * i, 4), V(2), S(8, 4), S(6), mods=f"offen offset:{128*i}") for i in range(10)]


def code_prefetch(a):
    a.s_getpc_b64(S(6, 2))
    a.label("L_PC")
    a.s_sub_u32(S(6), S(6), "L_PC-" + NAME + "_kernel")
    a.s_subb_u32(S(7), S(7), 0)
    a.v_lshlrev_b32(V(2), 7, V(1))
    for i in range(NCODE):
        a.v_min_u32(V(3), "L_END-" + NAME + "_kernel", V(2))
        a.global_load_dword(V(244 + i), V(3), S(6, 2))
        a.v_add_u32(V(2), 8192, V(2))


def aux_role(a, xt):
    VL = 1
    S_AI, S_GW, S_KS, S_O = 60, 61, 62, 57
    XB = 16
    a.s_lshl_b32(S(S_GW), S(S_AI), 2)
    a.s_add_u32(S(S_GW), S(S_GW), S(S_WAVE))
    a.s_mul_i32(S(S_KS), S(S_WAVE), KS_SZ)
    repack_addr(a, 64)
    a.v_mov_b32(V(12), MODE_L)
    notag = newlab("nt")
    a.s_cmp_lg_u32(S(S_WAVE), 3)
    a.s_cbranch_scc1(notag)
    lp = newlab("nn")
    save = a.nvm
    a.v_mov_b32(V(11), 0)
    a.label(lp)
    a.buffer_load_dword(V(13), V(11), S(R_DBG, 4), 0, mods="offen sc1")
    a.wait(vm=0)
    a.v_cmp_eq_u32("vcc", 0, V(13))
    spin_branch(a, lp)
    a.ds_write_b32(V(12), V(13))
    a.nvm = save
    a.label(notag)
    srd(a, 24, P_W2, 0, 1728 * 640 * 2)
    t2 = repack_load(a, S_GW, 4, 64, 104, 24)
    a.s_add_u32(S(56), S(S_AI), 384)
    a.s_cmp_eq_u32(S(S_WAVE), 3)
    a.s_cselect_b32(S(56), S(56), 4096)
    t3 = repack_load(a, 56, 58, 64, 72, 24)
    w1_addr(a, 4, 5)
    srd(a, 28, P_W1, 0, 640 * 1728 * 2)
    srd(a, 12, P_WS, W2P_OFF, W2P_SZ)
    a.v_lshlrev_b32(V(6), 7, V(VL))
    a.s_lshl_b32(S(6), S(S_GW), 13)
    a.buffer_load_dword(V(238), V(6), S(28, 4), S(6), mods="offen")
    a.s_mov_b32(S(46), "0x3f803f80")
    for i in range(10):
        a.wvm(xt[i])
        for q in range(4):
            x = V(XB + 4 * i + q)
            first = (i == 0 and q < 2)
            a.v_dot2_f32_bf16(V(8 + (q & 1)), x, S(46), 0 if first else V(8 + (q & 1)))
            a.v_dot2_f32_bf16(V(10 + (q & 1)), x, x, 0 if first else V(10 + (q & 1)))
    a.wait(lgkm=0)
    stamp(a, 7)
    a.s_barrier()
    a.ds_read_b32(V(15), V(12))
    a.v_add_f32(V(8), V(8), V(9))
    a.v_add_f32(V(10), V(10), V(11))
    for m in ("quad_perm:[1,0,3,2]", "quad_perm:[2,3,0,1]", "row_half_mirror"):
        a.v_add_f32_dpp(V(8), V(8), V(8), mods=f"{m} row_mask:0xf bank_mask:0xf")
        a.v_add_f32_dpp(V(10), V(10), V(10), mods=f"{m} row_mask:0xf bank_mask:0xf")
    inv = f32(1.0 / 640)
    a.v_mul_f32(V(8), inv, V(8))
    a.v_mul_f32(V(10), inv, V(10))
    a.v_fma_f32(V(10), "-" + V(8), V(8), V(10))
    a.v_max_f32(V(10), 0, V(10))
    a.v_cvt_pk_bf16_f32(V(9), V(10), V(10))
    a.v_lshlrev_b32(V(10), 16, V(9))
    a.v_add_f32(V(10), f32(1e-5), V(10))
    a.v_cvt_pk_bf16_f32(V(9), V(10), V(10))
    a.v_lshlrev_b32(V(10), 16, V(9))
    a.v_sqrt_f32(V(10), V(10))
    a.v_cvt_pk_bf16_f32(V(14), V(8), V(10))
    a.v_and_b32(V(3), 7, V(VL))
    a.v_cmp_eq_u32("vcc", 0, V(3))
    a.v_mov_b32(V(9), "0x40000000")
    a.v_cndmask_b32(V(9), V(9), V(VL), "vcc")
    a.s_lshl_b32(S(6), S(S_O), 6)
    a.s_cmp_ge_u32(S(S_O), 256)
    a.s_cselect_b32(S(6), "0x40000000", S(6))
    a.wait(lgkm=0)
    a.v_readfirstlane_b32(S(S_NONCE), V(15))
    a.buffer_store_dwordx2(V(14, 2), V(9), S(R_SY, 4), S(6), mods="offen sc1")
    stamp(a, 1)
    repack_proc(a, 4, 64, 104, t2, S_KS)
    join = newlab("aj")
    a.s_cmp_ge_u32(S(56), 432)
    a.s_cbranch_scc1(join)
    repack_proc(a, 58, 64, 72, t3, S_KS)
    a.label(join)
    stamp(a, 5)
    a.s_lshr_b32(S(5), S(S_AI), 3)
    a.s_lshl_b32(S(5), S(5), 15)
    a.v_lshlrev_b32(V(2), 7, V(0))

    def w1pf(i):
        a.s_add_u32(S(6), S(5), i * 3072 * 128)
        a.buffer_load_dword(V(238 + i), V(2), S(28, 4), S(6), mods="offen")

    NB = int(os.environ.get("W1PFB", "2"))
    for i in range(NB):
        w1pf(i)
    w1_srd(a)
    a.wait(vm=NB)
    stamp(a, 6)
    a.s_barrier()
    a.s_lshl_b32(S(6), S(S_AI), 7)
    a.s_add_u32(S(6), S(6), FRP)
    set_flag(a, S(6), 10)
    stamp(a, 2)
    for i in range(NB, 6):
        w1pf(i)
    for q in range(35):
        w1_dma(a, q)
    flag_addr(a, 45, 96, VL)
    a.s_mov_b32(S(62), FRP)
    poll_flags(a, 45, S(62), 96, 208)
    stamp(a, 3)
    w2_quarter_setup(a, 47)
    for i in range(3):
        w2_quarter_load(a, 47, i, 238)
    srd(a, 28, P_WS, H1_OFF, H1_SZ)
    a.s_mul_i32(S(5), S(S_AI), 576 * 128)
    a.v_min_u32(V(2), 191, V(0))
    a.v_lshlrev_b32(V(2), 7, V(2))
    for i in range(3):
        a.s_add_u32(S(6), S(5), i * 192 * 128)
        a.buffer_load_dword(V(239), V(2), S(28, 4), S(6), mods="offen sc1")


def gemms(a):
    VL = 1
    S_CT, S_TB, S_CT2, S_RB2 = 56, 57, 58, 59
    R_H, R_X, R_W2 = 8, 12, 20
    t_dma = a.nvm
    a.s_mov_b64(S(S_MIS, 2), 0)
    xcc_mismatch(a, 45, 96, 208, S_MIS)
    a.s_and_b32(S(4), S(2), 7)
    a.s_lshl_b32(S(5), S(4), 1)
    a.s_bfe_u32(S(6), S(2), "0x10003")
    a.s_add_u32(S(60), S(5), S(6))
    a.s_lshr_b32(S(S_CT), S(2), 4)
    a.s_lshl_b32(S(S_TB), S(60), 2)
    a.s_add_u32(S(S_TB), S(S_TB), S(S_WAVE))
    a.s_lshl_b32(S(5), S(60), 1)
    a.s_bfe_u32(S(6), S(2), "0x10004")
    a.s_add_u32(S(S_RB2), S(5), S(6))
    a.s_lshr_b32(S(S_CT2), S(2), 5)
    a.v_lshlrev_b32(V(5), 4, V(VL))
    a.v_and_b32(V(2), 15, V(VL))
    a.v_lshrrev_b32(V(3), 4, V(VL))
    a.s_mul_i32(S(7), S(S_CT2), 270 * 1024)
    srd2(a, R_W2, P_WS, W2P_OFF, S(7), 270 * 1024)
    a.s_mul_i32(S(46), S(S_WAVE), 5 * 1024)
    ACC, SQ, BB = 16, 72, 96
    W2V = 192

    def w2dst(s, t):
        if s < 10:
            return A(56 + 20 * s + 4 * t, 4)
        if s < 12:
            return A(20 * (s - 10) + 4 * t, 4)
        return V(W2V + 20 * (s - 12) + 4 * t, 4)

    def wload(n):
        s, t = divmod(n, 5)
        if t == 0:
            a.s_add_u32(S(49), S(46), s * 20 * 1024)
        if t == 4:
            a.s_add_u32(S(49), S(49), 4096)
        a.buffer_load_dwordx4(w2dst(s, t), V(5), S(R_W2, 4), S(49), mods=f"offen offset:{1024*(t%4)} sc1")

    a.s_mul_i32(S(7), S(S_TB), 110592)
    srd2(a, R_X, P_WS, H1_OFF, S(7), 110592)
    a.s_mul_i32(S(47), S(S_CT), 27 * 256)
    a.v_min_u32(V(94), 53, V(VL))
    a.v_lshl_add_u32(V(94), V(94), 7, S(47))
    wq = list(range(70))
    NPRE = int(os.environ.get("NPRE", "20"))
    for _ in range(NPRE):
        wload(wq.pop(0))
    a.v_lshrrev_b32(V(6), 2, V(VL))
    a.v_mul_u32_u24(V(6), 224, V(6))
    a.v_and_b32(V(7), 3, V(VL))
    a.v_lshl_add_u32(V(6), V(7), 3, V(6))
    a.v_add_u32(V(6), S(S_D2), V(6))
    a.v_add_u32(V(7), 9 * 7168, V(6))
    a.v_add_u32(V(4), 18 * 7168, V(6))
    VAB = [6, 7, 4]
    a.v_mul_u32_u24(V(8), 224, V(0))
    a.v_add_u32(V(8), S(S_D2), V(8))
    a.v_and_b32(V(9), 127, V(0))
    a.v_mul_u32_u24(V(9), 224, V(9))
    a.v_add_u32(V(9), S(S_D2), V(9))
    a.v_add_u32(V(9), 512 * 224, V(9))
    a.v_mov_b32(V(10), "0x3f80")
    a.v_mov_b32(V(11), 0)
    a.wvm(t_dma)
    a.s_barrier()
    a.ds_write_b64(V(8), V(10, 2), mods="offset:216")
    a.ds_write_b64(V(8), V(10, 2), mods=f"offset:{256*224+216}")
    a.ds_write_b64(V(9), V(10, 2), mods="offset:216")
    skip = newlab("ph")
    a.s_cmp_lg_u32(S(S_WAVE), 0)
    a.s_cbranch_scc1(skip)
    flag_addr(a, 8, 160, VL)
    a.s_mov_b32(S(47), FH)
    poll_flags(a, 8, S(47), 160, 16)
    xcc_mismatch(a, 8, 160, 16, S_MIS)
    a.s_cmp_lg_u64(S(S_MIS, 2), 0)
    a.s_cselect_b32(S(6), 1, 0)
    a.v_mov_b32(V(8), MODE_L)
    a.v_mov_b32(V(9), S(6))
    a.ds_write_b32(V(8), V(9))
    a.label(skip)
    a.s_mul_i32(S(7), S(S_TB), 40960)
    srd2(a, R_H, P_WS, H4_OFF, S(7), 40960)

    def areads(ks):
        out = []
        for t in range(7):
            for hh in range(2):
                out.append((A(28 * (ks % 2) + 4 * t + 2 * hh, 2), V(VAB[ks // 9]), f"offset:{(ks%9)*7168 + hh*3584 + 32*t}"))
        return out

    a.s_mov_b32(S(63), 64)
    ON = 12
    for i in range(4):
        a.v_mov_b32(V(ON + i), "0x3f803f80")
    a.s_mul_i32(S(47), S(S_WAVE), 5 * 7168)
    a.v_add_u32(V(80), S(47), V(6))
    a.s_lshl_b32(S(47), S(S_WAVE), 9)
    a.s_add_u32(S(47), S(47), CSP_L)
    a.v_lshl_add_u32(V(81), V(3), 4, S(47))
    a.wait(lgkm=0)
    a.s_barrier()
    stamp(a, 8)
    a.label("L_G1")
    btk = {}

    def bload(n):
        if n % 4 == 0:
            a.s_mov_b32(S(48), n * 1024)
        btk[n] = a.buffer_load_dwordx4(V(BB + 4 * n, 4), V(5), S(R_H, 4), S(48), mods=f"offen offset:{(n%4)*1024} sc1")

    def touch(n):
        a.buffer_load_dword(V(95), V(94), S(R_X, 4), 0, mods="offen sc1")

    queue = [(bload, n) for n in range(40)] + [(wload, n) for n in wq if n < 50]
    wq = [n for n in wq if n >= 50]
    for _ in range(12):
        f, n = queue.pop(0); f(n)
    a.s_cmp_lg_u32(S(63), 64)
    a.s_cbranch_scc1("L_G1B")
    for kk in range(6):
        if kk < 5:
            for t in range(7):
                for hh in range(2):
                    a.ds_read_b64_tr_b16(A(28 * (kk % 2) + 4 * t + 2 * hh, 2), V(80), mods=f"offset:{kk*7168 + hh*3584 + 32*t}")
        if kk:
            a.wait(lgkm=14 if kk < 5 else 0)
            for t in range(7):
                a.v_mfma_f32_16x16x32_bf16(V(ACC + 4 * t, 4), A(28 * ((kk - 1) % 2) + 4 * t, 4), V(ON, 4), V(ACC + 4 * t, 4) if kk > 1 else 0)
    a.s_mov_b32("exec_lo", "0x00010001")
    a.s_mov_b32("exec_hi", "0x00010001")
    for t in range(7):
        a.ds_write_b128(V(81), V(ACC + 4 * t, 4), mods=f"offset:{64*t}")
    a.s_mov_b64("exec", -1)
    a.label("L_G1B")
    for d, ad, mods in areads(0):
        a.ds_read_b64_tr_b16(d, ad, mods=mods)
    for ks in range(20):
        if ks == 4:
            a.s_cmp_lg_u32(S(63), 64)
            a.s_cbranch_scc1("L_G1C")
            a.s_barrier()
            a.label("L_G1C")
            a.v_and_b32(V(9), 31, V(VL))
            a.v_lshlrev_b32(V(9), 4, V(9))
            a.v_add_u32(V(9), CSP_L, V(9))
            for w in range(4):
                a.ds_read_b128(V(96 + 4 * w, 4), V(9), mods=f"offset:{512*w}")
            a.s_lshl_b32(S(47), S(S_WAVE), 9)
            a.v_add_u32(V(9), S(47), V(9))
        if ks == 5:
            for hh in range(4):
                a.v_add_f32(V(96 + hh), V(96 + hh), V(100 + hh))
                a.v_add_f32(V(104 + hh), V(104 + hh), V(108 + hh))
            for hh in range(4):
                a.v_add_f32(V(96 + hh), V(96 + hh), V(104 + hh))
            a.ds_write_b128(V(9), V(96, 4), mods=f"offset:{CS_L-CSP_L}")
        b = BB + 8 * ks
        a.wvm(btk[2 * ks + 1])
        a.v_swap_b32(V(b + 2), V(b + 4))
        a.v_swap_b32(V(b + 3), V(b + 5))
        nxt = areads(ks + 1) if ks < 19 else []
        a.wait(lgkm=0)
        nl = int(os.environ.get("NL", "3"))
        if ks == 17:
            queue += [(wload, n) for n in range(60, 70)]
        for p in range(2):
            a.v_mfma_f32_16x16x32_bf16(V(SQ + 4 * p, 4), V(b + 4 * p, 4), V(b + 4 * p, 4), V(SQ + 4 * p, 4) if ks else 0)
            if nxt:
                d, ad, mods = nxt.pop(0)
                a.ds_read_b64_tr_b16(d, ad, mods=mods)
        for t in range(7):
            for p in range(2):
                acc = ACC + 8 * t + 4 * p
                a.v_mfma_f32_16x16x32_bf16(V(acc, 4), A(28 * (ks % 2) + 4 * t, 4), V(b + 4 * p, 4), V(acc, 4) if ks else 0)
                if nxt:
                    d, ad, mods = nxt.pop(0)
                    a.ds_read_b64_tr_b16(d, ad, mods=mods)
                if p == 1 and t % 2 == 0 and nl and queue:
                    f, n = queue.pop(0); f(n)
                    nl -= 1
    stamp(a, 9)
    queue += [(wload, n) for n in range(50, 60)]
    while queue:
        f, n = queue.pop(0); f(n)
    CSR = 96
    for t in range(7):
        a.ds_read_b128(V(CSR + 4 * t, 4), V(81), mods=f"offset:{CS_L-CSP_L+64*t}")
    a.v_mov_b32(V(14), MODE_L)
    a.ds_read_b32(V(14), V(14))
    a.v_and_b32(V(10), 3, V(2))
    a.v_lshrrev_b32(V(11), 2, V(2))
    a.v_lshl_add_u32(V(11), V(11), 4, V(2))
    a.v_lshlrev_b32(V(11), 2, V(11))
    a.v_lshlrev_b32(V(12), 2, V(2))
    a.v_add_u32(V(12), 192, V(12))
    S1 = [124, 125]; S2 = [82, 83]
    for r in (1, 2, 3):
        a.v_cmp_eq_u32("vcc", r, V(10))
        for p in range(2):
            a.v_cndmask_b32(V(SQ + 4 * p), V(SQ + 4 * p), V(SQ + 4 * p + r), "vcc")
    for p in range(2):
        a.ds_bpermute_b32(V(S2[p]), V(11), V(SQ + 4 * p))
        a.ds_bpermute_b32(V(S1[p]), V(12), V(ACC + 8 * 6 + 4 * p))
    a.s_mul_i32(S(47), S(S_CT), 27 * 256)
    a.s_add_u32(S(48), S(47), 4096)
    a.v_cmp_eq_u32("vcc", 3, V(3))
    a.v_mov_b32(V(13), "0x40000000")
    a.v_cndmask_b32(V(13), V(5), V(13), "vcc")
    a.wait(lgkm=0)
    if POISON:
        a.v_cmp_u_f32("vcc", V(S2[0]), V(S2[1]))
        a.s_cbranch_vccnz("L_G1RETRY")
        a.label("L_G1OK")
    RS = [84, 86]; NM = [88, 90]
    ln_stats2(a, S1, S2, RS, NM, 92, 93, 640)
    OB = 128
    a.v_readfirstlane_b32(S(61), V(14))
    if os.environ.get("FORCESLOW", "0") == "1":
        a.s_mov_b32(S(61), 1)
    a.s_lshl_b32(S(62), S(60), 4)
    a.s_add_u32(S(62), S(62), S(S_CT))
    a.s_lshl_b32(S(62), S(62), 7)
    a.s_add_u32(S(62), S(62), FH1)
    slow, done = newlab("slow"), newlab("done")
    a.s_cmp_lg_u32(S(61), 0)
    a.s_cbranch_scc1(slow)
    nvm0 = a.nvm
    for variant in ("", "sc1"):
        a.nvm = nvm0
        for t in range(7):
            ob = OB + 4 * t
            for p in range(2):
                for hh in range(2):
                    r = ACC + 8 * t + 4 * p + 2 * hh
                    a.v_pk_mul_f32(V(r, 2), V(r, 2), V(RS[p], 2), mods="op_sel_hi:[1,0]")
            for p in range(2):
                for hh in range(2):
                    r = ACC + 8 * t + 4 * p + 2 * hh
                    a.v_pk_fma_f32(V(r, 2), V(CSR + 4 * t + 2 * hh, 2), V(NM[p], 2), V(r, 2), mods="op_sel_hi:[1,0,1]")
            for p in range(2):
                for hh in range(2):
                    r = ACC + 8 * t + 4 * p + 2 * hh
                    a.v_cvt_pk_bf16_f32(V(ob + 2 * p + hh), V(r), V(r + 1))
            for i in range(4):
                a.v_pk_max_i16(V(ob + i), V(ob + i), 0)
            t_st = a.buffer_store_dwordx4(V(ob, 4), V(13 if t == 6 else 5), S(R_X, 4), S(47 if t < 4 else 48), mods=f"offen offset:{1024*(t%4)} {variant}")
        if variant == "":
            touch(0)
            a.wait(vm=1)
        else:
            a.wait(vm=0)
        a.s_barrier()
        set_flag(a, S(62), 10, variant)
        if variant == "":
            a.s_branch(done)
            a.label(slow)
    a.label(done)
    stamp(a, 10)
    while queue:
        f, n = queue.pop(0); f(n)
    HR = 232
    a.s_lshl_b32(S(4), S(S_RB2), 1)
    a.s_lshr_b32(S(5), S(S_WAVE), 1)
    a.s_add_u32(S(5), S(5), S(4))
    a.s_mul_i32(S(7), S(5), 40960)
    srd2(a, R_H, P_WS, H4_OFF, S(7), 40960)
    a.s_mul_i32(S(47), S(S_CT2), 20 * 256)
    a.s_and_b32(S(5), S(S_WAVE), 1)
    a.s_lshl_b32(S(5), S(5), 3)
    a.s_add_u32(S(47), S(47), S(5))
    a.s_add_u32(S(48), S(47), 4096)
    for t in range(5):
        a.buffer_load_dwordx2(V(HR + 2 * t, 2), V(5), S(R_H, 4), S(47 if t < 4 else 48), mods=f"offen offset:{1024*(t%4)} sc1")
    skip = newlab("p1")
    a.s_cmp_lg_u32(S(S_WAVE), 0)
    a.s_cbranch_scc1(skip)
    flag_addr(a, 8, 16, VL)
    a.s_lshl_b32(S(47), S(60), 11)
    a.s_add_u32(S(47), S(47), FH1)
    poll_flags(a, 8, S(47), 16, 12)
    a.s_cmp_eq_u32(S(61), 0)
    a.s_cbranch_scc1(skip)
    a.I("buffer_inv", mods="sc1")
    a.wait(vm=0)
    a.label(skip)
    RB = [24, 28]
    for p in range(2):
        a.s_add_u32(S(5), S(4), p)
        a.s_mul_i32(S(7), S(5), 110592)
        srd2(a, RB[p], P_WS, H1_OFF, S(7), 110592)
    a.s_lshl_b32(S(47), S(S_WAVE), 11)
    a.s_barrier()
    stamp(a, 11)
    ND = 6
    htk = {}

    def hload(n):
        s, r = divmod(n, 4)
        p, hh = divmod(r, 2)
        if r == 0:
            a.s_add_u32(S(48), S(47), s * 8192)
        htk[n] = a.buffer_load_dwordx4(V(BB + 16 * (s % ND) + 8 * p + 4 * hh, 4), V(5), S(RB[p], 4), S(48), mods=f"offen offset:{1024*hh} {HLD}")

    NS = 14
    nissued = 0
    for _ in range(12):
        hload(nissued); nissued += 1
    for s in range(NS):
        a.wvm(htk[4 * s + 3])
        b = BB + 16 * (s % ND)
        for p in range(2):
            a.v_swap_b32(V(b + 8 * p + 2), V(b + 8 * p + 4))
            a.v_swap_b32(V(b + 8 * p + 3), V(b + 8 * p + 5))
        n = 0
        lim = min(4 * NS, 4 * (s + ND))
        budget = 5
        for t in range(5):
            for bt in range(4):
                acc = ACC + (bt * 5 + t) * 4
                a.v_mfma_f32_16x16x32_bf16(V(acc, 4), w2dst(s, t), V(b + 4 * bt, 4), V(acc, 4) if s else 0)
                n += 1
                if n % 4 == 2 and nissued < lim and budget:
                    hload(nissued); nissued += 1; budget -= 1
    assert nissued == 4 * NS
    stamp(a, 12)
    a.s_mul_i32(S(48), S(S_WAVE), 20 * 1024)
    a.v_add_u32(V(6), S(48), V(5))
    for bt in range(4):
        for t in range(5):
            a.ds_write_b128(V(6), V(ACC + (bt * 5 + t) * 4, 4), mods=f"offset:{(bt*5+t)*1024}")
    a.v_add_u32(V(7), S(46), V(5))
    a.v_add_u32(V(8), 40 * 1024, V(7))
    srd(a, 12, P_OUT, 0, 2048 * 640 * 2)
    a.v_mul_u32_u24(V(9), 1280, V(2))
    a.v_lshl_add_u32(V(9), V(3), 3, V(9))
    a.s_lshl_b32(S(48), S(S_RB2), 2)
    a.s_add_u32(S(48), S(48), S(S_WAVE))
    a.s_mul_i32(S(48), S(48), 16 * 1280)
    a.s_mul_i32(S(49), S(S_CT2), 160)
    a.s_add_u32(S(48), S(48), S(49))
    a.wait(lgkm=0)
    a.s_barrier()
    RD = 96
    rt = []
    for t in range(5):
        for w in range(4):
            x = a.ds_read_b128(V(RD + (t * 4 + w) * 4, 4), V(7 if w < 2 else 8), mods=f"offset:{(w%2)*20*1024 + t*1024}")
        rt.append(x)
    for t in range(5):
        a.wds(rt[t])
        r = RD + t * 16
        for hh in range(2):
            a.v_pk_add_f32(V(r + 2 * hh, 2), V(r + 2 * hh, 2), V(r + 4 + 2 * hh, 2))
            a.v_pk_add_f32(V(r + 8 + 2 * hh, 2), V(r + 8 + 2 * hh, 2), V(r + 12 + 2 * hh, 2))
        for hh in range(2):
            a.v_pk_add_f32(V(r + 2 * hh, 2), V(r + 2 * hh, 2), V(r + 8 + 2 * hh, 2))
        for hh in range(2):
            a.v_cvt_pk_bf16_f32(V(r + 4 + hh), V(r + 2 * hh), V(r + 2 * hh + 1))
        for hh in range(2):
            a.v_lshlrev_b32(V(r + 2 * hh), 16, V(r + 4 + hh))
            a.v_and_b32(V(r + 2 * hh + 1), "0xffff0000", V(r + 4 + hh))
            a.v_lshlrev_b32(V(r + 8 + 2 * hh), 16, V(HR + 2 * t + hh))
            a.v_and_b32(V(r + 8 + 2 * hh + 1), "0xffff0000", V(HR + 2 * t + hh))
        for hh in range(2):
            a.v_pk_add_f32(V(r + 2 * hh, 2), V(r + 2 * hh, 2), V(r + 8 + 2 * hh, 2))
        for hh in range(2):
            a.v_cvt_pk_bf16_f32(V(r + 4 + hh), V(r + 2 * hh), V(r + 2 * hh + 1))
        a.buffer_store_dwordx2(V(r + 4, 2), V(9), S(12, 4), S(48), mods=f"offen offset:{32*t} " + os.environ.get("OUTF", ""))


def gemm1_retry(a):
    a.label("L_G1RETRY")
    a.s_sub_u32(S(63), S(63), 1)
    a.s_cbranch_scc1("L_G1OK")
    if STAMPS and os.environ.get("DBGT", "0") != "1":
        a.v_mov_b32(V(8), 4)
        a.v_mov_b32(V(9), 1)
        a.s_mov_b64("exec", 1)
        a.buffer_atomic_add(V(9), V(8), S(R_DBG, 4), 0, mods="offen sc1")
        a.s_mov_b64("exec", -1)
    a.wait(vm=0)
    a.s_branch("L_G1")


NSTAMP = 13


def gen():
    a = Asm()
    a.s_load_dwordx16(S(16, 16), S(0, 2), 0)
    a.s_load_dwordx8(S(32, 8), S(0, 2), 64)
    a.s_load_dwordx4(S(40, 4), S(0, 2), 96)
    a.s_load_dwordx2(S(44, 2), S(0, 2), 112)
    a.s_memrealtime(S(4, 2))
    if STAMPS:
        for i in range(1, NSTAMP):
            a.s_mov_b32(S(76 + 2 * i), 0)
    stamp(a, 0)
    a.s_cmp_ge_u32(S(2), 256)
    a.s_cbranch_scc1("L_END")
    a.v_lshrrev_b32(V(1), 6, V(0))
    a.v_readfirstlane_b32(S(S_WAVE), V(1))
    a.v_and_b32(V(1), 63, V(0))

    def common_setup():
        a.s_mov_b32(S(S_SPIN), SPIN_MAX)
        a.s_getreg_b32(S(S_XCC), "hwreg(HW_REG_XCC_ID, 0, 4)")
        srd(a, R_DBG, P_DBG, 0, 256)
        srd(a, R_SY, P_WS, SY_OFF, SY_SZ)

    a.s_cmp_lt_u32(S(2), 160)
    a.s_cbranch_scc1("L_CONV")
    a.s_cmp_lg_u32(S(S_WAVE), 3)
    a.s_cbranch_scc1("L_NOCODE")
    code_prefetch(a)
    a.label("L_NOCODE")
    a.nvm = 0
    xt = aux_first(a)
    nvm_aux = a.nvm
    a.s_branch("L_AUX")
    a.label("L_CONV")
    a.nvm = 0
    a.wait(lgkm=0)
    ktk = conv_first(a)
    common_setup()
    a.s_lshl_b32(S(6), S(S_WAVE), 3)
    a.s_add_u32(S(6), S(6), S(2))
    a.s_cmp_ge_u32(S(6), 8)
    a.s_cbranch_scc1("L_NOTAG")
    a.s_or_b32(S(4), S(4), 1)
    a.v_mov_b32(V(24), S(4))
    a.v_mov_b32(V(25), 0)
    a.v_mov_b32(V(26), 0)
    a.s_mov_b64("exec", 1)
    a.buffer_atomic_cmpswap(V(24, 2), V(26), S(R_DBG, 4), 0, mods="offen sc1")
    a.s_mov_b64("exec", -1)
    a.nvm -= 1
    a.label("L_NOTAG")
    conv_role(a, ktk)
    a.s_branch("L_COMMON")
    if POISON:
        gemm1_retry(a)
    a.label("L_AUX")
    a.nvm = nvm_aux
    common_setup()
    aux_role(a, xt)
    a.label("L_COMMON")
    gemms(a)
    if STAMPS:
        a.wait(vm=0)
        a.s_memrealtime(S(4, 2))
        a.wait(lgkm=0)
        srd(a, 8, P_WS, ST_OFF, 0x100000)
        a.s_lshl_b32(S(6), S(2), 2)
        a.s_add_u32(S(6), S(6), S(S_WAVE))
        a.s_lshl_b32(S(6), S(6), 6)
        for i in range(NSTAMP):
            a.v_mov_b32(V(8 + i), S(76 + 2 * i))
        a.v_mov_b32(V(8 + NSTAMP), S(4))
        a.v_mov_b32(V(2), 0)
        a.s_mov_b64("exec", 1)
        for q in range(4):
            a.buffer_store_dwordx4(V(8 + 4 * q, 4), V(2), S(8, 4), S(6), mods=f"offen offset:{16*q}")
        if os.environ.get("DBGT", "0") == "1":
            a.v_not_b32(V(30), V(8))
            a.buffer_atomic_umax(V(30), V(2), S(R_DBG, 4), 0, mods="offen offset:4 sc1")
            for i in range(NSTAMP + 1):
                a.buffer_atomic_umax(V(8 + i), V(2), S(R_DBG, 4), 0, mods=f"offen offset:{8+4*i} sc1")
    if os.environ.get("FIXT", "0") != "0":
        a.label("L_FIX")
        a.s_memrealtime(S(4, 2))
        a.wait(lgkm=0)
        a.s_sub_u32(S(4), S(4), S(S_NONCE))
        a.s_cmp_lt_u32(S(4), int(os.environ["FIXT"]))
        a.s_cbranch_scc1("L_FIX")
    a.label("L_END")
    a.s_endpgm()
    return kernel_text(NAME + "_kernel", a, 256, nagpr=256, nsgpr=102)


def main(path):
    ref = open(f"cdna_kernels/{NAME}.s.ref").read().splitlines()
    head = [l for l in ref if l.startswith(";") and "@launch" not in l]
    out = "\n".join(head) + "\n"
    out += f"; @launch grid=(256,1,1) block=(256,1,1) lds={LDS_SZ}\n"
    out += '.amdgcn_target "amdgcn-amd-amdhsa--gfx950"\n'
    out += gen()
    open(path, "w").write(out)


if __name__ == "__main__":
    main(sys.argv[1] if len(sys.argv) > 1 else f"cdna_kernels/{NAME}.s")
```

```python
import re

TRANS = ("v_exp_f32", "v_log_f32", "v_rcp_f32", "v_rsq_f32", "v_sqrt_f32", "v_sin_f32", "v_cos_f32")


def V(i, n=1):
    return f"v{i}" if n == 1 else f"v[{i}:{i+n-1}]"


def A(i, n=1):
    return f"a{i}" if n == 1 else f"a[{i}:{i+n-1}]"


def S(i, n=1):
    return f"s{i}" if n == 1 else f"s[{i}:{i+n-1}]"


_reg_re = re.compile(r"^(-?)(?:abs\()?\|?([vas])(?:(\d+)|\[(\d+):(\d+)\])\)?\|?$")


def regs_of(op):
    op = op.strip()
    if op in ("vcc", "vcc_lo", "vcc_hi"):
        return {("vcc", 0)}
    if op in ("exec", "exec_lo", "exec_hi"):
        return {("exec", 0)}
    if op == "m0":
        return {("m0", 0)}
    m = _reg_re.match(op)
    if not m:
        return set()
    k = m.group(2)
    if m.group(3) is not None:
        return {(k, int(m.group(3)))}
    return {(k, i) for i in range(int(m.group(4)), int(m.group(5)) + 1)}


class Ins:
    def __init__(self, op, args, mods="", comment=""):
        self.op = op
        self.args = [str(a) for a in args]
        self.mods = mods
        self.comment = comment
        self.classify()

    def text(self):
        s = "    " + self.op
        if self.args:
            s += " " + ", ".join(self.args)
        if self.mods:
            s += " " + self.mods
        if self.comment:
            s += " ; " + self.comment
        return s

    def classify(self):
        op = self.op
        a = self.args
        self.kind = "other"
        self.dst = set()
        self.src = set()
        self.srcC = set()
        self.srcAB = set()
        self.passes = 0
        self.dpp = ("_dpp" in op) or ("row_" in self.mods) or ("wave_" in self.mods) or ("quad_perm" in self.mods)
        R = regs_of
        if op.startswith("v_mfma"):
            self.kind = "mfma"
            self.dst = R(a[0])
            self.srcAB = R(a[1]) | R(a[2])
            self.srcC = R(a[3])
            self.src = self.srcAB | self.srcC
            self.passes = 8 if "32x32" in op else 4
        elif op.startswith("v_"):
            self.kind = "valu"
            if op.startswith("v_cmp"):
                self.dst = R(a[0])
                for x in a[1:]:
                    self.src |= R(x)
                if op.startswith("v_cmpx"):
                    self.dst |= {("exec", 0)}
            elif op.startswith("v_swap") or "swap_b32" in op:
                self.dst = R(a[0]) | R(a[1])
                self.src = set(self.dst)
            elif op in ("v_nop",):
                pass
            elif "_co_" in op:
                self.dst = R(a[0]) | R(a[1])
                for x in a[2:]:
                    self.src |= R(x)
            else:
                self.dst = R(a[0])
                for x in a[1:]:
                    self.src |= R(x)
                if op.startswith("v_fmac") or op.startswith("v_dot2c") or self.dpp or op.startswith("v_writelane") or "sdwa" in op:
                    self.src |= self.dst
                if op.startswith("v_cndmask") and len(a) == 3:
                    self.src |= {("vcc", 0)}
        elif op.startswith("buffer_") or op.startswith("global_") or op.startswith("flat_"):
            self.kind = "vmem"
            if op in ("buffer_inv", "buffer_wbl2"):
                pass
            elif "load" in op:
                if " lds" in (" " + self.mods) or "load_lds" in op:
                    self.lds_dma = True
                    for x in a:
                        self.src |= R(x)
                    self.src |= {("m0", 0)}
                else:
                    self.dst = R(a[0])
                    for x in a[1:]:
                        self.src |= R(x)
            elif "atomic" in op and "sc0" in self.mods:
                if op.startswith("buffer_"):
                    self.dst = R(a[0])
                    for x in a:
                        self.src |= R(x)
                else:
                    self.dst = R(a[0])
                    for x in a[1:]:
                        self.src |= R(x)
            else:
                for x in a:
                    self.src |= R(x)
                if "store" in op and ("x4" in op or "x3" in op):
                    self.wide_data = R(a[0]) if op.startswith("buffer_") else R(a[1])
        elif op.startswith("ds_"):
            self.kind = "ds"
            if op.startswith("ds_read") or "permute" in op or "swizzle" in op or "_rtn" in op:
                self.dst = R(a[0])
                for x in a[1:]:
                    self.src |= R(x)
            else:
                for x in a:
                    self.src |= R(x)
        elif op.startswith("s_"):
            self.kind = "salu"
            if op.startswith("s_cmp") or op.startswith("s_cbranch") or op in ("s_branch", "s_waitcnt", "s_barrier", "s_nop", "s_endpgm", "s_sleep", "s_setprio", "s_bitcmp1_b32", "s_bitcmp0_b32"):
                for x in a:
                    self.src |= R(x)
            else:
                if a:
                    self.dst = R(a[0])
                for x in a[1:]:
                    self.src |= R(x)
                if "saveexec" in op:
                    self.dst |= {("exec", 0)}
            if op.startswith("s_load") or op.startswith("s_mem"):
                self.kind = "smem"

    def states(self):
        if self.op == "s_nop":
            return int(self.args[0], 0) + 1
        return 1


def is_sreg(r):
    return r[0] in ("s", "vcc")


def need(prod, cons):
    n = 0
    pk, ck = prod.kind, cons.kind
    vd = {r for r in prod.dst if r[0] in ("v", "a")}
    if pk == "valu":
        isdot = prod.op.startswith("v_dot")
        if ck == "mfma" and (vd & cons.src):
            n = max(n, 3 if isdot else 2)
        if ck == "valu":
            if prod.op.replace("_e32", "").replace("_e64", "") in TRANS and (vd & cons.src):
                n = max(n, 1)
            if cons.dpp and (vd & cons.src):
                n = max(n, 2)
            if cons.op.startswith("v_permlane") and (vd & cons.src):
                n = max(n, 2)
            if (cons.op.startswith("v_readlane") or cons.op.startswith("v_readfirstlane")) and (vd & cons.src):
                n = max(n, 1)
            sd = {r for r in prod.dst if is_sreg(r)}
            if sd & cons.src:
                n = max(n, 4 if (cons.op.startswith("v_readlane") or cons.op.startswith("v_writelane")) else 2)
            if "sdwa" in prod.op and (vd & (cons.src | cons.dst)):
                n = max(n, 1)
            if isdot and (vd & (cons.src | cons.dst)):
                same = cons.op == prod.op and len(cons.args) == 4 and regs_of(cons.args[3]) == vd and not (vd & (regs_of(cons.args[1]) | regs_of(cons.args[2])))
                if not same:
                    n = max(n, 3)
            if ("exec", 0) in prod.dst:
                n = max(n, 5)
        if isdot and ck in ("vmem", "ds") and (vd & cons.src):
            n = max(n, 3)
        if ck == "vmem":
            sd = {r for r in prod.dst if is_sreg(r)}
            if sd & cons.src:
                n = max(n, 5)
        if ck == "mfma" and ("exec", 0) in prod.dst:
            n = max(n, 4)
        if ck in ("salu", "smem"):
            sd = {r for r in prod.dst if is_sreg(r)}
            if sd & cons.src:
                n = max(n, 2)
    if pk == "mfma":
        big = prod.passes == 8
        if ck == "mfma":
            if vd & cons.srcAB:
                n = max(n, 12 if big else 8)
            if vd & cons.srcC:
                if not (cons.srcC == vd and cons.passes == prod.passes):
                    n = max(n, 10 if big else 6)
            elif vd & cons.dst:
                n = max(n, 10 if big else 6)
        elif ck in ("valu", "vmem", "ds"):
            if vd & (cons.src | cons.dst):
                n = max(n, 12 if big else 8)
            if ck == "valu" and (prod.srcC & cons.dst):
                n = max(n, 7 if big else 3)
    if pk == "vmem" and getattr(prod, "wide_data", None):
        if prod.wide_data & cons.dst:
            n = max(n, 2)
    if pk == "ds" and prod.op in ("ds_write_b128", "ds_write_b96") and ck == "valu":
        pass
    if pk == "salu" and ("m0", 0) in prod.dst:
        if ("m0", 0) in cons.src and ck in ("vmem", "ds"):
            n = max(n, 1)
    return n


class Asm:
    def __init__(self):
        self.items = []
        self.nvm = 0
        self.nds = 0

    def I(self, op, *args, mods="", c=""):
        ins = Ins(op, args, mods, c)
        self.items.append(ins)
        if ins.kind == "vmem":
            self.nvm += 1
            return self.nvm
        if ins.kind == "ds":
            self.nds += 1
            return self.nds

    def wvm(self, ticket):
        n = self.nvm - ticket
        if n <= 63:
            self.wait(vm=n)

    def wds(self, ticket):
        n = self.nds - ticket
        self.wait(lgkm=min(n, 15))

    def raw(self, s):
        self.items.append(s)

    def label(self, name):
        self.items.append(name + ":")

    def __getattr__(self, name):
        if name.startswith(("v_", "s_", "ds_", "buffer_", "global_")):
            def f(*args, mods="", c=""):
                return self.I(name, *args, mods=mods, c=c)
            return f
        raise AttributeError(name)

    def wait(self, vm=None, lgkm=None):
        parts = []
        if vm is not None:
            assert 0 <= vm <= 63
            parts.append(f"vmcnt({vm})")
        if lgkm is not None:
            assert 0 <= lgkm <= 15
            parts.append(f"lgkmcnt({lgkm})")
        self.items.append(Ins("s_waitcnt", [" ".join(parts)]))

    def finalize(self):
        out = []
        hist = []
        nnop = 0
        for it in self.items:
            if isinstance(it, str):
                out.append(it)
                continue
            req = 0
            dist = 0
            for p in reversed(hist[-24:]):
                n = need(p, it)
                if n > dist:
                    req = max(req, n - dist)
                dist += p.states()
                if dist >= 20:
                    break
            while req > 0:
                k = min(req, 16)
                nop = Ins("s_nop", [str(k - 1)])
                out.append(nop)
                hist.append(nop)
                req -= k
                nnop += 1
            out.append(it)
            hist.append(it)
        self.nnop = nnop
        if getattr(self, "align", True):
            out = align_pass(out, getattr(self, "name", "k"))
        return "\n".join(x if isinstance(x, str) else x.text() for x in out) + "\n"


E64_OK = ("v_mov_b32", "v_add_u32", "v_sub_u32", "v_subrev_u32", "v_and_b32", "v_or_b32", "v_xor_b32", "v_lshlrev_b32", "v_lshrrev_b32",
          "v_add_f32", "v_sub_f32", "v_mul_f32", "v_max_f32", "v_min_f32", "v_min_u32", "v_max_u32", "v_mul_u32_u24", "v_fract_f32",
          "v_exp_f32", "v_sin_f32", "v_cos_f32", "v_rcp_f32", "v_sqrt_f32", "v_cndmask_b32", "v_cmp_eq_u32", "v_cmp_ne_u32", "v_cmp_gt_u32")


def sizes_of(items, name):
    import subprocess, tempfile, os
    src = '.amdgcn_target "amdgcn-amd-amdhsa--gfx950"\n.text\n' + name + ":\n" + "\n".join(x if isinstance(x, str) else x.text() for x in items) + "\n"
    d = tempfile.mkdtemp()
    open(d + "/a.s", "w").write(src)
    r = subprocess.run(["clang", "-x", "assembler", "-target", "amdgcn-amd-amdhsa", "-mcpu=gfx950", "-c", d + "/a.s", "-o", d + "/a.o"], capture_output=True, text=True)
    assert r.returncode == 0, r.stderr[:2000]
    o = subprocess.run(["llvm-objdump", "-d", "--mcpu=gfx950", d + "/a.o"], capture_output=True, text=True).stdout
    sz = []
    for line in o.splitlines():
        m = re.search(r"// [0-9A-F]{12}: ((?:[0-9A-F]{8} ?)+)", line)
        if m:
            sz.append(4 * len(m.group(1).split()))
    return sz


def align_pass(items, name, minrun=3):
    if any(isinstance(x, str) and x.strip().startswith(".") for x in items):
        return items
    sz = sizes_of(items, name)
    ins = [x for x in items if not isinstance(x, str)]
    assert len(sz) == len(ins), (len(sz), len(ins))
    size = {id(x): n for x, n in zip(ins, sz)}
    out = []
    off = 0
    idx = 0
    for it in items:
        if isinstance(it, str):
            out.append(it)
            continue
        n = size[id(it)]
        if n % 8 == 0 and off % 8 == 4:
            run = 0
            while idx + run < len(ins) and sz[idx + run] % 8 == 0:
                run += 1
            if run >= minrun:
                prev = out[-1] if out else None
                if prev is not None and not isinstance(prev, str) and prev.op in E64_OK and size.get(id(prev)) == 4:
                    prev.op += "_e64"
                else:
                    out.append(Ins("s_nop", ["0"]))
                off += 4
        out.append(it)
        off += n
        idx += 1
    return out


def kernel_text(name, asm, nvgpr, nagpr=0, nsgpr=96, extra=""):
    acc = (nvgpr + 3) // 4 * 4
    nfv = acc + nagpr if nagpr else nvgpr
    asm.name = name
    body = asm.finalize()
    return f""".text
.globl {name}
.p2align 8
.type {name},@function
{name}:
{body}
.section .rodata,"a"
.p2align 6
.amdhsa_kernel {name}
  .amdhsa_next_free_vgpr {nfv}
  .amdhsa_next_free_sgpr {nsgpr}
  .amdhsa_accum_offset {acc}
  .amdhsa_group_segment_fixed_size 0
  .amdhsa_kernarg_size 120
  .amdhsa_user_sgpr_count 2
  .amdhsa_user_sgpr_kernarg_segment_ptr 1
  .amdhsa_system_sgpr_workgroup_id_x 1
{extra}.end_amdhsa_kernel
"""
```

```python
import sys, struct, os
sys.path.insert(0, "dev")
from asmlib import *

NAME = "sequential_preLN__ssm_conv_s4__dense_activation_relu__prompt"
STAMPS = os.environ.get("STAMPS", "0") == "1"

SY_OFF, SY_SZ = 0x0, 0x1C000
FRP, FH, FH1 = 0x4000, 0x8000, 0x10000
FCS = 0x18000
W2P_OFF, W2P_SZ = 0x100000, 8 * 54 * 5 * 1024
H4_OFF, H4_SZ = 0x700000, 64 * 40960
H1_OFF, H1_SZ = 0xA00000, 64 * 110592
ST_OFF = 0x2000000

P_U, P_ARE, P_AIM, P_BRE, P_BIM, P_CRE, P_CIM, P_LDT = 16, 18, 20, 22, 24, 26, 28, 30
P_DSK, P_BX, P_W1, P_W2 = 32, 34, 36, 38
P_OUT, P_DBG, P_WS = 40, 42, 44
S_WAVE = 3
R_SY, R_DBG = 64, 68
S_NONCE, S_SPIN, S_M0W, S_D2 = 72, 73, 74, 75
R_W1 = 52
VPA = 231
DUMMY_L = 0x100000
S_XCC = 0
S_MIS = 18
MODE_L = 147456
VW1 = 248
SPIN_MAX = 400000

KS_SZ = 23296
WT_L, WT_P = 93184, 8256
UB_L = 126208
CSP_L, CS_L = 144640, 148480
XH_L, XH_P = 147200, 4160
LDS_SZ = 163840
Q_EARLY = 21
NCODE = 5
XTOUCH = os.environ.get("XTOUCH", "0") == "1"
W2Q = eval(os.environ.get("W2Q", "[(3, 10), (4, 10), (5, 10)]"))
POISON = os.environ.get("POISON", "1") == "1"
GATHER = eval(os.environ.get("GATHER", "{100: [0,1,2,3,4], 10: [5], 16: [6], 22: [7]}"))
HLD = os.environ.get("HLD", "sc1")
LOG2E = 1.4426950408889634


def f32(x):
    return "0x%08x" % struct.unpack("<I", struct.pack("<f", x))[0]


def stamp(a, i):
    if STAMPS:
        if os.environ.get("STAMPCLK", "0") == "1":
            a.s_memtime(S(76 + 2 * i, 2))
        else:
            a.s_memrealtime(S(76 + 2 * i, 2))


def srd(a, d, p, off, size):
    if off == 0:
        a.s_mov_b32(S(d), S(p))
        a.s_mov_b32(S(d + 1), S(p + 1))
    else:
        a.s_add_u32(S(d), S(p), off if isinstance(off, str) else hex(off))
        a.s_addc_u32(S(d + 1), S(p + 1), 0)
    a.s_mov_b32(S(d + 2), hex(size))
    a.s_mov_b32(S(d + 3), "0x20000")


def srd2(a, d, p, off, soff, size):
    a.s_add_u32(S(d), S(p), soff)
    a.s_addc_u32(S(d + 1), S(p + 1), 0)
    a.s_add_u32(S(d), S(d), hex(off))
    a.s_addc_u32(S(d + 1), S(d + 1), 0)
    a.s_mov_b32(S(d + 2), hex(size))
    a.s_mov_b32(S(d + 3), "0x20000")


def cmuln(a, dsts, xs, ws, tmps):
    n = len(dsts)
    for i in range(n):
        a.v_pk_mul_f32(V(tmps[i], 2), V(xs[i], 2), V(ws[i], 2), mods="op_sel:[0,0] op_sel_hi:[1,0]")
    for i in range(n):
        a.v_pk_fma_f32(V(dsts[i], 2), V(xs[i], 2), V(ws[i], 2), V(tmps[i], 2), mods="op_sel:[1,1,0] op_sel_hi:[0,1,1] neg_lo:[1,0,0]")


def rnd2(a, x0, x1, t):
    a.v_cvt_pk_bf16_f32(V(t), V(x0), V(x1))
    a.v_lshlrev_b32(V(x0), 16, V(t))
    a.v_and_b32(V(x1), "0xffff0000", V(t))


def ln_stats2(a, s1, s2, rs, nm, t0, t1, n):
    inv = f32(1.0 / n)
    for i in range(2):
        a.v_mul_f32(V(s1[i]), inv, V(s1[i]))
    for i in range(2):
        a.v_mul_f32(V(s2[i]), inv, V(s2[i]))
    for i in range(2):
        a.v_fma_f32(V(s2[i]), "-" + V(s1[i]), V(s1[i]), V(s2[i]))
    for i in range(2):
        a.v_max_f32(V(s2[i]), 0, V(s2[i]))
    rnd2(a, s2[0], s2[1], t0)
    rnd2(a, s1[0], s1[1], t1)
    for i in range(2):
        a.v_add_f32(V(s2[i]), f32(1e-5), V(s2[i]))
    rnd2(a, s2[0], s2[1], t0)
    for i in range(2):
        a.v_sqrt_f32(V(s2[i]), V(s2[i]))
    rnd2(a, s2[0], s2[1], t0)
    for i in range(2):
        a.v_rcp_f32(V(rs[i]), V(s2[i]))
    for i in range(2):
        a.v_mul_f32(V(nm[i]), "-" + V(s1[i]), V(rs[i]))


_lab = [0]


def newlab(p):
    _lab[0] += 1
    return f"L{p}_{_lab[0]}"


def spin_branch(a, loop, done_fallthrough=True):
    out = newlab("to")
    a.s_sub_u32(S(S_SPIN), S(S_SPIN), 1)
    a.s_cmp_lt_i32(S(S_SPIN), 0)
    a.s_cbranch_scc1(out)
    a.s_cbranch_vccnz(loop)
    a.label(out)


def flag_loads(a, voff, base, count, dst):
    n = (count + 63) // 64
    t = None
    for q in range(n):
        t = a.buffer_load_dwordx2(V(dst + 2 * q, 2), V(voff + q), S(R_SY, 4), base, mods="offen sc1")
    return t


def xcc_mismatch(a, voff, count, dst, sacc):
    n = (count + 63) // 64
    a.s_and_b32(S(6), S(2), 7)
    for q in range(n):
        a.v_bfe_u32(V(dst + 2 * q), V(voff + q), 7, 3)
        a.v_cmp_eq_u32(S(48, 2), S(6), V(dst + 2 * q))
        a.v_cmp_ne_u32("vcc", S(S_XCC), V(dst + 2 * q + 1))
        a.s_and_b64(S(48, 2), S(48, 2), "vcc")
        a.s_or_b64(S(sacc, 2), S(sacc, 2), S(48, 2))


def flag_addr(a, voff, count, vlane):
    n = (count + 63) // 64
    for q in range(n):
        if q:
            a.v_add_u32(V(voff + q), 64 * q, V(vlane))
            a.v_min_u32(V(voff + q), count - 1, V(voff + q))
        else:
            a.v_min_u32(V(voff), count - 1, V(vlane))
        a.v_lshlrev_b32(V(voff + q), 7, V(voff + q))


def flag_check(a, dst, count):
    n = (count + 63) // 64
    for q in range(n):
        a.v_xor_b32(V(dst + 2 * q), S(S_NONCE), V(dst + 2 * q))
    for q in range(1, n):
        a.v_or_b32(V(dst), V(dst), V(dst + 2 * q))
    a.v_cmp_ne_u32("vcc", 0, V(dst))


def poll_flags(a, voff, base, count, dst, sleep=0):
    lp = newlab("poll")
    a.label(lp)
    flag_loads(a, voff, base, count, dst)
    a.wait(vm=0)
    flag_check(a, dst, count)
    if sleep:
        a.s_sleep(sleep)
    spin_branch(a, lp)


def set_flag(a, soff, vt, sc="sc1"):
    skip = newlab("nf")
    a.s_cmp_lg_u32(S(S_WAVE), 0)
    a.s_cbranch_scc1(skip)
    a.v_mov_b32(V(vt + 2), 0)
    a.v_mov_b32(V(vt), S(S_NONCE))
    a.v_mov_b32(V(vt + 1), S(S_XCC))
    a.s_mov_b64("exec", 1)
    a.buffer_store_dwordx2(V(vt, 2), V(vt + 2), S(R_SY, 4), soff, mods=f"offen {sc}")
    a.s_mov_b64("exec", -1)
    a.label(skip)


def kgen_loads(a, s_d):
    VL = 1
    PR = 8
    a.s_lshl_b32(S(5), S(s_d), 8)
    a.v_lshl_add_u32(V(2), V(VL), 2, S(5))
    a.s_lshl_b32(S(5), S(s_d), 1)
    a.v_mov_b32(V(3), S(5))
    t_ldt = a.global_load_ushort(V(PR + 6), V(3), S(P_LDT, 2))
    for i, p in enumerate((P_ARE, P_AIM, P_BRE, P_BIM, P_CRE, P_CIM)):
        t_par = a.global_load_dword(V(PR + i), V(2), S(p, 2))
    t_dsk = a.global_load_ushort(V(PR + 7), V(3), S(P_DSK, 2))
    return t_ldt, t_dsk


def kgen(a, tks, s_lds, s_wt, hook):
    VL = 1
    PR = 8
    t_ldt, t_dsk = tks
    hook(-1)
    VW, VRA, VRB = 4, 5, 6
    a.v_lshl_add_u32(V(VW), V(VL), 3, S(s_lds))
    a.v_and_b32(V(16), 15, V(VL))
    a.v_lshrrev_b32(V(17), 4, V(VL))
    a.v_and_b32(V(18), 1, V(17))
    a.v_lshlrev_b32(V(18), 8, V(18))
    a.v_lshrrev_b32(V(19), 1, V(17))
    a.v_lshl_add_u32(V(18), V(19), 7, V(18))
    a.v_add_u32(V(18), S(s_lds), V(18))
    a.v_mul_u32_u24(V(19), 528, V(16))
    a.v_add_u32(V(VRA), V(18), V(19))
    a.v_min_u32(V(19), 8, V(16))
    a.v_mul_u32_u24(V(19), 528, V(19))
    a.v_add_u32(V(VRB), V(18), V(19))
    a.s_mov_b32(S(50), f32(LOG2E))
    a.s_mov_b32(S(51), f32(LOG2E - struct.unpack("<f", struct.pack("<f", LOG2E))[0]))
    a.s_mov_b32(S(52), f32(16.0))
    a.s_mov_b32(S(53), f32(16.0))
    a.s_mov_b32(S(54), f32(512.0))
    a.s_mov_b32(S(55), f32(512.0))
    TA1, TA2, TA3, TB3, TA4, TB4 = 224, 225, 226, 227, 228, 229
    TABO = 0
    a.s_add_u32(S(56), S(s_lds), TABO + 16)
    a.v_lshlrev_b32(V(TA1), 6, V(16))
    a.v_lshl_add_u32(V(TA1), V(17), 4, V(TA1))
    a.v_lshrrev_b32(V(TA2), 1, V(TA1))
    a.v_add_u32(V(TA1), S(56), V(TA1))
    a.v_add_u32(V(TA2), S(56), V(TA2))
    a.v_add_u32(V(TA2), 1024, V(TA2))
    a.v_cmp_eq_u32("vcc", 0, V(17))
    a.v_mov_b32(V(30), 8)
    a.v_mov_b32(V(31), 256)
    a.v_cndmask_b32(V(30), V(30), 16, "vcc")
    a.v_cndmask_b32(V(31), V(31), 8, "vcc")
    a.v_lshlrev_b32(V(TA3), 9, V(17))
    a.v_mad_u32_u24(V(TA3), V(30), V(16), V(TA3))
    a.v_add_u32(V(TA3), S(56), V(TA3))
    a.v_add_u32(V(TB3), V(TA3), V(31))
    a.v_lshl_add_u32(V(TA4), V(30), 4, V(TA3))
    a.v_add_u32(V(TB4), V(TA4), V(31))
    DT = 20
    a.wvm(t_ldt)
    a.v_lshlrev_b32(V(21), 16, V(PR + 6))
    a.v_mul_f32(V(22), S(50), V(21))
    a.v_fma_f32(V(23), V(21), S(50), "-" + V(22))
    a.v_fma_f32(V(23), V(21), S(51), V(23))
    a.v_exp_f32(V(22), V(22))
    a.v_mul_f32(V(23), f32(0.6931471805599453), V(23))
    a.v_fma_f32(V(22), V(22), V(23), V(22))
    a.v_cvt_pk_bf16_f32(V(22), V(22), V(22))
    a.v_lshlrev_b32(V(DT), 16, V(22))
    a.v_mul_f32(V(22), S(50), V(DT))
    a.v_mul_f32(V(23), "0.15915494", V(DT))
    Z = [24, 26]; B = [28, 30]; C = [32, 34]
    a.wvm(t_dsk)
    stamp(a, 1)
    hook(100)
    for base, pi in ((Z, 0), (B, 2), (C, 4)):
        for comp in range(2):
            a.v_lshlrev_b32(V(base[0] + comp), 16, V(PR + pi + comp))
            a.v_and_b32(V(base[1] + comp), "0xffff0000", V(PR + pi + comp))
    for s in range(2):
        a.v_pk_mul_f32(V(Z[s], 2), V(Z[s], 2), V(22, 2))
    for s in range(2):
        a.v_pk_mul_f32(V(B[s], 2), V(B[s], 2), V(DT, 2), mods="op_sel_hi:[1,0]")
    T = [36, 38]
    T2 = [216, 218]
    XC = [40, 42]
    W1 = [44, 46]; W16 = [48, 50]; W512 = [52, 54]
    ARG = [56, 58, 60, 62, 64, 66]
    EX = [68, 70, 72, 74, 76, 78]
    dsts = [W1[0], W1[1], W16[0], W16[1], W512[0], W512[1]]
    for s in range(2):
        a.v_pk_mul_f32(V(ARG[2 + s], 2), V(Z[s], 2), S(52, 2))
        a.v_pk_mul_f32(V(ARG[4 + s], 2), V(Z[s], 2), S(54, 2))
    cmuln(a, XC, C, B, T)
    srcs = [Z[0], Z[1], ARG[2], ARG[3], ARG[4], ARG[5]]
    for i in range(6):
        a.v_fract_f32(V(ARG[i] + 1), V(srcs[i] + 1))
    for s in range(2):
        a.v_xor_b32(V(XC[s] + 1), "0x80000000", V(XC[s] + 1))
    for i in range(6):
        a.v_exp_f32(V(EX[i]), V(srcs[i]))
        a.v_cos_f32(V(dsts[i]), V(ARG[i] + 1))
        a.v_sin_f32(V(dsts[i] + 1), V(ARG[i] + 1))
    for i in range(6):
        neg = " neg_hi:[1,0]" if i in (2, 3) else ""
        a.v_pk_mul_f32(V(dsts[i], 2), V(dsts[i], 2), V(EX[i], 2), mods="op_sel_hi:[1,0]" + neg)
    PK = [80, 82, 84, 86]
    npk = [0]

    def put_rows(rows):
        ps = []
        for row, r in rows:
            p = PK[npk[0] % 4]
            npk[0] += 1
            ps.append(p)
            a.v_cvt_pk_bf16_f32(V(p), V(r[0]), V(r[0] + 1))
            a.v_cvt_pk_bf16_f32(V(p + 1), V(r[1]), V(r[1] + 1))
        for (row, r), p in zip(rows, ps):
            a.ds_write_b64(V(VW), V(p, 2), mods=f"offset:{row*528}")

    XR0 = 25
    a.v_mov_b32(V(220), "0x3f80")
    a.v_mov_b32(V(221), "0x3f80")
    a.ds_write_b64(V(VW), V(220, 2), mods="offset:0")
    E4 = [56, 58]; E8 = [60, 62]; E12 = [64, 66]; CUR = [68, 70]
    E1024 = [72, 74]; E1536 = [76, 78]
    yprog = [(1, W1, None, None)]
    cur = W1
    for j in range(2, 16):
        dst = {4: E4, 8: E8, 12: E12}.get(j, CUR)
        yprog.append((j, dst, cur, W1))
        cur = dst
    yprog += [(16, W512, None, None), (17, CUR, W512, E4), (18, CUR, W512, E8), (19, CUR, W512, E12),
              (20, E1024, W512, W512), (21, CUR, E1024, E8), (22, E1536, E1024, W512), (23, CUR, E1536, E8), (24, CUR, E1024, E1024)]
    YA, YB, XF, XF2 = 88, 120, 152, 184
    ACC = 8
    reads = []
    for i in range(32):
        ds_, xs_, ws_, ts_, rows = [], [], [], [], []
        if i:
            ds_ += XC; xs_ += XC; ws_ += W16; ts_ += T
        rows.append((XR0 + i if i < 16 else i - 16, XC))
        if yprog:
            row, dst, x, w = yprog.pop(0)
            if x is not None:
                ds_ += dst; xs_ += x; ws_ += w; ts_ += T2
            rows.append((row, dst))
        cmuln(a, ds_, xs_, ws_, ts_)
        put_rows(rows)
        hook(i)
        if i == 14:
            for m in range(4):
                a.ds_read_b128(V(YA + 4 * m, 4), V(VRA), mods=f"offset:{16*m}")
        if i == 15:
            for m in range(4, 8):
                a.ds_read_b128(V(YA + 4 * m, 4), V(VRA), mods=f"offset:{16*m}")
        if i == 16:
            reads += [(XF + 4 * m, VRA, XR0 * 528 + 16 * m) for m in range(8)]
        if i == 23:
            reads += [(YB + 4 * m, VRB, 16 * 528 + 16 * m) for m in range(8)]
        for _ in range(2):
            if reads:
                d, ad, off = reads.pop(0)
                a.ds_read_b128(V(d, 4), V(ad), mods=f"offset:{off}")
    assert not reads and not yprog
    t_pre = a.nds
    tk = []
    for m in range(8):
        tk.append(a.ds_read_b128(V(XF2 + 4 * m, 4), V(VRA), mods=f"offset:{16*m}"))
    hook(200)
    a.v_lshlrev_b32(V(32), 16, V(PR + 7))
    a.v_cmp_eq_u32("vcc", 0, V(VL))
    a.v_cndmask_b32(V(32), 0, V(32), "vcc")
    a.v_mov_b32(V(33), 0)
    a.v_mov_b32(V(34), S(56))
    a.wds(t_pre)
    for m in range(8):
        a.v_mfma_f32_16x16x32_bf16(V(ACC, 4), V(YA + 4 * m, 4), V(XF + 4 * m, 4), V(ACC, 4) if m else 0)
        a.v_mfma_f32_16x16x32_bf16(V(ACC + 8, 4), V(YB + 4 * m, 4), V(XF + 4 * m, 4), V(ACC + 8, 4) if m else 0)
    a.wait(lgkm=0)
    for m in range(8):
        a.v_mfma_f32_16x16x32_bf16(V(ACC + 4, 4), V(YA + 4 * m, 4), V(XF2 + 4 * m, 4), V(ACC + 4, 4) if m else 0)
        a.v_mfma_f32_16x16x32_bf16(V(ACC + 12, 4), V(YB + 4 * m, 4), V(XF2 + 4 * m, 4), V(ACC + 12, 4) if m else 0)
        if m == 4:
            a.v_add_f32(V(ACC), V(ACC), V(32))
            a.v_subrev_u32(V(38), 4, V(34))
            a.ds_write_b32(V(38), V(33))
            a.ds_write_b128(V(TA1), V(ACC, 4))
            a.ds_write_b64(V(TA3), V(ACC + 8, 2), mods=f"offset:{384*4}")
            a.ds_write_b64(V(TB3), V(ACC + 10, 2), mods=f"offset:{384*4}")
    a.v_lshl_add_u32(V(35), V(VL), 4, S(56))
    a.v_lshl_add_u32(V(36), V(VL), 3, S(56))
    a.v_add_u32(V(37), 2048, V(36))
    a.v_subrev_u32(V(38), 4, V(35))
    a.v_lshl_add_u32(V(60), V(VL), 4, S(s_wt))
    a.v_lshl_add_u32(V(61), V(VL), 5, S(s_wt))
    a.v_lshl_add_u32(V(62), V(VL), 6, S(s_wt))
    R0, R0P, R1, R1P, R2, R3 = 40, 44, 48, 45, 52, 56
    a.ds_read_b128(V(R0, 4), V(35))
    t0 = a.ds_read_b32(V(R0P), V(38))
    a.ds_write2_b32(V(TA2), V(ACC + 4), V(ACC + 6), mods="offset0:0 offset1:1")
    a.ds_write_b64(V(TA4), V(ACC + 12, 2), mods=f"offset:{384*4}")
    a.ds_write_b64(V(TB4), V(ACC + 14, 2), mods=f"offset:{384*4}")
    a.ds_read2_b64(V(R1, 4), V(36), mods="offset0:128 offset1:129")
    t1 = a.ds_read_b32(V(R1P), V(34), mods=f"offset:{255*4}")
    t2 = a.ds_read2_b64(V(R2, 4), V(36), mods="offset0:192 offset1:193")
    t3 = a.ds_read2_b64(V(R3, 4), V(37), mods="offset0:0 offset1:1")

    def emit_out(region, q, vreg):
        voff = (60, 60, 61, 62)[region]
        imm = 64 + (0, 1024, 2048, 4096)[region] + 16 * q
        a.ds_write_b128(V(voff), V(vreg, 4), mods=f"offset:{imm}")

    OUT = 88
    cv = lambda d, x, y: a.v_cvt_pk_bf16_f32(V(d), V(x), V(y))
    a.wds(t0)
    cv(OUT, R0, R0P); cv(OUT + 1, R0 + 1, R0); cv(OUT + 2, R0 + 2, R0 + 1); cv(OUT + 3, R0 + 3, R0 + 2)
    emit_out(0, 0, OUT)
    a.wds(t1)
    a.v_cndmask_b32(V(R1P), V(R1), V(R1P), "vcc")
    o = OUT + 4
    cv(o + 1, R1, R1); cv(o + 2, R1 + 1, R1); cv(o + 3, R1 + 2, R1 + 1); cv(o, R1, R1P)
    emit_out(1, 0, o)
    a.wds(t2)
    A_, B_, C_ = R2, R2 + 1, R2 + 2
    o = OUT + 8
    for i, (x, y) in enumerate([(A_, A_), (A_, A_), (A_, A_), (B_, A_), (B_, B_), (B_, B_), (C_, B_), (C_, C_)]):
        cv(o + i, x, y)
    emit_out(2, 0, o); emit_out(2, 1, o + 4)
    a.wds(t3)
    A_, B_, C_ = R3, R3 + 1, R3 + 2
    o = OUT + 16
    seq = [(A_, A_)] * 5 + [(B_, A_)] + [(B_, B_)] * 6 + [(C_, B_)] + [(C_, C_)] * 3
    for i, (x, y) in enumerate(seq):
        cv(o + i, x, y)
        if i % 4 == 3:
            emit_out(3, i // 4, o + i - 3)


def calc_ct(a, sd):
    a.s_and_b32(S(sd), S(2), 7)
    a.s_lshl_b32(S(sd), S(sd), 5)
    a.s_add_u32(S(sd), S(sd), S(2))
    a.s_bfe_u32(S(sd), S(sd), "0x40004")


def w1_addr(a, t0, t1):
    a.s_mov_b32(S(48), 3456 - 224)
    calc_ct(a, 49)
    a.s_bitcmp1_b32(S(49), 0)
    a.s_cselect_b32(S(49), 0, 208)
    a.v_mov_b32(V(VPA), DUMMY_L)
    for q in range(7):
        a.v_add_u32(V(t0), 256 * q, V(0))
        a.v_mul_u32_u24(V(t1), 4682, V(t0))
        a.v_lshrrev_b32(V(t1), 16, V(t1))
        a.v_lshlrev_b32(V(t0), 4, V(t0))
        a.v_mad_u32_u24(V(VW1 + q), V(t1), S(48), V(t0))
        a.v_mul_u32_u24(V(t1), 224, V(t1))
        a.v_sub_u32(V(t1), V(t0), V(t1))
        a.v_cmp_eq_u32("vcc", S(49), V(t1))
        a.v_cndmask_b32(V(VPA), V(VPA), V(t0), "vcc")


def w1_patch(a, groups, vt, VPA=31):
    a.v_mov_b32(V(vt), "0x3f80")
    a.v_mov_b32(V(vt + 1), 0)
    a.s_sub_u32(S(6), 8, S(S_D2))
    a.v_cmp_gt_u32("vcc", DUMMY_L, V(VPA))
    a.v_add_u32(V(vt + 2), S(6), V(VPA))
    a.s_and_saveexec_b64(S(48, 2), "vcc")
    cur = 0
    for g in groups:
        off = g * 28672 - cur
        if off > 65535:
            a.v_add_u32(V(vt + 2), off, V(vt + 2))
            cur = g * 28672
            off = 0
        a.ds_write_b64(V(vt + 2), V(vt, 2), mods=f"offset:{off}")
    a.s_mov_b64("exec", S(48, 2))
    a.v_mov_b32(V(vt + 2), 143360)
    a.ds_write_b64(V(vt + 2), V(vt, 2))


def w1_srd(a):
    calc_ct(a, 6)
    a.s_mul_i32(S(6), S(6), 216)
    a.s_and_b32(S(S_D2), S(6), 15)
    a.s_sub_u32(S(6), S(6), S(S_D2))
    a.s_add_u32(S(R_W1), S(P_W1), S(6))
    a.s_addc_u32(S(R_W1 + 1), S(P_W1 + 1), 0)
    a.s_sub_u32(S(R_W1 + 2), 640 * 3456, S(6))
    a.s_mov_b32(S(R_W1 + 3), "0x20000")
    a.s_lshl_b32(S(S_M0W), S(S_WAVE), 10)


def w1_dma(a, q, perm=None):
    g = q // 7
    if perm is None or perm[g] == g:
        a.s_add_u32("m0", S(S_M0W), 4096 * q)
        a.s_mov_b32(S(63), g * 128 * 3456)
    else:
        if q % 7 == 0:
            a.s_bitcmp1_b32(S(2), 3)
            a.s_cselect_b32(S(50), perm[g], g)
            a.s_mul_i32(S(51), S(50), 7 * 4096)
            a.s_add_u32(S(51), S(51), S(S_M0W))
            a.s_mul_i32(S(50), S(50), 128 * 3456)
        a.s_add_u32("m0", S(51), 4096 * (q % 7))
        a.s_mov_b32(S(63), S(50))
    return a.buffer_load_dwordx4(V(VW1 + q % 7), S(R_W1, 4), S(63), mods="offen lds")


def w2_quarter_setup(a, vt):
    srd(a, 24, P_WS, W2P_OFF, W2P_SZ)
    a.s_lshr_b32(S(6), S(2), 3)
    a.s_mul_i32(S(6), S(6), 540 * 128)
    a.v_min_u32(V(vt), 179, V(0))
    a.v_lshl_add_u32(V(vt), V(vt), 7, S(6))


def w2_quarter_load(a, vt, i, dst):
    a.s_mov_b32(S(63), i * 180 * 128)
    a.buffer_load_dword(V(dst), V(vt), S(24, 4), S(63), mods="offen sc1")


def conv_first(a):
    S_DG = 60
    a.s_and_b32(S(6), S(2), 7)
    a.s_mul_i32(S(6), S(6), 20)
    a.s_lshr_b32(S(7), S(2), 3)
    a.s_add_u32(S(S_DG), S(6), S(7))
    a.s_lshl_b32(S(6), S(S_DG), 2)
    a.s_add_u32(S(6), S(6), S(S_WAVE))
    return kgen_loads(a, 6)


def h_store_addr(a, vj, vg, voff):
    a.v_mul_u32_u24(V(voff), 40960, V(vg))
    a.v_lshl_add_u32(V(voff), V(vj), 4, V(voff))
    srd(a, 12, P_WS, H4_OFF, H4_SZ)
    a.s_mul_i32(S(58), S(S_WAVE), 16 * 40960)
    a.s_lshl_b32(S(57), S(60), 8)
    a.s_add_u32(S(58), S(58), S(57))


def conv_role(a, ktk):
    VL = 1
    S_DG, S_KS, S_WT = 60, 61, 59
    a.s_mul_i32(S(S_KS), S(S_WAVE), KS_SZ)
    a.s_mul_i32(S(S_WT), S(S_WAVE), WT_P)
    a.s_add_u32(S(S_WT), S(S_WT), WT_L)
    XR = 232
    tk = {}

    def hook(i):
        if i < 0:
            srd(a, 8, P_U, 0, 2048 * 640 * 2)
            a.v_mul_u32_u24(V(7), 10240, V(0))
            a.s_lshl_b32(S(6), S(S_DG), 3)
            a.s_add_u32(S(7), S(6), 5120)
            if XTOUCH:
                a.s_lshr_b32(S(46), S(2), 3)
                a.s_mul_i32(S(46), S(46), 103 * 1280)
                a.s_and_b32(S(47), S(2), 7)
                a.s_mul_i32(S(47), S(47), 160)
                a.s_add_u32(S(46), S(46), S(47))
                a.v_lshrrev_b32(V(24), 1, V(0))
                a.v_min_u32(V(24), 102, V(24))
                a.v_mul_u32_u24(V(24), 1280, V(24))
                a.v_and_b32(V(25), 1, V(0))
                a.v_mul_u32_u24(V(25), 156, V(25))
                a.v_add_u32(V(24), V(24), V(25))
                a.buffer_load_dword(V(231), V(24), S(8, 4), S(46), mods="offen")
            w1_addr(a, 24, 25)
        elif i == 200:
            a.v_lshlrev_b32(V(2), 6, V(0))
            a.v_mov_b32(V(3), 0)
            stat_loads()
        else:
            for e in GATHER.get(i, []):
                tk["x"] = a.buffer_load_dwordx2(V(XR + 2 * e, 2), V(7), S(8, 4), S(6 if e < 4 else 7), mods=f"offen offset:{(e%4)*1280}")

    SR = 64

    def stat_loads():
        for i in range(4):
            a.buffer_load_dwordx4(V(SR + 4 * i, 4), V(2), S(R_SY, 4), 0, mods=f"offen offset:{16*i} sc1")
        a.buffer_load_dword(V(24), V(3), S(R_DBG, 4), 0, mods="offen sc1")

    kgen(a, ktk, S_KS, S_WT, hook)
    stamp(a, 3)
    a.v_mov_b32(V(31), V(VPA))
    a.v_mov_b32(V(25), 0)
    a.s_mul_i32(S(5), S(S_WAVE), 4608)
    a.s_add_u32(S(5), S(5), UB_L)
    a.v_lshl_add_u32(V(26), V(VL), 2, S(5))
    a.ds_write_b32(V(26), V(25))
    a.ds_write_b32(V(26), V(25), mods="offset:2304")
    a.v_and_b32(V(27), 15, V(VL))
    a.v_lshrrev_b32(V(28), 4, V(VL))
    a.v_lshl_add_u32(V(29), V(27), 2, S(S_WT))
    a.ds_write_b32(V(29), V(25))
    VA, VBQ = 32, 40
    a.v_lshl_add_u32(V(VA), V(VL), 2, S(S_WT))
    for c in range(1, 8):
        a.v_add_u32(V(VA + c), 1024 * c, V(VA))
    a.v_sub_u32(V(VBQ), V(27), V(28))
    a.v_add_u32(V(VBQ), 3, V(VBQ))
    a.v_lshl_add_u32(V(VBQ), V(VBQ), 4, S(5))
    a.s_mov_b32(S(46), "0x05040100")
    a.s_mov_b32(S(47), "0x07060302")
    XS, F = 48, 128
    a.wvm(tk["x"])
    stamp(a, 2)
    for c in range(4):
        for k in range(4):
            a.v_perm_b32(V(XS + 4 * c + k), V(XR + 2 * (2 * k + 1) + (c >> 1)), V(XR + 2 * (2 * k) + (c >> 1)), S(46 + (c & 1)))
    a.v_lshlrev_b32(V(41), 4, V(0))
    a.v_add_u32(V(41), XH_L, V(41))
    for c in range(4):
        a.ds_write_b128(V(41), V(XS + 4 * c, 4), mods=f"offset:{c*XH_P}")
    for i in range(16):
        a.v_lshlrev_b32(V(F + 2 * i), 16, V(XS + i))
        a.v_and_b32(V(F + 2 * i + 1), "0xffff0000", V(XS + i))
    a.v_and_b32(V(42), 1, V(0))
    a.v_mul_u32_u24(V(42), 2304, V(42))
    a.v_lshrrev_b32(V(43), 1, V(0))
    a.v_lshl_add_u32(V(42), V(43), 4, V(42))
    a.v_add_u32(V(42), UB_L + 256, V(42))
    h_store_addr(a, 27, 28, 255)
    for q in range(4):
        a.v_mov_b32(V(212 + q), -1)
    lp, first = newlab("st"), newlab("stf")
    a.s_branch(first)
    a.label(lp)
    stat_loads()
    a.label(first)
    a.wait(vm=0)
    a.v_readfirstlane_b32(S(S_NONCE), V(24))
    a.v_min3_u32(V(25), V(SR + 1), V(SR + 3), V(SR + 5))
    a.v_max3_u32(V(26), V(SR + 1), V(SR + 3), V(SR + 5))
    a.v_min3_u32(V(25), V(25), V(SR + 7), V(SR + 9))
    a.v_max3_u32(V(26), V(26), V(SR + 7), V(SR + 9))
    a.v_min3_u32(V(25), V(25), V(SR + 11), V(SR + 13))
    a.v_max3_u32(V(26), V(26), V(SR + 11), V(SR + 13))
    a.v_min3_u32(V(25), V(25), V(SR + 15), V(24))
    a.v_max3_u32(V(26), V(26), V(SR + 15), V(24))
    a.v_max_u32(V(26), 1, V(26))
    a.v_cmp_ne_u32("vcc", V(25), V(26))
    spin_branch(a, lp)
    stamp(a, 4)
    if POISON:
        for q in range(4):
            a.s_add_u32(S(57), S(58), 4 * q * 40960)
            t_poi = a.buffer_store_dwordx4(V(212, 4), V(255), S(12, 4), S(57), mods="offen sc1")
    RS, NM = 96, 104
    for e in range(8):
        a.v_and_b32(V(RS + e), "0xffff0000", V(SR + 2 * e))
        a.v_lshlrev_b32(V(NM + e), 16, V(SR + 2 * e))
    for e in range(8):
        a.v_rcp_f32(V(RS + e), V(RS + e))
    for k in range(4):
        a.v_pk_mul_f32(V(NM + 2 * k, 2), V(NM + 2 * k, 2), V(RS + 2 * k, 2), mods="neg_lo:[1,0] neg_hi:[1,0]")
    for c in range(4):
        for k in range(4):
            f = F + 2 * (4 * c + k)
            a.v_pk_fma_f32(V(f, 2), V(f, 2), V(RS + 2 * k, 2), V(NM + 2 * k, 2))
        for k in range(4):
            f = F + 2 * (4 * c + k)
            a.v_cvt_pk_bf16_f32(V(XS + 4 * c + k), V(f), V(f + 1))
        a.ds_write_b128(V(42), V(XS + 4 * c, 4), mods=f"offset:{c*4608}")
    OPS = [48, 112]
    ACC = 216
    XQ, XFL = 8, 176
    subs = [(g, h) for g in range(4) for h in range(2)]

    def loadsA(si):
        g, h = subs[si]
        base = OPS[si % 2]
        out = []
        for c in range(8):
            o = 8 + 64 * g + 8 * h
            out.append(("ds_read2_b32", (V(base + 4 * c, 2), V(VA + c)), f"offset0:{o} offset1:{o-2}"))
            out.append(("ds_read2_b32", (V(base + 4 * c + 2, 2), V(VA + c)), f"offset0:{o-4} offset1:{o-6}"))
        return out

    def loadsB(si):
        g, h = subs[si]
        base = OPS[si % 2]
        par = 1 - h
        return [("ds_read_b128", (V(base + 32 + 4 * c, 4), V(VBQ)), f"offset:{par*2304 + (13 + 16*c - 4*g)*16}") for c in range(8)]

    a.s_mul_i32(S(6), S(S_WAVE), XH_P)
    a.s_add_u32(S(6), S(6), XH_L)
    a.v_lshlrev_b32(V(44), 5, V(27))
    a.v_lshl_add_u32(V(44), V(28), 3, V(44))
    a.v_add_u32(V(44), S(6), V(44))
    flag_addr(a, 45, 96, VL)
    w1_srd(a)
    w2_quarter_setup(a, 47)
    a.wait(lgkm=0)
    a.s_barrier()
    stamp(a, 5)
    for op, args, mods in loadsB(0) + loadsA(0):
        a.I(op, *args, mods=mods)
    started = set()
    t_rp = None
    nq = 0
    for si in range(8):
        base = OPS[si % 2]
        nxt = []
        if si < 7:
            la, lb = loadsA(si + 1), loadsB(si + 1)
            for c in range(8):
                nxt += [la[2 * c], la[2 * c + 1], lb[c]]
        if si == 0:
            nxt += [("ds_read_b64", (V(XQ + 2 * T, 2), V(44)), f"offset:{512*T}") for T in range(8)]
        extra = []
        if si == 1:
            for i in range(16):
                extra.append(("v_lshlrev_b32", (V(XFL + 2 * i), 16, V(XQ + i)), ""))
                extra.append(("v_and_b32", (V(XFL + 2 * i + 1), "0xffff0000", V(XQ + i)), ""))
        a.wait(lgkm=0)
        if si == 7:
            t_rp = flag_loads(a, 45, S(62), 96, 208)
        if si == 4:
            a.s_mov_b32(S(62), FRP)
        order = [(c, gp) for c in range(8) for gp in range(8 - c)]
        for n, (c, gp) in enumerate(order):
            T = c + gp
            a.v_mfma_f32_16x16x32_bf16(V(ACC + 4 * T, 4), V(base + 4 * c, 4), V(base + 32 + 4 * gp, 4), V(ACC + 4 * T, 4) if T in started else 0)
            started.add(T)
            if nxt:
                op, args, mods = nxt.pop(0)
                a.I(op, *args, mods=mods)
            if extra:
                op, args, mods = extra.pop(0)
                a.I(op, *args, mods=mods)
            if n in (25, 28, 31, 34) and nq < Q_EARLY:
                w1_dma(a, nq, perm=[1, 2, 0]); nq += 1
            if (si, n) in W2Q:
                w2_quarter_load(a, 47, W2Q.index((si, n)), 29)
    assert nq == Q_EARLY
    stamp(a, 6)
    for T in range(8):
        for hh in range(2):
            r = ACC + 4 * T + 2 * hh
            a.v_pk_add_f32(V(r, 2), V(r, 2), V(XFL + 4 * T + 2 * hh, 2))
        p = 48 + 2 * T
        a.v_cvt_pk_bf16_f32(V(p), V(ACC + 4 * T), V(ACC + 4 * T + 1))
        a.v_cvt_pk_bf16_f32(V(p + 1), V(ACC + 4 * T + 2), V(ACC + 4 * T + 3))
        a.ds_write_b64(V(44), V(p, 2), mods=f"offset:{512*T}")
    a.v_bfe_u32(V(8), V(VL), 2, 2)
    a.v_mul_u32_u24(V(8), XH_P, V(8))
    a.v_lshl_add_u32(V(8), V(28), 6, V(8))
    a.v_and_b32(V(9), 3, V(VL))
    a.v_lshl_add_u32(V(8), V(9), 3, V(8))
    a.s_lshl_b32(S(6), S(S_WAVE), 10)
    a.s_add_u32(S(6), S(6), XH_L)
    a.v_add_u32(V(8), S(6), V(8))
    if POISON:
        a.wvm(t_poi)
    a.wait(lgkm=0)
    a.s_barrier()
    HO = 64
    tks = []
    for i in range(4):
        a.ds_read_b64_tr_b16(V(HO + 4 * i, 2), V(8), mods=f"offset:{256*i}")
        tks.append(a.ds_read_b64_tr_b16(V(HO + 4 * i + 2, 2), V(8), mods=f"offset:{256*i+32}"))
    for i in range(4):
        a.wds(tks[i])
        a.s_add_u32(S(7), S(58), 4 * i * 40960)
        t_st = a.buffer_store_dwordx4(V(HO + 4 * i, 4), V(255), S(12, 4), S(7), mods="offen sc1")
    a.s_lshl_b32(S(6), S(2), 7)
    a.s_add_u32(S(6), S(6), FH)
    if not POISON:
        a.wvm(t_st)
    a.s_barrier()
    set_flag(a, S(6), 10)
    stamp(a, 7)
    a.nvm -= 1
    for q in range(Q_EARLY, 35):
        w1_dma(a, q, perm=[0, 1, 2, 4, 3])
    a.wvm(t_rp)
    ok = newlab("rpok")
    flag_check(a, 208, 96)
    a.s_cbranch_vccz(ok)
    poll_flags(a, 45, S(62), 96, 208)
    a.label(ok)


def repack_addr(a, vo):
    a.s_mov_b32(S(48), 1280 - 160)
    for i in range(5):
        a.v_add_u32(V(4), 64 * i, V(1))
        a.v_mul_u32_u24(V(3), 6554, V(4))
        a.v_lshrrev_b32(V(3), 16, V(3))
        a.v_lshlrev_b32(V(4), 4, V(4))
        a.v_mad_u32_u24(V(vo + i), V(3), S(48), V(4))
    a.v_lshrrev_b32(V(4), 2, V(1))
    a.v_mul_u32_u24(V(4), 160, V(4))
    a.v_and_b32(V(3), 3, V(1))
    a.v_lshl_add_u32(V(vo + 5), V(3), 3, V(4))


def repack_load(a, s_idx, s_keep, vo, vd, rsrc):
    a.s_and_b32(S(s_keep), S(s_idx), 7)
    a.s_lshr_b32(S(s_keep + 1), S(s_idx), 3)
    a.s_mul_i32(S(6), S(s_keep + 1), 32 * 1280)
    a.s_mul_i32(S(7), S(s_keep), 160)
    a.s_add_u32(S(6), S(6), S(7))
    return [a.buffer_load_dwordx4(V(vd + 4 * i, 4), V(vo + i), S(rsrc, 4), S(6), mods="offen") for i in range(5)]


def repack_proc(a, s_keep, vo, vd, tks, s_lds):
    a.v_lshl_add_u32(V(4), V(1), 4, S(s_lds))
    a.v_add_u32(V(5), S(s_lds), V(vo + 5))
    a.v_lshlrev_b32(V(7), 4, V(1))
    a.s_mul_i32(S(49), S(s_keep), 54)
    a.s_add_u32(S(49), S(49), S(s_keep + 1))
    a.s_mul_i32(S(49), S(49), 5 * 1024)
    a.s_add_u32(S(50), S(49), 4096)
    for i in range(5):
        a.wvm(tks[i])
        a.ds_write_b128(V(4), V(vd + 4 * i, 4), mods=f"offset:{1024*i}")
    if vd == 104:
        stamp(a, 4)
    rt = []
    for t in range(5):
        a.ds_read_b64_tr_b16(V(vd + 4 * t, 2), V(5), mods=f"offset:{32*t}")
        rt.append(a.ds_read_b64_tr_b16(V(vd + 4 * t + 2, 2), V(5), mods=f"offset:{32*t+16*160}"))
    for t in range(5):
        a.wds(rt[t])
        a.buffer_store_dwordx4(V(vd + 4 * t, 4), V(7), S(12, 4), S(49 if t < 4 else 50), mods=f"offen offset:{1024*(t%4)} sc1")


def aux_first(a):
    VL = 1
    S_AI, S_O = 60, 57
    a.s_sub_u32(S(S_AI), S(2), 160)
    a.s_mul_i32(S(S_O), S(S_AI), 3)
    a.s_add_u32(S(S_O), S(S_O), S(S_WAVE))
    a.v_lshrrev_b32(V(2), 3, V(VL))
    a.v_mul_u32_u24(V(2), 1280, V(2))
    a.v_and_b32(V(3), 7, V(VL))
    a.v_lshl_add_u32(V(2), V(3), 4, V(2))
    a.s_mul_i32(S(6), S(S_O), 10240)
    a.wait(lgkm=0)
    srd(a, 8, P_U, 0, 2048 * 640 * 2)
    return [a.buffer_load_dwordx4(V(16 + 4 * i, 4), V(2), S(8, 4), S(6), mods=f"offen offset:{128*i}") for i in range(10)]


def code_prefetch(a):
    a.s_getpc_b64(S(6, 2))
    a.label("L_PC")
    a.s_sub_u32(S(6), S(6), "L_PC-" + NAME + "_kernel")
    a.s_subb_u32(S(7), S(7), 0)
    a.v_lshlrev_b32(V(2), 7, V(1))
    for i in range(NCODE):
        a.v_min_u32(V(3), "L_END-" + NAME + "_kernel", V(2))
        a.global_load_dword(V(244), V(3), S(6, 2))
        a.v_add_u32(V(2), 8192, V(2))


def aux_role(a, xt):
    VL = 1
    S_AI, S_GW, S_KS, S_O = 60, 61, 62, 57
    XB = 16
    if xt is None:
        a.s_sub_u32(S(S_AI), S(2), 160)
        a.s_mov_b32(S(S_NONCE), S(4))
    a.s_lshl_b32(S(S_GW), S(S_AI), 2)
    a.s_add_u32(S(S_GW), S(S_GW), S(S_WAVE))
    a.s_mul_i32(S(S_KS), S(S_WAVE), KS_SZ)
    repack_addr(a, 64)
    srd(a, 24, P_W2, 0, 1728 * 640 * 2)
    srd(a, 28, P_W1, 0, 640 * 1728 * 2)
    tt = {}

    def wloads():
        tt[2] = repack_load(a, S_GW, 4, 64, 104, 24)
        if xt is None:
            a.s_add_u32(S(56), S(S_AI), 384)
            tt[3] = repack_load(a, 56, 58, 64, 72, 24)

    AUXLATE = os.environ.get("AUXLATE", "1") == "1"
    if not AUXLATE:
        wloads()
    a.v_mov_b32(V(71), MODE_L)
    if xt is None:
        a.wvm(1)
        a.v_readfirstlane_b32(S(6), V(12))
        a.s_cmp_eq_u32(S(6), 0)
        a.s_cselect_b32(S(S_NONCE), S(S_NONCE), S(6))
        a.v_mov_b32(V(13), S(S_NONCE))
        a.ds_write_b32(V(71), V(13))
        a.wait(lgkm=0)
        stamp(a, 7)
        a.s_barrier()
    w1_addr(a, 4, 5)
    srd(a, 12, P_WS, W2P_OFF, W2P_SZ)
    if xt is not None:
        a.s_mov_b32(S(46), "0x3f803f80")
        for i in range(10):
            a.wvm(xt[i])
            for q in range(4):
                x = V(XB + 4 * i + q)
                first = (i == 0 and q < 2)
                a.v_dot2_f32_bf16(V(8 + (q & 1)), x, S(46), 0 if first else V(8 + (q & 1)))
                a.v_dot2_f32_bf16(V(10 + (q & 1)), x, x, 0 if first else V(10 + (q & 1)))
        stamp(a, 7)
        a.s_barrier()
        a.ds_read_b32(V(15), V(71))
        a.v_add_f32(V(8), V(8), V(9))
        a.v_add_f32(V(10), V(10), V(11))
        for m in ("quad_perm:[1,0,3,2]", "quad_perm:[2,3,0,1]", "row_half_mirror"):
            a.v_add_f32_dpp(V(8), V(8), V(8), mods=f"{m} row_mask:0xf bank_mask:0xf")
            a.v_add_f32_dpp(V(10), V(10), V(10), mods=f"{m} row_mask:0xf bank_mask:0xf")
        inv = f32(1.0 / 640)
        a.v_mul_f32(V(8), inv, V(8))
        a.v_mul_f32(V(10), inv, V(10))
        a.v_fma_f32(V(10), "-" + V(8), V(8), V(10))
        a.v_max_f32(V(10), 0, V(10))
        a.v_cvt_pk_bf16_f32(V(9), V(10), V(10))
        a.v_lshlrev_b32(V(10), 16, V(9))
        a.v_add_f32(V(10), f32(1e-5), V(10))
        a.v_cvt_pk_bf16_f32(V(9), V(10), V(10))
        a.v_lshlrev_b32(V(10), 16, V(9))
        a.v_sqrt_f32(V(10), V(10))
        a.v_cvt_pk_bf16_f32(V(14), V(8), V(10))
        a.v_and_b32(V(3), 7, V(VL))
        a.v_cmp_eq_u32("vcc", 0, V(3))
        a.v_mov_b32(V(9), "0x40000000")
        a.v_cndmask_b32(V(9), V(9), V(VL), "vcc")
        a.s_lshl_b32(S(6), S(S_O), 6)
        a.s_cmp_ge_u32(S(S_O), 256)
        a.s_cselect_b32(S(6), "0x40000000", S(6))
        a.wait(lgkm=0)
        a.buffer_store_dwordx2(V(14, 2), V(9), S(R_SY, 4), S(6), mods="offen sc1")
        a.v_readfirstlane_b32(S(S_NONCE), V(15))
        stamp(a, 1)
    if AUXLATE:
        wloads()
    repack_proc(a, 4, 64, 104, tt[2], S_KS)
    if xt is None:
        join = newlab("aj")
        a.s_cmp_ge_u32(S(56), 432)
        a.s_cbranch_scc1(join)
        repack_proc(a, 58, 64, 72, tt[3], S_KS)
        a.label(join)


def aux_tail(a):
    VL = 1
    S_AI = 60
    stamp(a, 5)
    a.v_lshlrev_b32(V(6), 7, V(VL))
    a.s_lshl_b32(S(6), S(61), 13)
    a.buffer_load_dword(V(238), V(6), S(28, 4), S(6), mods="offen")
    w1_srd(a)
    a.v_mov_b32(V(31), V(VPA))
    a.wait(vm=1)
    stamp(a, 6)
    a.s_barrier()
    a.s_lshl_b32(S(6), S(S_AI), 7)
    a.s_add_u32(S(6), S(6), FRP)
    set_flag(a, S(6), 10)
    stamp(a, 2)
    for q in range(35):
        w1_dma(a, q, perm=[2, 3, 4, 0, 1])
    nocs = newlab("nocs")
    a.s_cmp_ge_u32(S(S_AI), 32)
    a.s_cbranch_scc1(nocs)
    a.s_bitcmp1_b32(S(2), 3)
    a.s_cbranch_scc1(nocs)
    a.v_lshrrev_b32(V(6), 2, V(VL))
    a.v_mul_u32_u24(V(6), 224, V(6))
    a.v_and_b32(V(7), 3, V(VL))
    a.v_lshl_add_u32(V(6), V(7), 3, V(6))
    a.s_mul_i32(S(47), S(S_WAVE), 5 * 7168)
    a.s_add_u32(S(47), S(47), S(S_D2))
    a.v_add_u32(V(6), S(47), V(6))
    for i in range(4):
        a.v_mov_b32(V(12 + i), "0x3f803f80")
    a.s_lshl_b32(S(47), S(S_WAVE), 9)
    a.s_add_u32(S(47), S(47), CSP_L)
    a.v_lshrrev_b32(V(7), 4, V(VL))
    a.v_lshl_add_u32(V(7), V(7), 4, S(47))
    a.wait(vm=0)
    a.s_barrier()
    FR, CA = 64, 32
    for kk in range(6):
        if kk < 5:
            for t in range(7):
                for hh in range(2):
                    a.ds_read_b64_tr_b16(V(FR + 28 * kk + 4 * t + 2 * hh, 2), V(6), mods=f"offset:{kk*7168 + hh*3584 + 32*t}")
        if kk:
            a.wait(lgkm=14 if kk < 5 else 0)
            for t in range(7):
                a.v_mfma_f32_16x16x32_bf16(V(CA + 4 * t, 4), V(FR + 28 * (kk - 1) + 4 * t, 4), V(12, 4), V(CA + 4 * t, 4) if kk > 1 else 0)
    a.s_mov_b32("exec_lo", "0x00010001")
    a.s_mov_b32("exec_hi", "0x00010001")
    for t in range(7):
        a.ds_write_b128(V(7), V(CA + 4 * t, 4), mods=f"offset:{64*t}")
    a.s_mov_b64("exec", -1)
    a.v_and_b32(V(8), 127, V(0))
    a.v_lshlrev_b32(V(9), 2, V(8))
    a.v_add_u32(V(9), CSP_L, V(9))
    a.v_lshlrev_b32(V(8), 3, V(8))
    calc_ct(a, 6)
    a.s_lshl_b32(S(6), S(6), 10)
    a.s_add_u32(S(6), S(6), FCS)
    a.wait(lgkm=0)
    a.s_barrier()
    for w in range(4):
        a.ds_read_b32(V(16 + w), V(9), mods=f"offset:{512*w}")
    a.wait(lgkm=0)
    a.v_add_f32(V(16), V(16), V(17))
    a.v_add_f32(V(18), V(18), V(19))
    a.v_add_f32(V(16), V(16), V(18))
    a.v_mov_b32(V(17), S(S_NONCE))
    a.s_cmp_ge_u32(S(S_WAVE), 2)
    a.s_cbranch_scc1(nocs)
    a.buffer_store_dwordx2(V(16, 2), V(8), S(R_SY, 4), S(6), mods="offen sc1")
    a.label(nocs)
    srd(a, 28, P_WS, H1_OFF, H1_SZ)
    a.s_mul_i32(S(5), S(S_AI), 576 * 128)
    a.v_min_u32(V(2), 191, V(0))
    a.v_lshlrev_b32(V(2), 7, V(2))
    for i in range(int(os.environ.get("H1T", "3"))):
        a.s_add_u32(S(6), S(5), i * 192 * 128)
        a.buffer_load_dword(V(239), V(2), S(28, 4), S(6), mods="offen sc1")
    flag_addr(a, 45, 96, VL)
    a.s_mov_b32(S(62), FRP)
    poll_flags(a, 45, S(62), 96, 208)
    stamp(a, 3)
    w2_quarter_setup(a, 47)
    for i in range(3):
        w2_quarter_load(a, 47, i, 238)


def gemms(a):
    VL = 1
    S_CT, S_TB, S_CT2, S_RB2 = 56, 57, 58, 59
    R_H, R_X, R_W2 = 8, 12, 20
    t_dma = a.nvm
    a.s_mov_b64(S(S_MIS, 2), 0)
    xcc_mismatch(a, 45, 96, 208, S_MIS)
    a.s_and_b32(S(4), S(2), 7)
    a.s_lshl_b32(S(5), S(4), 1)
    a.s_bfe_u32(S(6), S(2), "0x10003")
    a.s_add_u32(S(60), S(5), S(6))
    calc_ct(a, S_CT)
    a.s_lshl_b32(S(S_TB), S(60), 2)
    a.s_add_u32(S(S_TB), S(S_TB), S(S_WAVE))
    a.s_lshl_b32(S(5), S(60), 1)
    a.s_bfe_u32(S(6), S(2), "0x10004")
    a.s_add_u32(S(S_RB2), S(5), S(6))
    a.s_lshr_b32(S(S_CT2), S(2), 5)
    a.v_lshlrev_b32(V(5), 4, V(VL))
    a.v_and_b32(V(2), 15, V(VL))
    a.v_lshrrev_b32(V(3), 4, V(VL))
    a.s_mul_i32(S(7), S(S_CT2), 270 * 1024)
    srd2(a, R_W2, P_WS, W2P_OFF, S(7), 270 * 1024)
    a.s_mul_i32(S(46), S(S_WAVE), 5 * 1024)
    ACC, SQ, BB = 16, 72, 96
    W2V = 192

    def w2dst(s, t):
        if s < 10:
            return A(56 + 20 * s + 4 * t, 4)
        if s < 12:
            return V(W2V + 20 * (s - 10) + 4 * t, 4)
        return A(20 * (s - 12) + 4 * t, 4)

    wtk = {}

    def wload(n):
        if os.environ.get("NOW2", "0") == "1":
            return
        s, t = divmod(n, 5)
        if t == 0:
            a.s_add_u32(S(49), S(46), s * 20 * 1024)
        if t == 4:
            a.s_add_u32(S(49), S(49), 4096)
        wtk[n] = a.buffer_load_dwordx4(w2dst(s, t), V(5), S(R_W2, 4), S(49), mods=f"offen offset:{1024*(t%4)} sc1")

    a.s_mul_i32(S(7), S(S_TB), 110592)
    srd2(a, R_X, P_WS, H1_OFF, S(7), 110592)
    a.s_mul_i32(S(47), S(S_CT), 27 * 256)
    a.v_min_u32(V(94), 53, V(VL))
    a.v_lshl_add_u32(V(94), V(94), 7, S(47))
    wq = list(range(70))
    NPRE = int(os.environ.get("NPRE", "10"))
    for _ in range(NPRE):
        wload(wq.pop(0))
    a.v_lshrrev_b32(V(6), 2, V(VL))
    a.v_mul_u32_u24(V(6), 224, V(6))
    a.v_and_b32(V(7), 3, V(VL))
    a.v_lshl_add_u32(V(6), V(7), 3, V(6))
    a.v_add_u32(V(6), S(S_D2), V(6))
    a.v_add_u32(V(7), 9 * 7168, V(6))
    a.v_add_u32(V(4), 18 * 7168, V(6))
    VAB = [6, 7, 4]
    a.wvm(t_dma)
    w1_patch(a, range(5), 8)
    skip = newlab("cs")
    a.s_cmp_lg_u32(S(S_WAVE), 1)
    a.s_cbranch_scc1(skip)
    a.s_lshl_b32(S(47), S(S_CT), 10)
    a.s_add_u32(S(47), S(47), FCS)
    lp = newlab("csp")
    a.label(lp)
    a.buffer_load_dwordx4(V(16, 4), V(5), S(R_SY, 4), S(47), mods="offen sc1")
    a.wait(vm=0)
    a.v_xor_b32(V(17), S(S_NONCE), V(17))
    a.v_xor_b32(V(19), S(S_NONCE), V(19))
    a.v_or_b32(V(17), V(17), V(19))
    a.v_cmp_ne_u32("vcc", 0, V(17))
    spin_branch(a, lp)
    a.v_lshlrev_b32(V(8), 3, V(VL))
    a.v_add_u32(V(8), CS_L, V(8))
    a.ds_write2_b32(V(8), V(16), V(18), mods="offset0:0 offset1:1")
    a.label(skip)
    skip = newlab("ph")
    a.s_cmp_lg_u32(S(S_WAVE), 0)
    a.s_cbranch_scc1(skip)
    flag_addr(a, 8, 160, VL)
    a.s_mov_b32(S(47), FH)
    poll_flags(a, 8, S(47), 160, 16)
    xcc_mismatch(a, 8, 160, 16, S_MIS)
    a.s_cmp_lg_u64(S(S_MIS, 2), 0)
    a.s_cselect_b32(S(6), 1, 0)
    a.v_mov_b32(V(8), MODE_L)
    a.v_mov_b32(V(9), S(6))
    a.ds_write_b32(V(8), V(9))
    a.label(skip)
    a.s_mul_i32(S(7), S(S_TB), 40960)
    srd2(a, R_H, P_WS, H4_OFF, S(7), 40960)

    def areads(ks):
        out = []
        for t in range(7):
            for hh in range(2):
                out.append((A(28 * (ks % 2) + 4 * t + 2 * hh, 2), V(VAB[ks // 9]), f"offset:{(ks%9)*7168 + hh*3584 + 32*t}"))
        return out

    a.s_mov_b32(S(63), 64)
    a.v_lshlrev_b32(V(81), 4, V(3))
    a.v_add_u32(V(81), CS_L, V(81))
    a.wait(lgkm=0)
    a.s_barrier()
    stamp(a, 8)
    a.label("L_G1")
    btk = {}

    def bload(n):
        if n % 4 == 0:
            a.s_mov_b32(S(48), n * 1024)
        btk[n] = a.buffer_load_dwordx4(V(BB + 4 * n, 4), V(5), S(R_H, 4), S(48), mods=f"offen offset:{(n%4)*1024} sc1")

    def touch(n):
        a.buffer_load_dword(V(95), V(94), S(R_X, 4), 0, mods="offen sc1")

    queue = [(bload, n) for n in range(40)] + [(wload, n) for n in wq if n < 50]
    wq = [n for n in wq if n >= 50]
    for _ in range(12):
        f, n = queue.pop(0); f(n)
    G1ST = os.environ.get("G1ST", "0") == "1"
    if G1ST:
        stamp(a, 1)
    atk = [a.ds_read_b64_tr_b16(d, ad, mods=mods) for d, ad, mods in areads(0)]
    for ks in range(20):
        b = BB + 8 * ks
        if G1ST and ks in (1, 5, 10, 15):
            stamp(a, {1: 2, 5: 3, 10: 4, 15: 5}[ks])
        if ks == 0:
            a.wvm(btk[1])
            a.v_swap_b32(V(b + 2), V(b + 4))
            a.v_swap_b32(V(b + 3), V(b + 5))
        nxt = areads(ks + 1) if ks < 19 else []
        ntk = []
        nl = int(os.environ.get("NL", "3"))
        if ks == 17:
            queue += [(wload, n) for n in range(50, 60)]

        def slot():
            if nxt:
                d, ad, mods = nxt.pop(0)
                ntk.append(a.ds_read_b64_tr_b16(d, ad, mods=mods))

        for p in range(2):
            a.v_mfma_f32_16x16x32_bf16(V(SQ + 4 * p, 4), V(b + 4 * p, 4), V(b + 4 * p, 4), V(SQ + 4 * p, 4) if ks else 0)
            slot()
        for t in range(7):
            if t in (0, 3):
                a.wds(atk[5 if t == 0 else 13])
            for p in range(2):
                acc = ACC + 8 * t + 4 * p
                a.v_mfma_f32_16x16x32_bf16(V(acc, 4), A(28 * (ks % 2) + 4 * t, 4), V(b + 4 * p, 4), V(acc, 4) if ks else 0)
                slot()
                if p == 1 and t % 2 == 1 and nl and queue:
                    f, n = queue.pop(0); f(n)
                    nl -= 1
                if t == 6 and ks < 19:
                    if p == 0:
                        a.wvm(btk[2 * ks + 3])
                        a.v_swap_b32(V(b + 10), V(b + 12))
                        a.v_swap_b32(V(b + 11), V(b + 13))
        atk = ntk
    stamp(a, 9)
    queue += [(wload, n) for n in range(60, 70)]
    for _ in range(int(os.environ.get("NEP", "8"))):
        f, n = queue.pop(0); f(n)
    CSR = 96
    for t in range(7):
        a.ds_read_b128(V(CSR + 4 * t, 4), V(81), mods=f"offset:{64*t}")
    a.v_mov_b32(V(14), MODE_L)
    a.ds_read_b32(V(14), V(14))
    a.v_and_b32(V(10), 3, V(2))
    a.v_lshrrev_b32(V(11), 2, V(2))
    a.v_lshl_add_u32(V(11), V(11), 4, V(2))
    a.v_lshlrev_b32(V(11), 2, V(11))
    a.v_lshlrev_b32(V(12), 2, V(2))
    a.v_add_u32(V(12), 192, V(12))
    S1 = [124, 125]; S2 = [82, 83]
    for r in (1, 2, 3):
        a.v_cmp_eq_u32("vcc", r, V(10))
        for p in range(2):
            a.v_cndmask_b32(V(SQ + 4 * p), V(SQ + 4 * p), V(SQ + 4 * p + r), "vcc")
    for p in range(2):
        a.ds_bpermute_b32(V(S2[p]), V(11), V(SQ + 4 * p))
        a.ds_bpermute_b32(V(S1[p]), V(12), V(ACC + 8 * 6 + 4 * p))
    a.s_mul_i32(S(47), S(S_CT), 27 * 256)
    a.s_add_u32(S(48), S(47), 4096)
    a.v_cmp_eq_u32("vcc", 3, V(3))
    a.v_mov_b32(V(13), "0x40000000")
    a.v_cndmask_b32(V(13), V(5), V(13), "vcc")
    a.wait(lgkm=0)
    if POISON:
        a.v_cmp_u_f32("vcc", V(S2[0]), V(S2[1]))
        a.s_cbranch_vccnz("L_G1RETRY")
        a.label("L_G1OK")
    RS = [84, 86]; NM = [88, 90]
    ln_stats2(a, S1, S2, RS, NM, 92, 93, 640)
    OB = 128
    a.v_readfirstlane_b32(S(61), V(14))
    if os.environ.get("FORCESLOW", "0") == "1":
        a.s_mov_b32(S(61), 1)
    a.s_lshl_b32(S(62), S(60), 4)
    a.s_add_u32(S(62), S(62), S(S_CT))
    a.s_lshl_b32(S(62), S(62), 7)
    a.s_add_u32(S(62), S(62), FH1)
    slow, done = newlab("slow"), newlab("done")
    a.s_cmp_lg_u32(S(61), 0)
    a.s_cbranch_scc1(slow)
    nvm0 = a.nvm
    for variant in ("", "sc1"):
        a.nvm = nvm0
        for t in range(7):
            ob = OB + 4 * t
            for p in range(2):
                for hh in range(2):
                    r = ACC + 8 * t + 4 * p + 2 * hh
                    a.v_pk_mul_f32(V(r, 2), V(r, 2), V(RS[p], 2), mods="op_sel_hi:[1,0]")
            for p in range(2):
                for hh in range(2):
                    r = ACC + 8 * t + 4 * p + 2 * hh
                    a.v_pk_fma_f32(V(r, 2), V(CSR + 4 * t + 2 * hh, 2), V(NM[p], 2), V(r, 2), mods="op_sel_hi:[1,0,1]")
            for p in range(2):
                for hh in range(2):
                    r = ACC + 8 * t + 4 * p + 2 * hh
                    a.v_cvt_pk_bf16_f32(V(ob + 2 * p + hh), V(r), V(r + 1))
            for i in range(4):
                a.v_pk_max_i16(V(ob + i), V(ob + i), 0)
            t_st = a.buffer_store_dwordx4(V(ob, 4), V(13 if t == 6 else 5), S(R_X, 4), S(47 if t < 4 else 48), mods=f"offen offset:{1024*(t%4)} {variant}")
        if variant == "":
            touch(0)
            a.wait(vm=1)
        else:
            a.wait(vm=0)
        a.s_barrier()
        set_flag(a, S(62), 10, variant)
        if variant == "":
            a.s_branch(done)
            a.label(slow)
    a.label(done)
    stamp(a, 10)
    HR = 232
    a.s_lshl_b32(S(4), S(S_RB2), 1)
    a.s_lshr_b32(S(5), S(S_WAVE), 1)
    a.s_add_u32(S(5), S(5), S(4))
    a.s_mul_i32(S(7), S(5), 40960)
    srd2(a, R_H, P_WS, H4_OFF, S(7), 40960)
    a.s_mul_i32(S(47), S(S_CT2), 20 * 256)
    a.s_and_b32(S(5), S(S_WAVE), 1)
    a.s_lshl_b32(S(5), S(5), 3)
    a.s_add_u32(S(47), S(47), S(5))
    a.s_add_u32(S(48), S(47), 4096)
    for t in range(5):
        a.buffer_load_dwordx2(V(HR + 2 * t, 2), V(5), S(R_H, 4), S(47 if t < 4 else 48), mods=f"offen offset:{1024*(t%4)} sc1")
    skip = newlab("p1")
    a.s_cmp_lg_u32(S(S_WAVE), 0)
    a.s_cbranch_scc1(skip)
    flag_addr(a, 8, 16, VL)
    a.s_lshl_b32(S(47), S(60), 11)
    a.s_add_u32(S(47), S(47), FH1)
    poll_flags(a, 8, S(47), 16, 12)
    a.s_cmp_eq_u32(S(61), 0)
    a.s_cbranch_scc1(skip)
    a.I("buffer_inv", mods="sc1")
    a.wait(vm=0)
    a.label(skip)
    RB = [24, 28]
    for p in range(2):
        a.s_add_u32(S(5), S(4), p)
        a.s_mul_i32(S(7), S(5), 110592)
        srd2(a, RB[p], P_WS, H1_OFF, S(7), 110592)
    a.s_lshl_b32(S(47), S(S_WAVE), 11)
    a.s_barrier()
    stamp(a, 11)
    ND = 6
    htk = {}

    def hload(n):
        s, r = divmod(n, 4)
        p, hh = divmod(r, 2)
        if r == 0:
            a.s_add_u32(S(48), S(47), s * 8192)
        htk[n] = a.buffer_load_dwordx4(V(BB + 16 * (s % ND) + 8 * p + 4 * hh, 4), V(5), S(RB[p], 4), S(48), mods=f"offen offset:{1024*hh} {HLD}")

    NS = 14
    nissued = 0
    for _ in range(12):
        hload(nissued); nissued += 1
    for s in range(NS):
        b = BB + 16 * (s % ND)
        bn = BB + 16 * ((s + 1) % ND)
        if s == 0:
            a.wvm(htk[3])
            for p in range(2):
                a.v_swap_b32(V(b + 8 * p + 2), V(b + 8 * p + 4))
                a.v_swap_b32(V(b + 8 * p + 3), V(b + 8 * p + 5))
        n = 0
        lim = min(4 * NS, 4 * (s + ND))
        budget = 5
        if s == 13 and os.environ.get("WBL2", "0") == "1":
            nowb = newlab("nowb")
            a.s_lshr_b32(S(6), S(2), 3)
            a.s_add_u32(S(6), S(6), S(S_WAVE))
            a.s_cmp_lg_u32(S(6), 0)
            a.s_cbranch_scc1(nowb)
            a.I("buffer_wbl2", mods="sc1")
            a.nvm -= 1
            a.label(nowb)
        for t in range(5):
            for bt in range(4):
                acc = ACC + (bt * 5 + t) * 4
                a.v_mfma_f32_16x16x32_bf16(V(acc, 4), w2dst(s, t), V(b + 4 * bt, 4), V(acc, 4) if s else 0)
                n += 1
                if n % 3 == 1 and nissued < lim and budget:
                    hload(nissued); nissued += 1; budget -= 1
                if n in (3, 9) and queue:
                    f, nn = queue.pop(0); f(nn)
                if n in (17, 18) and s < NS - 1:
                    p = n - 17
                    if p == 0:
                        a.wvm(max(htk[4 * s + 7], wtk[5 * s + 9]))
                    a.v_swap_b32(V(bn + 8 * p + 2), V(bn + 8 * p + 4))
                    a.v_swap_b32(V(bn + 8 * p + 3), V(bn + 8 * p + 5))
    assert nissued == 4 * NS and not queue
    stamp(a, 12)
    a.s_mul_i32(S(48), S(S_WAVE), 20 * 1024)
    a.v_add_u32(V(6), S(48), V(5))
    for bt in range(4):
        for t in range(5):
            a.ds_write_b128(V(6), V(ACC + (bt * 5 + t) * 4, 4), mods=f"offset:{(bt*5+t)*1024}")
    a.v_add_u32(V(7), S(46), V(5))
    a.v_add_u32(V(8), 40 * 1024, V(7))
    srd(a, 12, P_OUT, 0, 2048 * 640 * 2)
    a.v_mul_u32_u24(V(9), 1280, V(2))
    a.v_lshl_add_u32(V(9), V(3), 3, V(9))
    a.s_lshl_b32(S(48), S(S_RB2), 2)
    a.s_add_u32(S(48), S(48), S(S_WAVE))
    a.s_mul_i32(S(48), S(48), 16 * 1280)
    a.s_mul_i32(S(49), S(S_CT2), 160)
    a.s_add_u32(S(48), S(48), S(49))
    a.wait(lgkm=0)
    a.s_barrier()
    RD = 96
    rt = []
    for t in range(5):
        for w in range(4):
            x = a.ds_read_b128(V(RD + (t * 4 + w) * 4, 4), V(7 if w < 2 else 8), mods=f"offset:{(w%2)*20*1024 + t*1024}")
        rt.append(x)
    for t in range(5):
        a.wds(rt[t])
        r = RD + t * 16
        for hh in range(2):
            a.v_pk_add_f32(V(r + 2 * hh, 2), V(r + 2 * hh, 2), V(r + 4 + 2 * hh, 2))
            a.v_pk_add_f32(V(r + 8 + 2 * hh, 2), V(r + 8 + 2 * hh, 2), V(r + 12 + 2 * hh, 2))
        for hh in range(2):
            a.v_pk_add_f32(V(r + 2 * hh, 2), V(r + 2 * hh, 2), V(r + 8 + 2 * hh, 2))
        for hh in range(2):
            a.v_cvt_pk_bf16_f32(V(r + 4 + hh), V(r + 2 * hh), V(r + 2 * hh + 1))
        for hh in range(2):
            a.v_lshlrev_b32(V(r + 2 * hh), 16, V(r + 4 + hh))
            a.v_and_b32(V(r + 2 * hh + 1), "0xffff0000", V(r + 4 + hh))
            a.v_lshlrev_b32(V(r + 8 + 2 * hh), 16, V(HR + 2 * t + hh))
            a.v_and_b32(V(r + 8 + 2 * hh + 1), "0xffff0000", V(HR + 2 * t + hh))
        for hh in range(2):
            a.v_pk_add_f32(V(r + 2 * hh, 2), V(r + 2 * hh, 2), V(r + 8 + 2 * hh, 2))
        for hh in range(2):
            a.v_cvt_pk_bf16_f32(V(r + 4 + hh), V(r + 2 * hh), V(r + 2 * hh + 1))
        a.buffer_store_dwordx2(V(r + 4, 2), V(9), S(12, 4), S(48), mods=f"offen offset:{32*t} " + os.environ.get("OUTF", ""))


def gemm1_retry(a):
    a.label("L_G1RETRY")
    a.s_sub_u32(S(63), S(63), 1)
    a.s_cbranch_scc1("L_G1OK")
    if STAMPS and os.environ.get("DBGT", "0") != "1":
        a.v_mov_b32(V(8), 4)
        a.v_mov_b32(V(9), 1)
        a.s_mov_b64("exec", 1)
        a.buffer_atomic_add(V(9), V(8), S(R_DBG, 4), 0, mods="offen sc1")
        a.s_mov_b64("exec", -1)
    a.wait(vm=0)
    a.s_branch("L_G1")


NSTAMP = 13


def gen():
    a = Asm()
    a.s_load_dwordx16(S(16, 16), S(0, 2), 0)
    a.s_load_dwordx8(S(32, 8), S(0, 2), 64)
    a.s_load_dwordx4(S(40, 4), S(0, 2), 96)
    a.s_load_dwordx2(S(44, 2), S(0, 2), 112)
    a.s_memrealtime(S(4, 2))
    if STAMPS:
        for i in range(1, NSTAMP):
            a.s_mov_b32(S(76 + 2 * i), 0)
    stamp(a, 0)
    a.s_cmp_ge_u32(S(2), 256)
    a.s_cbranch_scc1("L_END")
    a.v_lshrrev_b32(V(1), 6, V(0))
    a.v_readfirstlane_b32(S(S_WAVE), V(1))
    a.v_and_b32(V(1), 63, V(0))

    def common_setup():
        a.s_mov_b32(S(S_SPIN), SPIN_MAX)
        a.s_getreg_b32(S(S_XCC), "hwreg(HW_REG_XCC_ID, 0, 4)")
        srd(a, R_DBG, P_DBG, 0, 256)
        srd(a, R_SY, P_WS, SY_OFF, SY_SZ)

    a.s_cmp_lt_u32(S(2), 160)
    a.s_cbranch_scc1("L_CONV")
    a.s_cmp_eq_u32(S(S_WAVE), 3)
    a.s_cbranch_scc1("L_AUX3")
    xt = aux_first(a)
    nvm_aux = a.nvm
    a.s_branch("L_AUX")
    a.label("L_AUX3")
    a.v_mov_b32(V(14), 0)
    a.v_mov_b32(V(13), 0)
    a.wait(lgkm=0)
    srd(a, R_DBG, P_DBG, 0, 256)
    a.s_or_b32(S(4), S(4), 1)
    a.v_mov_b32(V(12), S(4))
    a.s_mov_b64("exec", 1)
    a.buffer_atomic_cmpswap(V(12, 2), V(14), S(R_DBG, 4), 0, mods="offen sc0 sc1")
    a.s_mov_b64("exec", -1)
    code_prefetch(a)
    a.s_branch("L_AUX3B")
    a.label("L_CONV")
    a.nvm = 0
    a.wait(lgkm=0)
    ktk = conv_first(a)
    common_setup()
    conv_role(a, ktk)
    a.s_branch("L_COMMON")
    if POISON:
        gemm1_retry(a)
    a.label("L_AUX3B")
    a.nvm = 1 + NCODE
    common_setup()
    aux_role(a, None)
    a.s_branch("L_AUXJ")
    a.label("L_AUX")
    a.nvm = nvm_aux
    common_setup()
    aux_role(a, xt)
    a.label("L_AUXJ")
    aux_tail(a)
    a.label("L_COMMON")
    gemms(a)
    if STAMPS:
        a.wait(vm=0)
        a.s_memrealtime(S(4, 2))
        a.wait(lgkm=0)
        srd(a, 8, P_WS, ST_OFF, 0x100000)
        a.s_lshl_b32(S(6), S(2), 2)
        a.s_add_u32(S(6), S(6), S(S_WAVE))
        a.s_lshl_b32(S(6), S(6), 6)
        for i in range(NSTAMP):
            a.v_mov_b32(V(8 + i), S(76 + 2 * i))
        a.v_mov_b32(V(8 + NSTAMP), S(4))
        a.v_mov_b32(V(2), 0)
        a.s_mov_b64("exec", 1)
        for q in range(4):
            a.buffer_store_dwordx4(V(8 + 4 * q, 4), V(2), S(8, 4), S(6), mods=f"offen offset:{16*q}")
        if os.environ.get("DBGT", "0") == "1":
            a.v_not_b32(V(30), V(8))
            a.buffer_atomic_umax(V(30), V(2), S(R_DBG, 4), 0, mods="offen offset:4 sc1")
            for i in range(NSTAMP + 1):
                a.buffer_atomic_umax(V(8 + i), V(2), S(R_DBG, 4), 0, mods=f"offen offset:{8+4*i} sc1")
    if os.environ.get("FIXT", "0") != "0":
        a.label("L_FIX")
        a.s_memrealtime(S(4, 2))
        a.wait(lgkm=0)
        a.s_sub_u32(S(4), S(4), S(S_NONCE))
        a.s_cmp_lt_u32(S(4), int(os.environ["FIXT"]))
        a.s_cbranch_scc1("L_FIX")
    a.label("L_END")
    a.s_endpgm()
    return kernel_text(NAME + "_kernel", a, 256, nagpr=256, nsgpr=102)


def main(path):
    ref = open(f"cdna_kernels/{NAME}.s.ref").read().splitlines()
    head = [l for l in ref if l.startswith(";") and "@launch" not in l]
    out = "\n".join(head) + "\n"
    out += f"; @launch grid=(256,1,1) block=(256,1,1) lds={LDS_SZ}\n"
    out += '.amdgcn_target "amdgcn-amd-amdhsa--gfx950"\n'
    out += gen()
    open(path, "w").write(out)


if __name__ == "__main__":
    main(sys.argv[1] if len(sys.argv) > 1 else f"cdna_kernels/{NAME}.s")
```

```python
import sys, struct, os
sys.path.insert(0, "dev")
from asmlib import *

NAME = "sequential_preLN__ssm_conv_s4__dense_activation_relu__prompt"
STAMPS = os.environ.get("STAMPS", "0") == "1"

SY_OFF, SY_SZ = 0x0, 0x1C000
FRP, FH, FH1 = 0x4000, 0x8000, 0x10000
FCS = 0x18000
W2P_OFF, W2P_SZ = 0x100000, 8 * 54 * 5 * 1024
H4_OFF, H4_SZ = 0x700000, 64 * 40960
H1_OFF, H1_SZ = 0xA00000, 64 * 110592
ST_OFF = 0x2000000

P_U, P_ARE, P_AIM, P_BRE, P_BIM, P_CRE, P_CIM, P_LDT = 16, 18, 20, 22, 24, 26, 28, 30
P_DSK, P_BX, P_W1, P_W2 = 32, 34, 36, 38
P_OUT, P_DBG, P_WS = 40, 42, 44
S_WAVE = 3
R_SY, R_DBG = 64, 68
S_NONCE, S_SPIN, S_M0W, S_D2 = 72, 73, 74, 75
R_W1 = 52
VPA = 231
DUMMY_L = 0x100000
S_XCC = 0
S_MIS = 18
MODE_L = 147456
RS_L = 151552
VW1 = 248
SPIN_MAX = 400000

KS_SZ = 23296
WT_L, WT_P = 93184, 8256
UB_L = 126208
CSP_L, CS_L = 144640, 148480
XH_L, XH_P = 147200, 4160
LDS_SZ = 163840
Q_EARLY = 21
NCODE = 5
PSLEEP = int(os.environ.get("PSLEEP", "0"))
SYT = os.environ.get("SYT", "1") == "1"
H1WN = eval(os.environ.get("H1WN", "[(i,14) for i in range(7)]"))
H1W = os.environ.get("H1W", "1") == "1"
DMAN = eval(os.environ.get("DMAN", "(26, 30, 34)"))
XTOUCH = os.environ.get("XTOUCH", "0") == "1"
W2Q = eval(os.environ.get("W2Q", "[]"))
STEARLY = os.environ.get("STEARLY", "0") == "1"
NODMA = os.environ.get("NODMA", "0") == "1"
POISON = os.environ.get("POISON", "1") == "1"
GATHER = eval(os.environ.get("GATHER", "{-1:[0,1,2,3,4], 6:[5], 10:[6], 14:[7]}"))
HLD = os.environ.get("HLD", "sc1")
LOG2E = 1.4426950408889634


def f32(x):
    return "0x%08x" % struct.unpack("<I", struct.pack("<f", x))[0]


def stamp(a, i):
    if STAMPS:
        if os.environ.get("STAMPCLK", "0") == "1":
            a.s_memtime(S(76 + 2 * i, 2))
        else:
            a.s_memrealtime(S(76 + 2 * i, 2))


def srd(a, d, p, off, size):
    if off == 0:
        a.s_mov_b32(S(d), S(p))
        a.s_mov_b32(S(d + 1), S(p + 1))
    else:
        a.s_add_u32(S(d), S(p), off if isinstance(off, str) else hex(off))
        a.s_addc_u32(S(d + 1), S(p + 1), 0)
    a.s_mov_b32(S(d + 2), hex(size))
    a.s_mov_b32(S(d + 3), "0x20000")


def srd2(a, d, p, off, soff, size):
    a.s_add_u32(S(d), S(p), soff)
    a.s_addc_u32(S(d + 1), S(p + 1), 0)
    a.s_add_u32(S(d), S(d), hex(off))
    a.s_addc_u32(S(d + 1), S(d + 1), 0)
    a.s_mov_b32(S(d + 2), hex(size))
    a.s_mov_b32(S(d + 3), "0x20000")


def cmuln(a, dsts, xs, ws, tmps):
    n = len(dsts)
    for i in range(n):
        a.v_pk_mul_f32(V(tmps[i], 2), V(xs[i], 2), V(ws[i], 2), mods="op_sel:[0,0] op_sel_hi:[1,0]")
    for i in range(n):
        a.v_pk_fma_f32(V(dsts[i], 2), V(xs[i], 2), V(ws[i], 2), V(tmps[i], 2), mods="op_sel:[1,1,0] op_sel_hi:[0,1,1] neg_lo:[1,0,0]")


def rnd2(a, x0, x1, t):
    a.v_cvt_pk_bf16_f32(V(t), V(x0), V(x1))
    a.v_lshlrev_b32(V(x0), 16, V(t))
    a.v_and_b32(V(x1), "0xffff0000", V(t))


def ln_stats2(a, s1, s2, rs, nm, t0, t1, n):
    inv = f32(1.0 / n)
    for i in range(2):
        a.v_mul_f32(V(s1[i]), inv, V(s1[i]))
    for i in range(2):
        a.v_mul_f32(V(s2[i]), inv, V(s2[i]))
    for i in range(2):
        a.v_fma_f32(V(s2[i]), "-" + V(s1[i]), V(s1[i]), V(s2[i]))
    for i in range(2):
        a.v_max_f32(V(s2[i]), 0, V(s2[i]))
    rnd2(a, s2[0], s2[1], t0)
    rnd2(a, s1[0], s1[1], t1)
    for i in range(2):
        a.v_add_f32(V(s2[i]), f32(1e-5), V(s2[i]))
    rnd2(a, s2[0], s2[1], t0)
    for i in range(2):
        a.v_sqrt_f32(V(s2[i]), V(s2[i]))
    rnd2(a, s2[0], s2[1], t0)
    for i in range(2):
        a.v_rcp_f32(V(rs[i]), V(s2[i]))
    for i in range(2):
        a.v_mul_f32(V(nm[i]), "-" + V(s1[i]), V(rs[i]))


_lab = [0]


def newlab(p):
    _lab[0] += 1
    return f"L{p}_{_lab[0]}"


def spin_branch(a, loop, done_fallthrough=True):
    out = newlab("to")
    a.s_sub_u32(S(S_SPIN), S(S_SPIN), 1)
    a.s_cmp_lt_i32(S(S_SPIN), 0)
    a.s_cbranch_scc1(out)
    a.s_cbranch_vccnz(loop)
    a.label(out)


def flag_loads(a, voff, base, count, dst):
    n = (count + 63) // 64
    t = None
    for q in range(n):
        t = a.buffer_load_dwordx2(V(dst + 2 * q, 2), V(voff + q), S(R_SY, 4), base, mods="offen sc1")
    return t


def xcc_mismatch(a, voff, count, dst, sacc):
    n = (count + 63) // 64
    a.s_and_b32(S(6), S(2), 7)
    for q in range(n):
        a.v_bfe_u32(V(dst + 2 * q), V(voff + q), 7, 3)
        a.v_cmp_eq_u32(S(48, 2), S(6), V(dst + 2 * q))
        a.v_cmp_ne_u32("vcc", S(S_XCC), V(dst + 2 * q + 1))
        a.s_and_b64(S(48, 2), S(48, 2), "vcc")
        a.s_or_b64(S(sacc, 2), S(sacc, 2), S(48, 2))


def flag_addr(a, voff, count, vlane):
    n = (count + 63) // 64
    for q in range(n):
        if q:
            a.v_add_u32(V(voff + q), 64 * q, V(vlane))
            a.v_min_u32(V(voff + q), count - 1, V(voff + q))
        else:
            a.v_min_u32(V(voff), count - 1, V(vlane))
        a.v_lshlrev_b32(V(voff + q), 7, V(voff + q))


def flag_check(a, dst, count):
    n = (count + 63) // 64
    for q in range(n):
        a.v_xor_b32(V(dst + 2 * q), S(S_NONCE), V(dst + 2 * q))
    for q in range(1, n):
        a.v_or_b32(V(dst), V(dst), V(dst + 2 * q))
    a.v_cmp_ne_u32("vcc", 0, V(dst))


def poll_flags(a, voff, base, count, dst, sleep=0):
    n = (count + 63) // 64
    lp, out = newlab("poll"), newlab("pollx")
    for q in range(n):
        a.s_mov_b64(S(32 + 2 * q, 2), -1)
    a.label(lp)
    for q in range(n):
        sk = newlab("pq")
        a.s_mov_b64("exec", S(32 + 2 * q, 2))
        if n > 1:
            a.s_cbranch_execz(sk)
        a.buffer_load_dwordx2(V(dst + 2 * q, 2), V(voff + q), S(R_SY, 4), base, mods="offen sc1")
        a.label(sk)
    a.s_mov_b64("exec", -1)
    a.wait(vm=0)
    for q in range(n):
        a.v_cmp_ne_u32(S(32 + 2 * q, 2), S(S_NONCE), V(dst + 2 * q))
    if n == 1:
        a.s_mov_b64("vcc", S(32, 2))
    else:
        a.s_or_b64("vcc", S(32, 2), S(34, 2))
        if n == 3:
            a.s_or_b64("vcc", "vcc", S(36, 2))
    if PSLEEP:
        a.s_cbranch_vccz(out)
        a.s_sleep(PSLEEP)
    spin_branch(a, lp)
    a.label(out)


def set_flag(a, soff, vt, sc="sc1"):
    skip = newlab("nf")
    a.s_cmp_lg_u32(S(S_WAVE), 0)
    a.s_cbranch_scc1(skip)
    a.v_mov_b32(V(vt + 2), 0)
    a.v_mov_b32(V(vt), S(S_NONCE))
    a.v_mov_b32(V(vt + 1), S(S_XCC))
    a.s_mov_b64("exec", 1)
    a.buffer_store_dwordx2(V(vt, 2), V(vt + 2), S(R_SY, 4), soff, mods=f"offen {sc}")
    a.s_mov_b64("exec", -1)
    a.label(skip)


def kgen_loads(a, s_d):
    VL = 1
    PR = 8
    a.s_lshl_b32(S(5), S(s_d), 8)
    a.v_lshl_add_u32(V(2), V(VL), 2, S(5))
    a.s_lshl_b32(S(5), S(s_d), 1)
    a.v_mov_b32(V(3), S(5))
    t_ldt = a.global_load_ushort(V(PR + 6), V(3), S(P_LDT, 2))
    for i, p in enumerate((P_ARE, P_AIM, P_BRE, P_BIM, P_CRE, P_CIM)):
        t_par = a.global_load_dword(V(PR + i), V(2), S(p, 2))
    t_dsk = a.global_load_ushort(V(PR + 7), V(3), S(P_DSK, 2))
    return t_ldt, t_dsk


def kgen(a, tks, s_lds, s_wt, hook):
    VL = 1
    PR = 8
    t_ldt, t_dsk = tks
    hook(-1)
    VW, VRA, VRB = 4, 5, 6
    a.v_lshl_add_u32(V(VW), V(VL), 3, S(s_lds))
    a.v_and_b32(V(16), 15, V(VL))
    a.v_lshrrev_b32(V(17), 4, V(VL))
    a.v_and_b32(V(18), 1, V(17))
    a.v_lshlrev_b32(V(18), 8, V(18))
    a.v_lshrrev_b32(V(19), 1, V(17))
    a.v_lshl_add_u32(V(18), V(19), 7, V(18))
    a.v_add_u32(V(18), S(s_lds), V(18))
    a.v_mul_u32_u24(V(19), 528, V(16))
    a.v_add_u32(V(VRA), V(18), V(19))
    a.v_min_u32(V(19), 8, V(16))
    a.v_mul_u32_u24(V(19), 528, V(19))
    a.v_add_u32(V(VRB), V(18), V(19))
    a.s_mov_b32(S(50), f32(LOG2E))
    a.s_mov_b32(S(51), f32(LOG2E - struct.unpack("<f", struct.pack("<f", LOG2E))[0]))
    a.s_mov_b32(S(52), f32(16.0))
    a.s_mov_b32(S(53), f32(16.0))
    a.s_mov_b32(S(54), f32(512.0))
    a.s_mov_b32(S(55), f32(512.0))
    TA1, TA2, TA3, TB3, TA4, TB4 = 224, 225, 226, 227, 228, 229
    TABO = 0
    a.s_add_u32(S(56), S(s_lds), TABO + 16)
    a.v_lshlrev_b32(V(TA1), 6, V(16))
    a.v_lshl_add_u32(V(TA1), V(17), 4, V(TA1))
    a.v_lshrrev_b32(V(TA2), 1, V(TA1))
    a.v_add_u32(V(TA1), S(56), V(TA1))
    a.v_add_u32(V(TA2), S(56), V(TA2))
    a.v_add_u32(V(TA2), 1024, V(TA2))
    a.v_cmp_eq_u32("vcc", 0, V(17))
    a.v_mov_b32(V(30), 8)
    a.v_mov_b32(V(31), 256)
    a.v_cndmask_b32(V(30), V(30), 16, "vcc")
    a.v_cndmask_b32(V(31), V(31), 8, "vcc")
    a.v_lshlrev_b32(V(TA3), 9, V(17))
    a.v_mad_u32_u24(V(TA3), V(30), V(16), V(TA3))
    a.v_add_u32(V(TA3), S(56), V(TA3))
    a.v_add_u32(V(TB3), V(TA3), V(31))
    a.v_lshl_add_u32(V(TA4), V(30), 4, V(TA3))
    a.v_add_u32(V(TB4), V(TA4), V(31))
    DT = 20
    a.wvm(t_ldt)
    a.v_lshlrev_b32(V(21), 16, V(PR + 6))
    a.v_mul_f32(V(22), S(50), V(21))
    a.v_fma_f32(V(23), V(21), S(50), "-" + V(22))
    a.v_fma_f32(V(23), V(21), S(51), V(23))
    a.v_exp_f32(V(22), V(22))
    a.v_mul_f32(V(23), f32(0.6931471805599453), V(23))
    a.v_fma_f32(V(22), V(22), V(23), V(22))
    a.v_cvt_pk_bf16_f32(V(22), V(22), V(22))
    a.v_lshlrev_b32(V(DT), 16, V(22))
    a.v_mul_f32(V(22), S(50), V(DT))
    a.v_mul_f32(V(23), "0.15915494", V(DT))
    Z = [24, 26]; B = [28, 30]; C = [32, 34]
    a.wvm(t_dsk)
    stamp(a, 1)
    hook(100)
    for base, pi in ((Z, 0), (B, 2), (C, 4)):
        for comp in range(2):
            a.v_lshlrev_b32(V(base[0] + comp), 16, V(PR + pi + comp))
            a.v_and_b32(V(base[1] + comp), "0xffff0000", V(PR + pi + comp))
    for s in range(2):
        a.v_pk_mul_f32(V(Z[s], 2), V(Z[s], 2), V(22, 2))
    for s in range(2):
        a.v_pk_mul_f32(V(B[s], 2), V(B[s], 2), V(DT, 2), mods="op_sel_hi:[1,0]")
    T = [36, 38]
    T2 = [216, 218]
    XC = [40, 42]
    W1 = [44, 46]; W16 = [48, 50]; W512 = [52, 54]
    ARG = [56, 58, 60, 62, 64, 66]
    EX = [68, 70, 72, 74, 76, 78]
    dsts = [W1[0], W1[1], W16[0], W16[1], W512[0], W512[1]]
    for s in range(2):
        a.v_pk_mul_f32(V(ARG[2 + s], 2), V(Z[s], 2), S(52, 2))
        a.v_pk_mul_f32(V(ARG[4 + s], 2), V(Z[s], 2), S(54, 2))
    cmuln(a, XC, C, B, T)
    srcs = [Z[0], Z[1], ARG[2], ARG[3], ARG[4], ARG[5]]
    for i in range(6):
        a.v_fract_f32(V(ARG[i] + 1), V(srcs[i] + 1))
    for s in range(2):
        a.v_xor_b32(V(XC[s] + 1), "0x80000000", V(XC[s] + 1))
    for i in range(6):
        a.v_exp_f32(V(EX[i]), V(srcs[i]))
        a.v_cos_f32(V(dsts[i]), V(ARG[i] + 1))
        a.v_sin_f32(V(dsts[i] + 1), V(ARG[i] + 1))
    for i in range(6):
        neg = " neg_hi:[1,0]" if i in (2, 3) else ""
        a.v_pk_mul_f32(V(dsts[i], 2), V(dsts[i], 2), V(EX[i], 2), mods="op_sel_hi:[1,0]" + neg)
    PK = [80, 82, 84, 86]
    npk = [0]

    def put_rows(rows):
        ps = []
        for row, r in rows:
            p = PK[npk[0] % 4]
            npk[0] += 1
            ps.append(p)
            a.v_cvt_pk_bf16_f32(V(p), V(r[0]), V(r[0] + 1))
            a.v_cvt_pk_bf16_f32(V(p + 1), V(r[1]), V(r[1] + 1))
        for (row, r), p in zip(rows, ps):
            a.ds_write_b64(V(VW), V(p, 2), mods=f"offset:{row*528}")

    XR0 = 25
    a.v_mov_b32(V(220), "0x3f80")
    a.v_mov_b32(V(221), "0x3f80")
    a.ds_write_b64(V(VW), V(220, 2), mods="offset:0")
    E4 = [56, 58]; E8 = [60, 62]; E12 = [64, 66]; CUR = [68, 70]
    E1024 = [72, 74]; E1536 = [76, 78]
    yprog = [(1, W1, None, None)]
    cur = W1
    for j in range(2, 16):
        dst = {4: E4, 8: E8, 12: E12}.get(j, CUR)
        yprog.append((j, dst, cur, W1))
        cur = dst
    yprog += [(16, W512, None, None), (17, CUR, W512, E4), (18, CUR, W512, E8), (19, CUR, W512, E12),
              (20, E1024, W512, W512), (21, CUR, E1024, E8), (22, E1536, E1024, W512), (23, CUR, E1536, E8), (24, CUR, E1024, E1024)]
    YA, YB, XF, XF2 = 88, 120, 152, 184
    ACC = 8
    reads = []
    for i in range(32):
        ds_, xs_, ws_, ts_, rows = [], [], [], [], []
        if i:
            ds_ += XC; xs_ += XC; ws_ += W16; ts_ += T
        rows.append((XR0 + i if i < 16 else i - 16, XC))
        if yprog:
            row, dst, x, w = yprog.pop(0)
            if x is not None:
                ds_ += dst; xs_ += x; ws_ += w; ts_ += T2
            rows.append((row, dst))
        cmuln(a, ds_, xs_, ws_, ts_)
        put_rows(rows)
        hook(i)
        if i == 14:
            for m in range(4):
                a.ds_read_b128(V(YA + 4 * m, 4), V(VRA), mods=f"offset:{16*m}")
        if i == 15:
            for m in range(4, 8):
                a.ds_read_b128(V(YA + 4 * m, 4), V(VRA), mods=f"offset:{16*m}")
        if i == 16:
            reads += [(XF + 4 * m, VRA, XR0 * 528 + 16 * m) for m in range(8)]
        if i == 23:
            reads += [(YB + 4 * m, VRB, 16 * 528 + 16 * m) for m in range(8)]
        for _ in range(2):
            if reads:
                d, ad, off = reads.pop(0)
                a.ds_read_b128(V(d, 4), V(ad), mods=f"offset:{off}")
    assert not reads and not yprog
    t_pre = a.nds
    tk = []
    for m in range(8):
        tk.append(a.ds_read_b128(V(XF2 + 4 * m, 4), V(VRA), mods=f"offset:{16*m}"))
    hook(200)
    a.v_lshlrev_b32(V(32), 16, V(PR + 7))
    a.v_cmp_eq_u32("vcc", 0, V(VL))
    a.v_cndmask_b32(V(32), 0, V(32), "vcc")
    a.v_mov_b32(V(33), 0)
    a.v_mov_b32(V(34), S(56))
    a.wds(t_pre)
    for m in range(8):
        a.v_mfma_f32_16x16x32_bf16(V(ACC, 4), V(YA + 4 * m, 4), V(XF + 4 * m, 4), V(ACC, 4) if m else 0)
        a.v_mfma_f32_16x16x32_bf16(V(ACC + 8, 4), V(YB + 4 * m, 4), V(XF + 4 * m, 4), V(ACC + 8, 4) if m else 0)
    a.wait(lgkm=0)
    for m in range(8):
        a.v_mfma_f32_16x16x32_bf16(V(ACC + 4, 4), V(YA + 4 * m, 4), V(XF2 + 4 * m, 4), V(ACC + 4, 4) if m else 0)
        a.v_mfma_f32_16x16x32_bf16(V(ACC + 12, 4), V(YB + 4 * m, 4), V(XF2 + 4 * m, 4), V(ACC + 12, 4) if m else 0)
        if m == 4:
            a.v_add_f32(V(ACC), V(ACC), V(32))
            a.v_subrev_u32(V(38), 4, V(34))
            a.ds_write_b32(V(38), V(33))
            a.ds_write_b128(V(TA1), V(ACC, 4))
            a.ds_write_b64(V(TA3), V(ACC + 8, 2), mods=f"offset:{384*4}")
            a.ds_write_b64(V(TB3), V(ACC + 10, 2), mods=f"offset:{384*4}")
    a.v_lshl_add_u32(V(35), V(VL), 4, S(56))
    a.v_lshl_add_u32(V(36), V(VL), 3, S(56))
    a.v_add_u32(V(37), 2048, V(36))
    a.v_subrev_u32(V(38), 4, V(35))
    a.v_lshl_add_u32(V(60), V(VL), 4, S(s_wt))
    a.v_lshl_add_u32(V(61), V(VL), 5, S(s_wt))
    a.v_lshl_add_u32(V(62), V(VL), 6, S(s_wt))
    R0, R0P, R1, R1P, R2, R3 = 40, 44, 48, 45, 52, 56
    a.ds_read_b128(V(R0, 4), V(35))
    t0 = a.ds_read_b32(V(R0P), V(38))
    a.ds_write2_b32(V(TA2), V(ACC + 4), V(ACC + 6), mods="offset0:0 offset1:1")
    a.ds_write_b64(V(TA4), V(ACC + 12, 2), mods=f"offset:{384*4}")
    a.ds_write_b64(V(TB4), V(ACC + 14, 2), mods=f"offset:{384*4}")
    a.ds_read2_b64(V(R1, 4), V(36), mods="offset0:128 offset1:129")
    t1 = a.ds_read_b32(V(R1P), V(34), mods=f"offset:{255*4}")
    t2 = a.ds_read2_b64(V(R2, 4), V(36), mods="offset0:192 offset1:193")
    t3 = a.ds_read2_b64(V(R3, 4), V(37), mods="offset0:0 offset1:1")

    def emit_out(region, q, vreg):
        voff = (60, 60, 61, 62)[region]
        imm = 64 + (0, 1024, 2048, 4096)[region] + 16 * q
        a.ds_write_b128(V(voff), V(vreg, 4), mods=f"offset:{imm}")

    OUT = 88
    cv = lambda d, x, y: a.v_cvt_pk_bf16_f32(V(d), V(x), V(y))
    a.wds(t0)
    cv(OUT, R0, R0P); cv(OUT + 1, R0 + 1, R0); cv(OUT + 2, R0 + 2, R0 + 1); cv(OUT + 3, R0 + 3, R0 + 2)
    emit_out(0, 0, OUT)
    a.wds(t1)
    a.v_cndmask_b32(V(R1P), V(R1), V(R1P), "vcc")
    o = OUT + 4
    cv(o + 1, R1, R1); cv(o + 2, R1 + 1, R1); cv(o + 3, R1 + 2, R1 + 1); cv(o, R1, R1P)
    emit_out(1, 0, o)
    a.wds(t2)
    A_, B_, C_ = R2, R2 + 1, R2 + 2
    o = OUT + 8
    for i, (x, y) in enumerate([(A_, A_), (A_, A_), (A_, A_), (B_, A_), (B_, B_), (B_, B_), (C_, B_), (C_, C_)]):
        cv(o + i, x, y)
    emit_out(2, 0, o); emit_out(2, 1, o + 4)
    a.wds(t3)
    A_, B_, C_ = R3, R3 + 1, R3 + 2
    o = OUT + 16
    seq = [(A_, A_)] * 5 + [(B_, A_)] + [(B_, B_)] * 6 + [(C_, B_)] + [(C_, C_)] * 3
    for i, (x, y) in enumerate(seq):
        cv(o + i, x, y)
        if i % 4 == 3:
            emit_out(3, i // 4, o + i - 3)


def calc_ct(a, sd):
    a.s_and_b32(S(sd), S(2), 7)
    a.s_lshl_b32(S(sd), S(sd), 4)
    a.s_add_u32(S(sd), S(sd), S(2))
    a.s_bfe_u32(S(sd), S(sd), "0x40003")


def w1_addr(a, t0, t1):
    a.s_mov_b32(S(48), 3456 - 224)
    calc_ct(a, 49)
    a.s_bitcmp1_b32(S(49), 0)
    a.s_cselect_b32(S(49), 0, 208)
    a.v_mov_b32(V(VPA), DUMMY_L)
    for q in range(7):
        a.v_add_u32(V(t0), 256 * q, V(0))
        a.v_mul_u32_u24(V(t1), 4682, V(t0))
        a.v_lshrrev_b32(V(t1), 16, V(t1))
        a.v_lshlrev_b32(V(t0), 4, V(t0))
        a.v_mad_u32_u24(V(VW1 + q), V(t1), S(48), V(t0))
        a.v_mul_u32_u24(V(t1), 224, V(t1))
        a.v_sub_u32(V(t1), V(t0), V(t1))
        a.v_cmp_eq_u32("vcc", S(49), V(t1))
        a.v_cndmask_b32(V(VPA), V(VPA), V(t0), "vcc")


def w1_patch(a, groups, vt, VPA=31):
    a.v_mov_b32(V(vt), "0x3f80")
    a.v_mov_b32(V(vt + 1), 0)
    a.s_sub_u32(S(6), 8, S(S_D2))
    a.v_cmp_gt_u32("vcc", DUMMY_L, V(VPA))
    a.v_add_u32(V(vt + 2), S(6), V(VPA))
    a.s_and_saveexec_b64(S(48, 2), "vcc")
    cur = 0
    for g in groups:
        off = g * 28672 - cur
        if off > 65535:
            a.v_add_u32(V(vt + 2), off, V(vt + 2))
            cur = g * 28672
            off = 0
        a.ds_write_b64(V(vt + 2), V(vt, 2), mods=f"offset:{off}")
    a.s_mov_b64("exec", S(48, 2))
    a.v_mov_b32(V(vt + 2), 143360)
    a.ds_write_b64(V(vt + 2), V(vt, 2))


def w1_srd(a):
    calc_ct(a, 6)
    a.s_mul_i32(S(6), S(6), 216)
    a.s_and_b32(S(S_D2), S(6), 15)
    a.s_sub_u32(S(6), S(6), S(S_D2))
    a.s_add_u32(S(R_W1), S(P_W1), S(6))
    a.s_addc_u32(S(R_W1 + 1), S(P_W1 + 1), 0)
    a.s_sub_u32(S(R_W1 + 2), 640 * 3456, S(6))
    a.s_mov_b32(S(R_W1 + 3), "0x20000")
    a.s_lshl_b32(S(S_M0W), S(S_WAVE), 10)


def w1_dma(a, q, perm=None):
    g = q // 7
    if perm is None or perm[g] == g:
        a.s_add_u32("m0", S(S_M0W), 4096 * q)
        a.s_mov_b32(S(63), g * 128 * 3456)
    else:
        if q % 7 == 0:
            a.s_bitcmp1_b32(S(2), 7)
            a.s_cselect_b32(S(50), perm[g], g)
            a.s_mul_i32(S(51), S(50), 7 * 4096)
            a.s_add_u32(S(51), S(51), S(S_M0W))
            a.s_mul_i32(S(50), S(50), 128 * 3456)
        a.s_add_u32("m0", S(51), 4096 * (q % 7))
        a.s_mov_b32(S(63), S(50))
    return a.buffer_load_dwordx4(V(VW1 + q % 7), S(R_W1, 4), S(63), mods="offen lds")


def w2_quarter_setup(a, vt):
    srd(a, 24, P_WS, W2P_OFF, W2P_SZ)
    a.s_lshr_b32(S(6), S(2), 3)
    a.s_mul_i32(S(6), S(6), 540 * 128)
    a.v_min_u32(V(vt), 179, V(0))
    a.v_lshl_add_u32(V(vt), V(vt), 7, S(6))


def w2_quarter_load(a, vt, i, dst):
    a.s_mov_b32(S(63), i * 180 * 128)
    a.buffer_load_dword(V(dst), V(vt), S(24, 4), S(63), mods="offen sc1")


def h1_prewrite_setup(a, vt):
    calc_ct(a, 6)
    a.s_mul_i32(S(6), S(6), 27 * 256)
    a.s_and_b32(S(7), S(2), 7)
    a.s_lshl_b32(S(7), S(7), 1)
    a.s_bfe_u32(S(5), S(2), "0x10007")
    a.s_add_u32(S(7), S(7), S(5))
    a.s_lshl_b32(S(7), S(7), 2)
    a.s_add_u32(S(7), S(7), S(S_WAVE))
    a.s_mul_i32(S(7), S(7), 110592)
    a.s_add_u32(S(6), S(6), S(7))
    srd2(a, 28, P_WS, H1_OFF, S(6), 6912)
    a.v_lshlrev_b32(V(vt), 4, V(1))


def h1_prewrite(a, vt, vd, i):
    a.s_mov_b32(S(63), 1024 * i)
    a.buffer_store_dwordx4(V(vd, 4), V(vt), S(28, 4), S(63), mods="offen sc1")


def conv_first(a):
    S_DG = 60
    a.s_and_b32(S(6), S(2), 7)
    a.s_mul_i32(S(6), S(6), 20)
    a.s_lshr_b32(S(7), S(2), 3)
    a.s_add_u32(S(S_DG), S(6), S(7))
    a.s_lshl_b32(S(6), S(S_DG), 2)
    a.s_add_u32(S(6), S(6), S(S_WAVE))
    return kgen_loads(a, 6)


def h_store_addr(a, vj, vg, voff):
    a.v_mul_u32_u24(V(voff), 40960, V(vg))
    a.v_lshl_add_u32(V(voff), V(vj), 4, V(voff))
    srd(a, 12, P_WS, H4_OFF, H4_SZ)
    a.s_mul_i32(S(58), S(S_WAVE), 16 * 40960)
    a.s_lshl_b32(S(57), S(60), 8)
    a.s_add_u32(S(58), S(58), S(57))


def conv_role(a, ktk):
    VL = 1
    S_DG, S_KS, S_WT = 60, 61, 59
    a.s_mul_i32(S(S_KS), S(S_WAVE), KS_SZ)
    a.s_mul_i32(S(S_WT), S(S_WAVE), WT_P)
    a.s_add_u32(S(S_WT), S(S_WT), WT_L)
    XR = 232
    tk = {}

    def hook(i):
        if i < 0:
            srd(a, 8, P_U, 0, 2048 * 640 * 2)
            a.v_mul_u32_u24(V(7), 10240, V(0))
            a.s_lshl_b32(S(6), S(S_DG), 3)
            a.s_add_u32(S(7), S(6), 5120)
            if XTOUCH:
                a.s_lshr_b32(S(46), S(2), 3)
                a.s_mul_i32(S(46), S(46), 103 * 1280)
                a.s_and_b32(S(47), S(2), 7)
                a.s_mul_i32(S(47), S(47), 160)
                a.s_add_u32(S(46), S(46), S(47))
                a.v_lshrrev_b32(V(24), 1, V(0))
                a.v_min_u32(V(24), 102, V(24))
                a.v_mul_u32_u24(V(24), 1280, V(24))
                a.v_and_b32(V(25), 1, V(0))
                a.v_mul_u32_u24(V(25), 156, V(25))
                a.v_add_u32(V(24), V(24), V(25))
                a.buffer_load_dword(V(231), V(24), S(8, 4), S(46), mods="offen")
            if -1 in GATHER:
                a.s_barrier()
                for e in GATHER[-1]:
                    tk["x"] = a.buffer_load_dwordx2(V(XR + 2 * e, 2), V(7), S(8, 4), S(6 if e < 4 else 7), mods=f"offen offset:{(e%4)*1280}")
            w1_addr(a, 24, 25)
        elif i == 200:
            a.v_lshlrev_b32(V(2), 6, V(0))
            a.v_mov_b32(V(3), 0)
            if STEARLY:
                stat_loads()
        else:
            for e in GATHER.get(i, []):
                tk["x"] = a.buffer_load_dwordx2(V(XR + 2 * e, 2), V(7), S(8, 4), S(6 if e < 4 else 7), mods=f"offen offset:{(e%4)*1280}")

    SR = 64

    def stat_loads():
        for i in range(4):
            a.buffer_load_dwordx4(V(SR + 4 * i, 4), V(2), S(R_SY, 4), 0, mods=f"offen offset:{16*i} sc1")
        a.buffer_load_dword(V(24), V(3), S(R_DBG, 4), 0, mods="offen sc1")

    kgen(a, ktk, S_KS, S_WT, hook)
    stamp(a, 3)
    if not STEARLY:
        stat_loads()
    a.v_mov_b32(V(31), V(VPA))
    a.v_mov_b32(V(25), 0)
    a.s_mul_i32(S(5), S(S_WAVE), 4608)
    a.s_add_u32(S(5), S(5), UB_L)
    a.v_lshl_add_u32(V(26), V(VL), 2, S(5))
    a.ds_write_b32(V(26), V(25))
    a.ds_write_b32(V(26), V(25), mods="offset:2304")
    a.v_and_b32(V(27), 15, V(VL))
    a.v_lshrrev_b32(V(28), 4, V(VL))
    a.v_lshl_add_u32(V(29), V(27), 2, S(S_WT))
    a.ds_write_b32(V(29), V(25))
    VA, VBQ = 32, 40
    a.v_lshl_add_u32(V(VA), V(VL), 2, S(S_WT))
    for c in range(1, 8):
        a.v_add_u32(V(VA + c), 1024 * c, V(VA))
    a.v_sub_u32(V(VBQ), V(27), V(28))
    a.v_add_u32(V(VBQ), 3, V(VBQ))
    a.v_lshl_add_u32(V(VBQ), V(VBQ), 4, S(5))
    a.s_mov_b32(S(46), "0x05040100")
    a.s_mov_b32(S(47), "0x07060302")
    XS, F = 48, 128
    a.wvm(tk["x"])
    stamp(a, 2)
    for c in range(4):
        for k in range(4):
            a.v_perm_b32(V(XS + 4 * c + k), V(XR + 2 * (2 * k + 1) + (c >> 1)), V(XR + 2 * (2 * k) + (c >> 1)), S(46 + (c & 1)))
    a.v_lshlrev_b32(V(41), 4, V(0))
    a.v_add_u32(V(41), XH_L, V(41))
    for c in range(4):
        a.ds_write_b128(V(41), V(XS + 4 * c, 4), mods=f"offset:{c*XH_P}")
    for i in range(16):
        a.v_lshlrev_b32(V(F + 2 * i), 16, V(XS + i))
        a.v_and_b32(V(F + 2 * i + 1), "0xffff0000", V(XS + i))
    a.v_and_b32(V(42), 1, V(0))
    a.v_mul_u32_u24(V(42), 2304, V(42))
    a.v_lshrrev_b32(V(43), 1, V(0))
    a.v_lshl_add_u32(V(42), V(43), 4, V(42))
    a.v_add_u32(V(42), UB_L + 256, V(42))
    h_store_addr(a, 27, 28, 255)
    for q in range(4):
        a.v_mov_b32(V(212 + q), -1)
    lp, first = newlab("st"), newlab("stf")
    a.s_branch(first)
    a.label(lp)
    stat_loads()
    a.label(first)
    a.wait(vm=0)
    a.v_readfirstlane_b32(S(S_NONCE), V(24))
    a.v_min3_u32(V(25), V(SR + 1), V(SR + 3), V(SR + 5))
    a.v_max3_u32(V(26), V(SR + 1), V(SR + 3), V(SR + 5))
    a.v_min3_u32(V(25), V(25), V(SR + 7), V(SR + 9))
    a.v_max3_u32(V(26), V(26), V(SR + 7), V(SR + 9))
    a.v_min3_u32(V(25), V(25), V(SR + 11), V(SR + 13))
    a.v_max3_u32(V(26), V(26), V(SR + 11), V(SR + 13))
    a.v_min3_u32(V(25), V(25), V(SR + 15), V(24))
    a.v_max3_u32(V(26), V(26), V(SR + 15), V(24))
    a.v_max_u32(V(26), 1, V(26))
    a.v_cmp_ne_u32("vcc", V(25), V(26))
    spin_branch(a, lp)
    stamp(a, 4)
    if POISON:
        for q in range(4):
            a.s_add_u32(S(57), S(58), 4 * q * 40960)
            t_poi = a.buffer_store_dwordx4(V(212, 4), V(255), S(12, 4), S(57), mods="offen sc1")
    RS, NM = 96, 104
    for e in range(8):
        a.v_and_b32(V(RS + e), "0xffff0000", V(SR + 2 * e))
        a.v_lshlrev_b32(V(NM + e), 16, V(SR + 2 * e))
    for e in range(8):
        a.v_rcp_f32(V(RS + e), V(RS + e))
    for k in range(4):
        a.v_pk_mul_f32(V(NM + 2 * k, 2), V(NM + 2 * k, 2), V(RS + 2 * k, 2), mods="neg_lo:[1,0] neg_hi:[1,0]")
    for c in range(4):
        for k in range(4):
            f = F + 2 * (4 * c + k)
            a.v_pk_fma_f32(V(f, 2), V(f, 2), V(RS + 2 * k, 2), V(NM + 2 * k, 2))
        for k in range(4):
            f = F + 2 * (4 * c + k)
            a.v_cvt_pk_bf16_f32(V(XS + 4 * c + k), V(f), V(f + 1))
        a.ds_write_b128(V(42), V(XS + 4 * c, 4), mods=f"offset:{c*4608}")
    OPS = [48, 112]
    ACC = 216
    XQ, XFL = 8, 176
    subs = [(g, h) for g in range(4) for h in range(2)]

    def loadsA(si):
        g, h = subs[si]
        base = OPS[si % 2]
        out = []
        for c in range(8):
            o = 8 + 64 * g + 8 * h
            out.append(("ds_read2_b32", (V(base + 4 * c, 2), V(VA + c)), f"offset0:{o} offset1:{o-2}"))
            out.append(("ds_read2_b32", (V(base + 4 * c + 2, 2), V(VA + c)), f"offset0:{o-4} offset1:{o-6}"))
        return out

    def loadsB(si):
        g, h = subs[si]
        base = OPS[si % 2]
        par = 1 - h
        return [("ds_read_b128", (V(base + 32 + 4 * c, 4), V(VBQ)), f"offset:{par*2304 + (13 + 16*c - 4*g)*16}") for c in range(8)]

    a.s_mul_i32(S(6), S(S_WAVE), XH_P)
    a.s_add_u32(S(6), S(6), XH_L)
    a.v_lshlrev_b32(V(44), 5, V(27))
    a.v_lshl_add_u32(V(44), V(28), 3, V(44))
    a.v_add_u32(V(44), S(6), V(44))
    flag_addr(a, 45, 96, VL)
    w1_srd(a)
    w2_quarter_setup(a, 47)
    h1_prewrite_setup(a, 30)
    if os.environ.get("OT", "0") == "2":
        a.v_lshlrev_b32(V(29), 21, V(VL))
        a.v_min_u32(V(29), 0x200000, V(29))
        a.global_load_dword(V(29), V(29), S(P_OUT, 2))
    a.wait(lgkm=0)
    a.s_barrier()
    stamp(a, 5)
    for op, args, mods in loadsB(0) + loadsA(0):
        a.I(op, *args, mods=mods)
    started = set()
    t_rp = None
    nq = 0
    for si in range(8):
        base = OPS[si % 2]
        nxt = []
        if si < 7:
            la, lb = loadsA(si + 1), loadsB(si + 1)
            for c in range(8):
                nxt += [la[2 * c], la[2 * c + 1], lb[c]]
        if si == 0:
            nxt += [("ds_read_b64", (V(XQ + 2 * T, 2), V(44)), f"offset:{512*T}") for T in range(8)]
        extra = []
        if si == 1:
            for i in range(16):
                extra.append(("v_lshlrev_b32", (V(XFL + 2 * i), 16, V(XQ + i)), ""))
                extra.append(("v_and_b32", (V(XFL + 2 * i + 1), "0xffff0000", V(XQ + i)), ""))
        a.wait(lgkm=0)
        if si == 7:
            t_rp = flag_loads(a, 45, S(62), 96, 208)
        if si == 4:
            a.s_mov_b32(S(62), FRP)
        order = [(c, gp) for c in range(8) for gp in range(8 - c)]
        for n, (c, gp) in enumerate(order):
            T = c + gp
            a.v_mfma_f32_16x16x32_bf16(V(ACC + 4 * T, 4), V(base + 4 * c, 4), V(base + 32 + 4 * gp, 4), V(ACC + 4 * T, 4) if T in started else 0)
            started.add(T)
            if nxt:
                op, args, mods = nxt.pop(0)
                a.I(op, *args, mods=mods)
            if extra:
                op, args, mods = extra.pop(0)
                a.I(op, *args, mods=mods)
            if n in DMAN and nq < Q_EARLY:
                if not NODMA:
                    w1_dma(a, nq, perm=[1, 2, 0])
                nq += 1
            if H1W and (si, n) in H1WN:
                h1_prewrite(a, 30, 212, H1WN.index((si, n)))
            if (si, n) in W2Q:
                w2_quarter_load(a, 47, W2Q.index((si, n)), 29)
    assert nq == Q_EARLY
    stamp(a, 6)
    for T in range(8):
        for hh in range(2):
            r = ACC + 4 * T + 2 * hh
            a.v_pk_add_f32(V(r, 2), V(r, 2), V(XFL + 4 * T + 2 * hh, 2))
        p = 48 + 2 * T
        a.v_cvt_pk_bf16_f32(V(p), V(ACC + 4 * T), V(ACC + 4 * T + 1))
        a.v_cvt_pk_bf16_f32(V(p + 1), V(ACC + 4 * T + 2), V(ACC + 4 * T + 3))
        a.ds_write_b64(V(44), V(p, 2), mods=f"offset:{512*T}")
    a.v_bfe_u32(V(8), V(VL), 2, 2)
    a.v_mul_u32_u24(V(8), XH_P, V(8))
    a.v_lshl_add_u32(V(8), V(28), 6, V(8))
    a.v_and_b32(V(9), 3, V(VL))
    a.v_lshl_add_u32(V(8), V(9), 3, V(8))
    a.s_lshl_b32(S(6), S(S_WAVE), 10)
    a.s_add_u32(S(6), S(6), XH_L)
    a.v_add_u32(V(8), S(6), V(8))
    if POISON:
        a.wvm(t_poi)
    a.wait(lgkm=0)
    a.s_barrier()
    HO = 64
    tks = []
    for i in range(4):
        a.ds_read_b64_tr_b16(V(HO + 4 * i, 2), V(8), mods=f"offset:{256*i}")
        tks.append(a.ds_read_b64_tr_b16(V(HO + 4 * i + 2, 2), V(8), mods=f"offset:{256*i+32}"))
    for i in range(4):
        a.wds(tks[i])
        a.s_add_u32(S(7), S(58), 4 * i * 40960)
        t_st = a.buffer_store_dwordx4(V(HO + 4 * i, 4), V(255), S(12, 4), S(7), mods="offen sc1")
    a.s_lshl_b32(S(6), S(2), 7)
    a.s_add_u32(S(6), S(6), FH)
    if not POISON:
        a.wvm(t_st)
    a.s_barrier()
    set_flag(a, S(6), 10)
    stamp(a, 7)
    a.nvm -= 1
    for q in range(Q_EARLY, 35):
        w1_dma(a, q, perm=[0, 1, 2, 4, 3])
    a.wvm(t_rp)
    ok = newlab("rpok")
    flag_check(a, 208, 96)
    a.s_cbranch_vccz(ok)
    poll_flags(a, 45, S(62), 96, 208)
    a.label(ok)


def repack_addr(a, vo):
    a.s_mov_b32(S(48), 1280 - 160)
    for i in range(5):
        a.v_add_u32(V(4), 64 * i, V(1))
        a.v_mul_u32_u24(V(3), 6554, V(4))
        a.v_lshrrev_b32(V(3), 16, V(3))
        a.v_lshlrev_b32(V(4), 4, V(4))
        a.v_mad_u32_u24(V(vo + i), V(3), S(48), V(4))
    a.v_lshrrev_b32(V(4), 2, V(1))
    a.v_mul_u32_u24(V(4), 160, V(4))
    a.v_and_b32(V(3), 3, V(1))
    a.v_lshl_add_u32(V(vo + 5), V(3), 3, V(4))


def repack_load(a, s_idx, s_keep, vo, vd, rsrc):
    a.s_and_b32(S(s_keep), S(s_idx), 7)
    a.s_lshr_b32(S(s_keep + 1), S(s_idx), 3)
    a.s_mul_i32(S(6), S(s_keep + 1), 32 * 1280)
    a.s_mul_i32(S(7), S(s_keep), 160)
    a.s_add_u32(S(6), S(6), S(7))
    return [a.buffer_load_dwordx4(V(vd + 4 * i, 4), V(vo + i), S(rsrc, 4), S(6), mods="offen") for i in range(5)]


def repack_proc(a, s_keep, vo, vd, tks, s_lds):
    a.v_lshl_add_u32(V(4), V(1), 4, S(s_lds))
    a.v_add_u32(V(5), S(s_lds), V(vo + 5))
    a.v_lshlrev_b32(V(7), 4, V(1))
    a.s_mul_i32(S(49), S(s_keep), 54)
    a.s_add_u32(S(49), S(49), S(s_keep + 1))
    a.s_mul_i32(S(49), S(49), 5 * 1024)
    a.s_add_u32(S(50), S(49), 4096)
    for i in range(5):
        a.wvm(tks[i])
        a.ds_write_b128(V(4), V(vd + 4 * i, 4), mods=f"offset:{1024*i}")
    if vd == 104:
        stamp(a, 4)
    rt = []
    for t in range(5):
        a.ds_read_b64_tr_b16(V(vd + 4 * t, 2), V(5), mods=f"offset:{32*t}")
        rt.append(a.ds_read_b64_tr_b16(V(vd + 4 * t + 2, 2), V(5), mods=f"offset:{32*t+16*160}"))
    for t in range(5):
        a.wds(rt[t])
        a.buffer_store_dwordx4(V(vd + 4 * t, 4), V(7), S(12, 4), S(49 if t < 4 else 50), mods=f"offen offset:{1024*(t%4)} sc1")


def aux_first(a):
    VL = 1
    S_AI, S_O = 60, 57
    a.s_sub_u32(S(S_AI), S(2), 160)
    a.s_mul_i32(S(S_O), S(S_AI), 3)
    a.s_add_u32(S(S_O), S(S_O), S(S_WAVE))
    a.v_lshrrev_b32(V(2), 3, V(VL))
    a.v_mul_u32_u24(V(2), 1280, V(2))
    a.v_and_b32(V(3), 7, V(VL))
    a.v_lshl_add_u32(V(2), V(3), 4, V(2))
    a.s_mul_i32(S(6), S(S_O), 10240)
    a.wait(lgkm=0)
    srd(a, 8, P_U, 0, 2048 * 640 * 2)
    return [a.buffer_load_dwordx4(V(16 + 4 * i, 4), V(2), S(8, 4), S(6), mods=f"offen offset:{128*i}") for i in range(10)]


def code_prefetch(a):
    a.s_getpc_b64(S(6, 2))
    a.label("L_PC")
    a.s_sub_u32(S(6), S(6), "L_PC-" + NAME + "_kernel")
    a.s_subb_u32(S(7), S(7), 0)
    a.v_lshlrev_b32(V(2), 7, V(1))
    for i in range(NCODE):
        a.v_min_u32(V(3), "L_END-" + NAME + "_kernel", V(2))
        a.global_load_dword(V(244), V(3), S(6, 2))
        a.v_add_u32(V(2), 8192, V(2))


def aux_role(a, xt):
    VL = 1
    S_AI, S_GW, S_KS, S_O = 60, 61, 62, 57
    XB = 16
    if xt is None:
        a.s_sub_u32(S(S_AI), S(2), 160)
        a.s_mov_b32(S(S_NONCE), S(4))
    a.s_lshl_b32(S(S_GW), S(S_AI), 2)
    a.s_add_u32(S(S_GW), S(S_GW), S(S_WAVE))
    a.s_mul_i32(S(S_KS), S(S_WAVE), 5120)
    a.s_add_u32(S(S_KS), S(S_KS), 143360)
    repack_addr(a, 64)
    srd(a, 24, P_W2, 0, 1728 * 640 * 2)
    srd(a, 28, P_W1, 0, 640 * 1728 * 2)
    tt = {}

    def wloads():
        tt[2] = repack_load(a, S_GW, 4, 64, 104, 24)
        if xt is None:
            a.s_add_u32(S(56), S(S_AI), 384)
            tt[3] = repack_load(a, 56, 58, 64, 72, 24)
        if os.environ.get("W1E", "0") == "1":
            a.v_lshlrev_b32(V(6), 7, V(VL))
            a.s_lshl_b32(S(6), S(S_GW), 13)
            a.buffer_load_dword(V(238), V(6), S(28, 4), S(6), mods="offen")

    AUXLATE = os.environ.get("AUXLATE", "1") == "1"
    if not AUXLATE:
        wloads()
    if xt is None:
        a.v_and_b32(V(71), 3, V(VL))
        a.v_lshlrev_b32(V(71), 10, V(71))
    else:
        a.s_lshl_b32(S(6), S(S_WAVE), 10)
        a.v_mov_b32(V(71), S(6))
    if xt is None:
        a.wvm(1)
        a.v_readfirstlane_b32(S(6), V(12))
        a.s_cmp_eq_u32(S(6), 0)
        a.s_cselect_b32(S(S_NONCE), S(S_NONCE), S(6))
        a.v_mov_b32(V(13), S(S_NONCE))
        a.ds_write_b32(V(71), V(13))
        a.wait(lgkm=0)
        stamp(a, 7)
        a.s_barrier()
    w1_addr(a, 4, 5)
    srd(a, 12, P_WS, W2P_OFF, W2P_SZ)
    if xt is not None:
        a.s_mov_b32(S(46), "0x3f803f80")
        for i in range(10):
            a.wvm(xt[i])
            for q in range(4):
                x = V(XB + 4 * i + q)
                first = (i == 0 and q < 2)
                a.v_dot2_f32_bf16(V(8 + (q & 1)), x, S(46), 0 if first else V(8 + (q & 1)))
                a.v_dot2_f32_bf16(V(10 + (q & 1)), x, x, 0 if first else V(10 + (q & 1)))
        stamp(a, 7)
        a.s_barrier()
        a.ds_read_b32(V(15), V(71))
        a.v_add_f32(V(8), V(8), V(9))
        a.v_add_f32(V(10), V(10), V(11))
        for m in ("quad_perm:[1,0,3,2]", "quad_perm:[2,3,0,1]", "row_half_mirror"):
            a.v_add_f32_dpp(V(8), V(8), V(8), mods=f"{m} row_mask:0xf bank_mask:0xf")
            a.v_add_f32_dpp(V(10), V(10), V(10), mods=f"{m} row_mask:0xf bank_mask:0xf")
        inv = f32(1.0 / 640)
        a.v_mul_f32(V(8), inv, V(8))
        a.v_mul_f32(V(10), inv, V(10))
        a.v_fma_f32(V(10), "-" + V(8), V(8), V(10))
        a.v_max_f32(V(10), 0, V(10))
        a.v_cvt_pk_bf16_f32(V(9), V(10), V(10))
        a.v_lshlrev_b32(V(10), 16, V(9))
        a.v_add_f32(V(10), f32(1e-5), V(10))
        a.v_cvt_pk_bf16_f32(V(9), V(10), V(10))
        a.v_lshlrev_b32(V(10), 16, V(9))
        a.v_sqrt_f32(V(10), V(10))
        a.v_cvt_pk_bf16_f32(V(14), V(8), V(10))
        a.v_and_b32(V(3), 7, V(VL))
        a.v_cmp_eq_u32("vcc", 0, V(3))
        a.v_mov_b32(V(9), "0x40000000")
        a.v_cndmask_b32(V(9), V(9), V(VL), "vcc")
        a.s_lshl_b32(S(6), S(S_O), 6)
        a.s_cmp_ge_u32(S(S_O), 256)
        a.s_cselect_b32(S(6), "0x40000000", S(6))
        a.wait(lgkm=0)
        a.buffer_store_dwordx2(V(14, 2), V(9), S(R_SY, 4), S(6), mods="offen sc1")
        a.v_readfirstlane_b32(S(S_NONCE), V(15))
        stamp(a, 1)
    if AUXLATE:
        wloads()
    repack_proc(a, 4, 64, 104, tt[2], S_KS)
    if xt is None:
        join = newlab("aj")
        a.s_cmp_ge_u32(S(56), 432)
        a.s_cbranch_scc1(join)
        repack_proc(a, 58, 64, 72, tt[3], S_KS)
        a.label(join)


def aux_tail(a):
    VL = 1
    S_AI = 60
    stamp(a, 5)
    t_rs = a.nvm
    a.v_lshlrev_b32(V(6), 7, V(VL))
    a.s_lshl_b32(S(6), S(61), 13)
    if os.environ.get("W1E", "0") != "1":
        a.buffer_load_dword(V(238), V(6), S(28, 4), S(6), mods="offen")
    w1_srd(a)
    a.v_mov_b32(V(31), V(VPA))
    QB = int(os.environ.get("QB", "0"))
    for q in range(QB):
        w1_dma(a, q, perm=eval(os.environ.get("AP", "[3, 4, 2, 0, 1]")))
    a.wvm(t_rs)
    stamp(a, 6)
    a.s_barrier()
    a.s_lshl_b32(S(6), S(S_AI), 7)
    a.s_add_u32(S(6), S(6), FRP)
    set_flag(a, S(6), 10)
    stamp(a, 2)
    LPF = os.environ.get("LPF", "none")

    def lpf(first, n):
        a.s_lshr_b32(S(5), S(S_AI), 3)
        a.s_mul_i32(S(5), S(5), 192 * 128)
        a.v_min_u32(V(2), 191, V(0))
        a.v_lshlrev_b32(V(2), 7, V(2))
        for i in range(n):
            a.s_add_u32(S(6), S(5), (first + i * 2304) * 128)
            a.buffer_load_dword(V(239), V(2), S(28, 4), S(6), mods="offen")

    if LPF == "all":
        lpf(0, 8)
    if LPF == "first":
        lpf(384 * 27, 3)
    for q in range(QB, 35):
        t_own = w1_dma(a, q, perm=eval(os.environ.get("AP", "[3, 4, 2, 0, 1]")))
    if LPF == "late":
        lpf(384 * 27, 3)
    if H1W:
        h1_prewrite_setup(a, 30)
        for i in range(7):
            h1_prewrite(a, 30, 212, i)
    nocs = newlab("nocs")
    a.s_cmp_ge_u32(S(S_AI), 16)
    a.s_cbranch_scc1(nocs)
    a.v_lshrrev_b32(V(6), 2, V(VL))
    a.v_mul_u32_u24(V(6), 224, V(6))
    a.v_and_b32(V(7), 3, V(VL))
    a.v_lshl_add_u32(V(6), V(7), 3, V(6))
    a.s_mul_i32(S(47), S(S_WAVE), 5 * 7168)
    a.s_add_u32(S(47), S(47), S(S_D2))
    a.v_add_u32(V(6), S(47), V(6))
    for i in range(4):
        a.v_mov_b32(V(12 + i), "0x3f803f80")
    a.s_lshl_b32(S(47), S(S_WAVE), 9)
    a.s_add_u32(S(47), S(47), CSP_L)
    a.v_lshrrev_b32(V(7), 4, V(VL))
    a.v_lshl_add_u32(V(7), V(7), 4, S(47))
    a.wvm(t_own)
    a.s_barrier()
    FR, CA = 32, 176
    for kk in range(6):
        if kk < 5:
            for t in range(7):
                for hh in range(2):
                    a.ds_read_b64_tr_b16(V(FR + 28 * kk + 4 * t + 2 * hh, 2), V(6), mods=f"offset:{kk*7168 + hh*3584 + 32*t}")
        if kk:
            a.wait(lgkm=14 if kk < 5 else 0)
            for t in range(7):
                a.v_mfma_f32_16x16x32_bf16(V(CA + 4 * t, 4), V(FR + 28 * (kk - 1) + 4 * t, 4), V(12, 4), V(CA + 4 * t, 4) if kk > 1 else 0)
    a.s_mov_b32("exec_lo", "0x00010001")
    a.s_mov_b32("exec_hi", "0x00010001")
    for t in range(7):
        a.ds_write_b128(V(7), V(CA + 4 * t, 4), mods=f"offset:{64*t}")
    a.s_mov_b64("exec", -1)
    a.v_and_b32(V(8), 127, V(0))
    a.v_lshlrev_b32(V(9), 2, V(8))
    a.v_add_u32(V(9), CSP_L, V(9))
    a.v_lshlrev_b32(V(8), 3, V(8))
    calc_ct(a, 6)
    a.s_lshl_b32(S(6), S(6), 10)
    a.s_add_u32(S(6), S(6), FCS)
    a.wait(lgkm=0)
    a.s_barrier()
    for w in range(4):
        a.ds_read_b32(V(16 + w), V(9), mods=f"offset:{512*w}")
    a.wait(lgkm=0)
    a.v_add_f32(V(16), V(16), V(17))
    a.v_add_f32(V(18), V(18), V(19))
    a.v_add_f32(V(16), V(16), V(18))
    a.v_mov_b32(V(17), S(S_NONCE))
    a.s_cmp_ge_u32(S(S_WAVE), 2)
    a.s_cbranch_scc1(nocs)
    a.buffer_store_dwordx2(V(16, 2), V(8), S(R_SY, 4), S(6), mods="offen sc1")
    a.label(nocs)
    flag_addr(a, 45, 96, VL)
    a.s_mov_b32(S(62), FRP)
    poll_flags(a, 45, S(62), 96, 208)
    stamp(a, 3)
    if os.environ.get("AQ", "0") == "1":
        w2_quarter_setup(a, 47)
        for i in range(3):
            w2_quarter_load(a, 47, i, 238)


def gemms(a):
    VL = 1
    S_CT, S_TB, S_CT2, S_RB2 = 56, 57, 58, 59
    R_H, R_X, R_W2 = 8, 12, 20
    t_dma = a.nvm
    a.s_mov_b64(S(S_MIS, 2), 0)
    xcc_mismatch(a, 45, 96, 208, S_MIS)
    a.s_and_b32(S(4), S(2), 7)
    a.s_lshl_b32(S(5), S(4), 1)
    a.s_bfe_u32(S(6), S(2), "0x10007")
    a.s_add_u32(S(60), S(5), S(6))
    calc_ct(a, S_CT)
    a.s_lshl_b32(S(S_TB), S(60), 2)
    a.s_add_u32(S(S_TB), S(S_TB), S(S_WAVE))
    a.s_lshl_b32(S(5), S(60), 1)
    a.s_bfe_u32(S(6), S(2), "0x10003")
    a.s_add_u32(S(S_RB2), S(5), S(6))
    a.s_bfe_u32(S(S_CT2), S(2), "0x30004")
    a.v_lshlrev_b32(V(5), 4, V(VL))
    a.v_and_b32(V(2), 15, V(VL))
    a.v_lshrrev_b32(V(3), 4, V(VL))
    a.s_mul_i32(S(7), S(S_CT2), 270 * 1024)
    srd2(a, R_W2, P_WS, W2P_OFF, S(7), 270 * 1024)
    a.s_mul_i32(S(46), S(S_WAVE), 5 * 1024)
    ACC, SQ, BB = 16, 72, 96
    W2V = 192

    def w2dst(s, t):
        if s < 10:
            return A(56 + 20 * s + 4 * t, 4)
        if s < 12:
            return A(20 * (s - 10) + 4 * t, 4)
        return V(W2V + 20 * (s - 12) + 4 * t, 4)

    wtk = {}

    def wload(n):
        if os.environ.get("NOW2", "0") == "1":
            wtk[n] = 0
            return
        s, t = divmod(n, 5)
        if t == 0:
            a.s_add_u32(S(49), S(46), s * 20 * 1024)
        if t == 4:
            a.s_add_u32(S(49), S(49), 4096)
        wtk[n] = a.buffer_load_dwordx4(w2dst(s, t), V(5), S(R_W2, 4), S(49), mods=f"offen offset:{1024*(t%4)} sc1")

    a.s_mul_i32(S(7), S(S_TB), 110592)
    srd2(a, R_X, P_WS, H1_OFF, S(7), 110592)
    a.s_mul_i32(S(47), S(S_CT), 27 * 256)
    a.v_min_u32(V(15), 53, V(VL))
    a.v_lshl_add_u32(V(15), V(15), 7, S(47))
    wq = list(range(70))
    NPRE = int(os.environ.get("NPRE", "15"))
    for _ in range(NPRE):
        wload(wq.pop(0))
    a.v_lshrrev_b32(V(6), 2, V(VL))
    a.v_mul_u32_u24(V(6), 224, V(6))
    a.v_and_b32(V(7), 3, V(VL))
    a.v_lshl_add_u32(V(6), V(7), 3, V(6))
    a.v_add_u32(V(6), S(S_D2), V(6))
    a.v_add_u32(V(7), 9 * 7168, V(6))
    a.v_add_u32(V(4), 18 * 7168, V(6))
    VAB = [6, 7, 4]
    G0ST = os.environ.get("G0ST", "0") == "1"
    if G0ST:
        stamp(a, 1)
    a.wvm(t_dma)
    if G0ST:
        stamp(a, 2)
        a.s_mov_b32(S(76 + 8), 0)
        a.s_mov_b32(S(76 + 10), 0)
    w1_patch(a, range(5), 8)
    skip = newlab("ph")
    a.s_cmp_lg_u32(S(S_WAVE), 0)
    a.s_cbranch_scc1(skip)
    flag_addr(a, 8, 160, VL)
    a.s_mov_b32(S(47), FH)
    if G0ST:
        a.wait(vm=0)
        stamp(a, 4)
    poll_flags(a, 8, S(47), 160, 16)
    if G0ST:
        stamp(a, 5)
    xcc_mismatch(a, 8, 160, 16, S_MIS)
    a.s_cmp_lg_u64(S(S_MIS, 2), 0)
    a.s_cselect_b32(S(6), 1, 0)
    a.v_mov_b32(V(8), MODE_L)
    a.v_mov_b32(V(9), S(6))
    a.ds_write_b32(V(8), V(9))
    a.label(skip)
    a.s_mul_i32(S(7), S(S_TB), 40960)
    srd2(a, R_H, P_WS, H4_OFF, S(7), 40960)

    def areads(ks):
        out = []
        for t in range(7):
            for hh in range(2):
                out.append((A(28 * (ks % 2) + 4 * t + 2 * hh, 2), V(VAB[ks // 9]), f"offset:{(ks%9)*7168 + hh*3584 + 32*t}"))
        return out

    a.s_mov_b32(S(63), 64)
    a.s_lshl_b32(S(47), S(S_WAVE), 9)
    a.s_add_u32(S(47), S(47), CS_L)
    VCR, VCW, VBP, VST6 = 8, 9, 10, 11
    a.v_lshl_add_u32(V(VCR), V(3), 4, S(47))
    a.v_lshl_add_u32(V(VCW), V(VL), 3, S(47))
    a.v_lshlrev_b32(V(VBP), 2, V(2))
    a.v_add_u32(V(VBP), 192, V(VBP))
    a.v_cmp_eq_u32("vcc", 3, V(3))
    a.v_mov_b32(V(VST6), "0x40000000")
    a.v_cndmask_b32(V(VST6), V(5), V(VST6), "vcc")
    a.s_lshl_b32(S(50), S(S_CT), 10)
    a.s_add_u32(S(50), S(50), FCS)
    a.s_mul_i32(S(51), S(S_CT), 27 * 256)
    a.s_lshl_b32(S(62), S(60), 4)
    a.s_add_u32(S(62), S(62), S(S_CT))
    a.s_lshl_b32(S(62), S(62), 7)
    a.s_add_u32(S(62), S(62), FH1)
    a.wait(lgkm=0)
    a.s_barrier()
    stamp(a, 8)
    a.label("L_G1")
    btk = {}

    def bload(n):
        if n % 4 == 0:
            a.s_mov_b32(S(48), n * 1024)
        btk[n] = a.buffer_load_dwordx4(V(BB + 4 * n, 4), V(5), S(R_H, 4), S(48), mods=f"offen offset:{(n%4)*1024} sc1")

    def touch(n):
        a.buffer_load_dword(V(14), V(15), S(R_X, 4), 0, mods="offen sc1")

    ctk = {}

    def csload(n):
        ctk[0] = a.buffer_load_dwordx4(V(84, 4), V(5), S(R_SY, 4), S(50), mods="offen sc1")

    def swapb(ks):
        b = BB + 8 * ks
        a.wvm(btk[2 * ks + 1])
        a.v_swap_b32(V(b + 2), V(b + 4))
        a.v_swap_b32(V(b + 3), V(b + 5))

    queue = [(bload, n) for n in range(40)] + [(csload, 0), (touch, 0)] + [(wload, n) for n in wq if n < 50]
    for _ in range(12):
        f, n = queue.pop(0); f(n)
    a.v_mov_b32(V(12), MODE_L)
    t_mode = a.ds_read_b32(V(12), V(12))
    atk = [a.ds_read_b64_tr_b16(d, ad, mods=mods) for d, ad, mods in areads(0)]
    CSR = 72
    S1 = [12, 13]
    NMv = [72 + 24 - 4, 72 + 24 - 2]
    NL = 3
    NLP = eval(os.environ.get("NLP", "[3,3,4]"))
    for ks in range(19):
        if ks == 1:
            a.v_readfirstlane_b32(S(61), V(12))
            if os.environ.get("FORCESLOW", "0") == "1":
                a.s_mov_b32(S(61), 1)
        if ks == 15:
            a.wvm(ctk[0])
            a.v_xor_b32(V(85), S(S_NONCE), V(85))
            a.v_xor_b32(V(87), S(S_NONCE), V(87))
            a.v_or_b32(V(85), V(85), V(87))
            a.v_cmp_ne_u32("vcc", 0, V(85))
            a.s_cbranch_vccnz("L_CSW")
            a.label("L_CSOK")
            a.ds_write2_b32(V(VCW), V(84), V(86), mods="offset0:0 offset1:1")
        b = BB + 8 * ks
        if ks == 0:
            swapb(0)
        if os.environ.get("G1ST", "0") == "1" and ks in (0, 4, 9, 14):
            stamp(a, {0: 1, 4: 2, 9: 3, 14: 4}[ks])
        nxt = areads(ks + 1)
        if ks == 18:
            nxt = nxt[12:] + nxt[:12]
        ntk = []
        nl = NL
        for t in range(7):
            if t in (0, 3):
                a.wds(atk[5 if t == 0 else 13])
            for p in range(2):
                acc = ACC + 8 * t + 4 * p
                a.v_mfma_f32_16x16x32_bf16(V(acc, 4), A(28 * (ks % 2) + 4 * t, 4), V(b + 4 * p, 4), V(acc, 4) if ks else 0)
                d, ad, mods = nxt.pop(0)
                ntk.append(a.ds_read_b64_tr_b16(d, ad, mods=mods))
                if p == 1 and t in (1, 3, 5, 2)[:NLP[ks % len(NLP)]] and queue:
                    f, n = queue.pop(0); f(n)
                if t == 4 and p == 0:
                    swapb(ks + 1)
        atk = ntk
    b = BB + 8 * 19
    a.wds(atk[1])
    for p in range(2):
        acc = ACC + 48 + 4 * p
        a.v_mfma_f32_16x16x32_bf16(V(acc, 4), A(28 + 24, 4), V(b + 4 * p, 4), V(acc, 4))
    order = [6, 0, 1, 2, 3, 4, 5]
    cst = {}
    for i in range(5):
        cst[order[i]] = a.ds_read_b128(V(CSR + 4 * i, 4), V(VCR), mods=f"offset:{64*order[i]}")
    a.wds(atk[13])
    for t in range(6):
        for p in range(2):
            acc = ACC + 8 * t + 4 * p
            a.v_mfma_f32_16x16x32_bf16(V(acc, 4), A(28 + 4 * t, 4), V(b + 4 * p, 4), V(acc, 4))
        if t == 1:
            for p in range(2):
                t_bp = a.ds_bpermute_b32(V(S1[p]), V(VBP), V(ACC + 48 + 4 * p))
    stamp(a, 9)
    a.wds(t_bp)
    if POISON:
        a.v_cmp_u_f32("vcc", V(S1[0]), V(S1[1]))
        a.s_cbranch_vccnz("L_G1RETRY")
        a.label("L_G1OK")
    for p in range(2):
        a.v_mul_f32(V(S1[p]), f32(1.0 / 640), V(S1[p]))
    a.v_cvt_pk_bf16_f32(V(NMv[1]), "-" + V(S1[0]), "-" + V(S1[1]))
    a.v_lshlrev_b32(V(NMv[0]), 16, V(NMv[1]))
    a.v_and_b32(V(NMv[1]), "0xffff0000", V(NMv[1]))
    a.s_add_u32(S(48), S(51), 4096)
    slow, done = newlab("slow"), newlab("done")
    a.s_cmp_lg_u32(S(61), 0)
    a.s_cbranch_scc1(slow)
    nvm0, nds0 = a.nvm, a.nds
    queue += [(wload, n) for n in range(50, 60)]
    q0 = list(queue)
    SQ = 72
    for variant in ("", "sc1"):
        a.nvm, a.nds = nvm0, nds0
        queue = list(q0)
        for i, t in enumerate(order):
            cs = CSR + 4 * (i % 5)
            if i >= 5:
                a.wds(cst[t])
            for p in range(2):
                for hh in range(2):
                    r = ACC + 8 * t + 4 * p + 2 * hh
                    a.v_pk_fma_f32(V(r, 2), V(cs + 2 * hh, 2), V(NMv[p], 2), V(r, 2), mods="op_sel_hi:[1,0,1]")
            if i < 2:
                cst[order[5 + i]] = a.ds_read_b128(V(cs, 4), V(VCR), mods=f"offset:{64*order[5+i]}")
            ob = ACC + 8 * t
            for q in range(4):
                a.v_cvt_pk_bf16_f32(V(ob + q), V(ob + 2 * q), V(ob + 2 * q + 1))
            for q in range(4):
                a.v_pk_max_i16(V(ob + q), V(ob + q), 0)
            t_st = a.buffer_store_dwordx4(V(ob, 4), V(VST6 if t == 6 else 5), S(R_X, 4), S(51 if t < 4 else 48), mods=f"offen offset:{1024*(t%4)} {variant}")
        nep = int(os.environ.get("NEP", "10"))
        for ks in range(20):
            for p in range(2):
                bb = BB + 8 * ks + 4 * p
                a.v_mfma_f32_16x16x32_bf16(V(SQ + 4 * p, 4), V(bb, 4), V(bb, 4), V(SQ + 4 * p, 4) if ks else 0)
            if (ks % 2 == 1 or nep > 10) and nep and queue:
                f, n = queue.pop(0); f(n); nep -= 1
        a.wvm(t_st)
        a.s_barrier()
        set_flag(a, S(62), 80, variant)
        a.nvm -= 1
        if variant == "":
            a.s_branch(done)
            a.label(slow)
    a.label(done)
    stamp(a, 10)
    queue += [(wload, n) for n in range(60, 70)]
    HR = 232
    a.s_lshl_b32(S(4), S(S_RB2), 1)
    a.s_lshr_b32(S(5), S(S_WAVE), 1)
    a.s_add_u32(S(5), S(5), S(4))
    a.s_mul_i32(S(7), S(5), 40960)
    srd2(a, R_H, P_WS, H4_OFF, S(7), 40960)
    a.s_mul_i32(S(47), S(S_CT2), 20 * 256)
    a.s_and_b32(S(5), S(S_WAVE), 1)
    a.s_lshl_b32(S(5), S(5), 3)
    a.s_add_u32(S(47), S(47), S(5))
    a.s_add_u32(S(48), S(47), 4096)
    for t in range(5):
        t_hr = a.buffer_load_dwordx2(V(HR + 2 * t, 2), V(5), S(R_H, 4), S(47 if t < 4 else 48), mods=f"offen offset:{1024*(t%4)} sc1")
    a.v_and_b32(V(8), 3, V(2))
    for r in (1, 2, 3):
        a.v_cmp_eq_u32("vcc", r, V(8))
        for p in range(2):
            a.v_cndmask_b32(V(SQ + 4 * p), V(SQ + 4 * p), V(SQ + 4 * p + r), "vcc")
    S2 = [SQ, SQ + 4]
    for p in range(2):
        a.v_mul_f32(V(S2[p]), f32(1.0 / 640), V(S2[p]))
    for p in range(2):
        a.v_fma_f32(V(S2[p]), "-" + V(S1[p]), V(S1[p]), V(S2[p]))
    for p in range(2):
        a.v_max_f32(V(S2[p]), 0, V(S2[p]))
    rnd2(a, S2[0], S2[1], 9)
    for p in range(2):
        a.v_add_f32(V(S2[p]), f32(1e-5), V(S2[p]))
    rnd2(a, S2[0], S2[1], 9)
    for p in range(2):
        a.v_sqrt_f32(V(S2[p]), V(S2[p]))
    rnd2(a, S2[0], S2[1], 9)
    for p in range(2):
        a.v_rcp_f32(V(S2[p]), V(S2[p]))
    a.v_lshrrev_b32(V(8), 2, V(2))
    a.s_lshl_b32(S(6), S(S_WAVE), 7)
    a.s_add_u32(S(6), S(6), RS_L)
    a.v_lshl_add_u32(V(9), V(2), 2, S(6))
    a.v_cmp_eq_u32("vcc", V(8), V(3))
    a.s_and_saveexec_b64(S(32, 2), "vcc")
    a.ds_write2_b32(V(9), V(S2[0]), V(S2[1]), mods="offset0:0 offset1:16")
    a.s_mov_b64("exec", S(32, 2))
    RB = [24, 28]
    a.s_lshr_b32(S(6), S(S_WAVE), 1)
    for lp in range(2):
        a.s_xor_b32(S(5), S(6), lp)
        a.s_add_u32(S(5), S(5), S(4))
        a.s_mul_i32(S(7), S(5), 110592)
        srd2(a, RB[lp], P_WS, H1_OFF, S(7), 110592)
    skip = newlab("p1")
    a.s_cmp_lg_u32(S(S_WAVE), 0)
    a.s_cbranch_scc1(skip)
    save = a.nvm
    flag_addr(a, 8, 16, VL)
    a.s_lshl_b32(S(47), S(60), 11)
    a.s_add_u32(S(47), S(47), FH1)
    poll_flags(a, 8, S(47), 16, 12)
    a.s_cmp_eq_u32(S(61), 0)
    a.s_cbranch_scc1(skip)
    a.I("buffer_inv", mods="sc1")
    a.wait(vm=0)
    a.nvm = save
    a.label(skip)
    a.s_lshl_b32(S(47), S(S_WAVE), 11)
    a.wait(lgkm=0)
    a.s_barrier()
    stamp(a, 11)
    ND = 6
    htk = {}

    def hload(n):
        s, r = divmod(n, 4)
        p, hh = divmod(r, 2)
        if r == 0:
            a.s_add_u32(S(48), S(47), s * 8192)
        htk[n] = a.buffer_load_dwordx4(V(BB + 16 * (s % ND) + 8 * p + 4 * hh, 4), V(5), S(RB[p], 4), S(48), mods=f"offen offset:{1024*hh} {HLD}")

    NS = 14
    nissued = 0
    for _ in range(12):
        hload(nissued); nissued += 1
    VRS, VW1_, VW2_, VW3_, VRD, VOUT = 4, 6, 7, 8, 9, 10
    a.s_bfe_u32(S(6), S(2), "0x10003")
    a.s_lshl_b32(S(6), S(6), 2)
    a.s_add_u32(S(6), S(6), S(S_WAVE))
    a.s_lshl_b32(S(6), S(6), 6)
    a.s_add_u32(S(6), S(6), RS_L)
    a.v_lshl_add_u32(V(VRS), V(2), 2, S(6))
    a.ds_read_b32(V(12), V(VRS))
    a.s_xor_b32(S(6), S(S_WAVE), 1)
    a.s_mul_i32(S(6), S(6), 20480)
    a.s_add_u32(S(6), S(6), 5120)
    a.v_add_u32(V(VW1_), S(6), V(5))
    a.s_xor_b32(S(6), S(S_WAVE), 2)
    a.s_mul_i32(S(6), S(6), 20480)
    a.s_add_u32(S(6), S(6), 2 * 5120)
    a.v_add_u32(V(VW2_), S(6), V(5))
    a.s_xor_b32(S(6), S(S_WAVE), 3)
    a.s_mul_i32(S(6), S(6), 20480)
    a.s_add_u32(S(6), S(6), 3 * 5120)
    a.v_add_u32(V(VW3_), S(6), V(5))
    a.s_mul_i32(S(6), S(S_WAVE), 20480)
    a.v_add_u32(V(VRD), S(6), V(5))
    srd(a, 12, P_OUT, 0, 2048 * 640 * 2)
    a.v_mul_u32_u24(V(VOUT), 1280, V(2))
    a.v_lshl_add_u32(V(VOUT), V(3), 3, V(VOUT))
    a.s_lshl_b32(S(50), S(S_RB2), 2)
    a.s_add_u32(S(50), S(50), S(S_WAVE))
    a.s_mul_i32(S(50), S(50), 16 * 1280)
    a.s_mul_i32(S(51), S(S_CT2), 160)
    a.s_add_u32(S(50), S(50), S(51))
    for s in range(NS - 1):
        b = BB + 16 * (s % ND)
        bn = BB + 16 * ((s + 1) % ND)
        if s == 0:
            a.wvm(htk[3])
            for p in range(2):
                a.v_swap_b32(V(b + 8 * p + 2), V(b + 8 * p + 4))
                a.v_swap_b32(V(b + 8 * p + 3), V(b + 8 * p + 5))
        n = 0
        lim = min(4 * NS, 4 * (s + ND))
        budget = int(os.environ.get("HB", "4"))
        if os.environ.get("G1ST", "0") == "1" and s in (0, 5, 10):
            stamp(a, {0: 5, 5: 6, 10: 7}[s])
        for t in range(5):
            for bt in range(4):
                acc = ACC + (bt * 5 + t) * 4
                a.v_mfma_f32_16x16x32_bf16(V(acc, 4), w2dst(s, t), V(b + 4 * bt, 4), V(acc, 4) if s else 0)
                n += 1
                if n % 3 == 1 and nissued < lim and budget:
                    hload(nissued); nissued += 1; budget -= 1
                if n in eval(os.environ.get("W2N", "(14,)")) and queue:
                    f, nn = queue.pop(0); f(nn)
                if n in (17, 18):
                    p = n - 17
                    if p == 0:
                        a.wvm(max(htk[4 * s + 7], wtk[5 * s + 9]))
                    a.v_swap_b32(V(bn + 8 * p + 2), V(bn + 8 * p + 4))
                    a.v_swap_b32(V(bn + 8 * p + 3), V(bn + 8 * p + 5))
    assert nissued == 4 * NS and not queue
    OT = os.environ.get("OT", "0")
    if OT == "1":
        a.buffer_load_dword(V(11), V(VOUT), S(12, 4), S(50), mods="offen")
    def wbl2():
        nowb = newlab("nowb")
        a.s_lshr_b32(S(6), S(2), 3)
        a.s_add_u32(S(6), S(6), S(S_WAVE))
        a.s_cmp_lg_u32(S(6), 0)
        a.s_cbranch_scc1(nowb)
        a.I("buffer_wbl2", mods="sc1")
        a.label(nowb)

    WB = os.environ.get("WBL2", "2")
    if WB == "1":
        wbl2()
    odd, fin = newlab("odd"), newlab("fin")
    a.s_bitcmp1_b32(S(S_WAVE), 0)
    a.s_cbranch_scc1(odd)
    s = NS - 1
    b = BB + 16 * (s % ND)
    HU = 128
    RD = 148
    nds0 = a.nds
    for par in range(2):
        a.nds = nds0
        own = par
        tiles = [(2 + par, VW2_), (2 + (par ^ 1), VW3_), (par ^ 1, VW1_), (own, None)]
        pend = []
        for bt, vw in tiles:
            for t in range(5):
                acc = ACC + (bt * 5 + t) * 4
                a.v_mfma_f32_16x16x32_bf16(V(acc, 4), w2dst(s, t), V(b + 4 * bt, 4), V(acc, 4))
                if pend and t >= 1:
                    pa, pw, po = pend.pop(0)
                    a.ds_write_b128(V(pw), V(pa, 4), mods=f"offset:{po}")
            while pend:
                pa, pw, po = pend.pop(0)
                a.ds_write_b128(V(pw), V(pa, 4), mods=f"offset:{po}")
            if vw is not None:
                pend = [(ACC + (bt * 5 + t) * 4, vw, 1024 * t) for t in range(5)]
        if os.environ.get("E0ST", "0") != "1":
            stamp(a, 12)
        if WB == "2" and par == 0:
            wbl2()
        for i in range(10):
            a.v_lshlrev_b32(V(HU + 2 * i), 16, V(HR + i))
            a.v_and_b32(V(HU + 2 * i + 1), "0xffff0000", V(HR + i))
        a.wait(lgkm=0)
        a.s_barrier()
        if WB == "3" and par == 0:
            wbl2()
        rt = []
        for t in range(5):
            for x in range(3):
                k = a.ds_read_b128(V(RD + (t * 3 + x) * 4, 4), V(VRD), mods=f"offset:{(x+1)*5120 + t*1024}")
            rt.append(k)
        for t in range(5):
            a.wds(rt[t])
            r = RD + t * 12
            acc = ACC + (own * 5 + t) * 4
            for hh in range(2):
                a.v_pk_add_f32(V(acc + 2 * hh, 2), V(acc + 2 * hh, 2), V(r + 2 * hh, 2))
                a.v_pk_add_f32(V(r + 4 + 2 * hh, 2), V(r + 4 + 2 * hh, 2), V(r + 8 + 2 * hh, 2))
            for hh in range(2):
                a.v_pk_add_f32(V(acc + 2 * hh, 2), V(acc + 2 * hh, 2), V(r + 4 + 2 * hh, 2))
            for hh in range(2):
                a.v_pk_fma_f32(V(acc + 2 * hh, 2), V(acc + 2 * hh, 2), V(12, 2), V(HU + 4 * t + 2 * hh, 2), mods="op_sel_hi:[1,0,1]")
            for hh in range(2):
                a.v_cvt_pk_bf16_f32(V(r + hh), V(acc + 2 * hh), V(acc + 2 * hh + 1))
            a.buffer_store_dwordx2(V(r, 2), V(VOUT), S(12, 4), S(50), mods=f"offen offset:{32*t} " + os.environ.get("OUTF", ""))
        if par == 0:
            a.s_branch(fin)
            a.label(odd)
    a.label(fin)


def cs_wait(a):
    a.label("L_CSW")
    a.buffer_load_dwordx4(V(84, 4), V(5), S(R_SY, 4), S(50), mods="offen sc1")
    a.wait(vm=0)
    a.v_xor_b32(V(85), S(S_NONCE), V(85))
    a.v_xor_b32(V(87), S(S_NONCE), V(87))
    a.v_or_b32(V(85), V(85), V(87))
    a.v_cmp_ne_u32("vcc", 0, V(85))
    spin_branch(a, "L_CSW")
    a.s_branch("L_CSOK")


def gemm1_retry(a):
    a.label("L_G1RETRY")
    a.s_sub_u32(S(63), S(63), 1)
    a.s_cbranch_scc1("L_G1OK")
    if STAMPS and os.environ.get("DBGT", "0") != "1":
        a.v_mov_b32(V(80), 4)
        a.v_mov_b32(V(81), 1)
        a.s_mov_b64("exec", 1)
        a.buffer_atomic_add(V(81), V(80), S(R_DBG, 4), 0, mods="offen sc1")
        a.s_mov_b64("exec", -1)
    a.wait(vm=0)
    a.s_branch("L_G1")


NSTAMP = 13


def gen():
    a = Asm()
    a.s_load_dwordx16(S(16, 16), S(0, 2), 0)
    a.s_load_dwordx8(S(32, 8), S(0, 2), 64)
    a.s_load_dwordx4(S(40, 4), S(0, 2), 96)
    a.s_load_dwordx2(S(44, 2), S(0, 2), 112)
    a.s_memrealtime(S(4, 2))
    if STAMPS:
        for i in range(1, NSTAMP):
            a.s_mov_b32(S(76 + 2 * i), 0)
    stamp(a, 0)
    a.s_cmp_ge_u32(S(2), 256)
    a.s_cbranch_scc1("L_END")
    a.v_lshrrev_b32(V(1), 6, V(0))
    a.v_readfirstlane_b32(S(S_WAVE), V(1))
    a.v_and_b32(V(1), 63, V(0))

    def common_setup():
        a.s_mov_b32(S(S_SPIN), SPIN_MAX)
        a.s_getreg_b32(S(S_XCC), "hwreg(HW_REG_XCC_ID, 0, 4)")
        srd(a, R_DBG, P_DBG, 0, 256)
        srd(a, R_SY, P_WS, SY_OFF, SY_SZ)

    a.s_cmp_lt_u32(S(2), 160)
    a.s_cbranch_scc1("L_CONV")
    a.s_cmp_eq_u32(S(S_WAVE), 3)
    a.s_cbranch_scc1("L_AUX3")
    xt = aux_first(a)
    nvm_aux = a.nvm
    a.s_branch("L_AUX")
    a.label("L_AUX3")
    a.v_mov_b32(V(14), 0)
    a.v_mov_b32(V(13), 0)
    a.wait(lgkm=0)
    srd(a, R_DBG, P_DBG, 0, 256)
    a.s_or_b32(S(4), S(4), 1)
    a.v_mov_b32(V(12), S(4))
    a.s_mov_b64("exec", 1)
    a.buffer_atomic_cmpswap(V(12, 2), V(14), S(R_DBG, 4), 0, mods="offen sc0 sc1")
    a.s_mov_b64("exec", -1)
    if SYT:
        srd(a, R_SY, P_WS, SY_OFF, SY_SZ)
        a.s_sub_u32(S(6), S(2), 160)
        a.s_lshl_b32(S(6), S(6), 13)
        a.v_lshlrev_b32(V(2), 7, V(1))
        a.buffer_load_dword(V(245), V(2), S(R_SY, 4), S(6), mods="offen sc1")
    code_prefetch(a)
    a.s_branch("L_AUX3B")
    a.label("L_CONV")
    a.nvm = 0
    a.wait(lgkm=0)
    if os.environ.get("E0ST", "0") == "1":
        stamp(a, 12)
    ktk = conv_first(a)
    common_setup()
    conv_role(a, ktk)
    a.s_branch("L_COMMON")
    if POISON:
        gemm1_retry(a)
    cs_wait(a)
    a.label("L_AUX3B")
    a.nvm = 1 + NCODE + (1 if SYT else 0)
    common_setup()
    aux_role(a, None)
    a.s_branch("L_AUXJ")
    a.label("L_AUX")
    a.nvm = nvm_aux
    common_setup()
    aux_role(a, xt)
    a.label("L_AUXJ")
    aux_tail(a)
    a.label("L_COMMON")
    gemms(a)
    if STAMPS:
        a.wait(vm=0)
        a.s_memrealtime(S(4, 2))
        a.wait(lgkm=0)
        srd(a, 8, P_WS, ST_OFF, 0x100000)
        a.s_lshl_b32(S(6), S(2), 2)
        a.s_add_u32(S(6), S(6), S(S_WAVE))
        a.s_lshl_b32(S(6), S(6), 6)
        for i in range(NSTAMP):
            a.v_mov_b32(V(8 + i), S(76 + 2 * i))
        a.v_mov_b32(V(8 + NSTAMP), S(4))
        a.v_mov_b32(V(2), 0)
        a.s_mov_b64("exec", 1)
        for q in range(4):
            a.buffer_store_dwordx4(V(8 + 4 * q, 4), V(2), S(8, 4), S(6), mods=f"offen offset:{16*q}")
        if os.environ.get("DBGT", "0") == "1":
            a.v_not_b32(V(30), V(8))
            a.buffer_atomic_umax(V(30), V(2), S(R_DBG, 4), 0, mods="offen offset:4 sc1")
            for i in range(NSTAMP + 1):
                a.buffer_atomic_umax(V(8 + i), V(2), S(R_DBG, 4), 0, mods=f"offen offset:{8+4*i} sc1")
    if os.environ.get("FIXT", "0") != "0":
        a.label("L_FIX")
        a.s_memrealtime(S(4, 2))
        a.wait(lgkm=0)
        a.s_sub_u32(S(4), S(4), S(S_NONCE))
        a.s_cmp_lt_u32(S(4), int(os.environ["FIXT"]))
        a.s_cbranch_scc1("L_FIX")
    a.label("L_END")
    a.s_endpgm()
    return kernel_text(NAME + "_kernel", a, 256, nagpr=256, nsgpr=102)


def main(path):
    ref = open(f"cdna_kernels/{NAME}.s.ref").read().splitlines()
    head = [l for l in ref if l.startswith(";") and "@launch" not in l]
    out = "\n".join(head) + "\n"
    out += f"; @launch grid=(256,1,1) block=(256,1,1) lds={LDS_SZ}\n"
    out += '.amdgcn_target "amdgcn-amd-amdhsa--gfx950"\n'
    out += gen()
    open(path, "w").write(out)


if __name__ == "__main__":
    main(sys.argv[1] if len(sys.argv) > 1 else f"cdna_kernels/{NAME}.s")
```

```python
import re

TRANS = ("v_exp_f32", "v_log_f32", "v_rcp_f32", "v_rsq_f32", "v_sqrt_f32", "v_sin_f32", "v_cos_f32")


def V(i, n=1):
    return f"v{i}" if n == 1 else f"v[{i}:{i+n-1}]"


def A(i, n=1):
    return f"a{i}" if n == 1 else f"a[{i}:{i+n-1}]"


def S(i, n=1):
    return f"s{i}" if n == 1 else f"s[{i}:{i+n-1}]"


_reg_re = re.compile(r"^(-?)(?:abs\()?\|?([vas])(?:(\d+)|\[(\d+):(\d+)\])\)?\|?$")


def regs_of(op):
    op = op.strip()
    if op in ("vcc", "vcc_lo", "vcc_hi"):
        return {("vcc", 0)}
    if op in ("exec", "exec_lo", "exec_hi"):
        return {("exec", 0)}
    if op == "m0":
        return {("m0", 0)}
    m = _reg_re.match(op)
    if not m:
        return set()
    k = m.group(2)
    if m.group(3) is not None:
        return {(k, int(m.group(3)))}
    return {(k, i) for i in range(int(m.group(4)), int(m.group(5)) + 1)}


class Ins:
    def __init__(self, op, args, mods="", comment=""):
        self.op = op
        self.args = [str(a) for a in args]
        self.mods = mods
        self.comment = comment
        self.classify()

    def text(self):
        s = "    " + self.op
        if self.args:
            s += " " + ", ".join(self.args)
        if self.mods:
            s += " " + self.mods
        if self.comment:
            s += " ; " + self.comment
        return s

    def classify(self):
        op = self.op
        a = self.args
        self.kind = "other"
        self.dst = set()
        self.src = set()
        self.srcC = set()
        self.srcAB = set()
        self.passes = 0
        self.dpp = ("_dpp" in op) or ("row_" in self.mods) or ("wave_" in self.mods) or ("quad_perm" in self.mods)
        R = regs_of
        if op.startswith("v_mfma"):
            self.kind = "mfma"
            self.dst = R(a[0])
            self.srcAB = R(a[1]) | R(a[2])
            self.srcC = R(a[3])
            self.src = self.srcAB | self.srcC
            self.passes = 8 if "32x32" in op else 4
        elif op.startswith("v_"):
            self.kind = "valu"
            if op.startswith("v_cmp"):
                self.dst = R(a[0])
                for x in a[1:]:
                    self.src |= R(x)
                if op.startswith("v_cmpx"):
                    self.dst |= {("exec", 0)}
            elif op.startswith("v_swap") or "swap_b32" in op:
                self.dst = R(a[0]) | R(a[1])
                self.src = set(self.dst)
            elif op in ("v_nop",):
                pass
            elif "_co_" in op:
                self.dst = R(a[0]) | R(a[1])
                for x in a[2:]:
                    self.src |= R(x)
            else:
                self.dst = R(a[0])
                for x in a[1:]:
                    self.src |= R(x)
                if op.startswith("v_fmac") or op.startswith("v_dot2c") or self.dpp or op.startswith("v_writelane") or "sdwa" in op:
                    self.src |= self.dst
                if op.startswith("v_cndmask") and len(a) == 3:
                    self.src |= {("vcc", 0)}
        elif op.startswith("buffer_") or op.startswith("global_") or op.startswith("flat_"):
            self.kind = "vmem"
            if op in ("buffer_inv", "buffer_wbl2"):
                pass
            elif "load" in op:
                if " lds" in (" " + self.mods) or "load_lds" in op:
                    self.lds_dma = True
                    for x in a:
                        self.src |= R(x)
                    self.src |= {("m0", 0)}
                else:
                    self.dst = R(a[0])
                    for x in a[1:]:
                        self.src |= R(x)
            elif "atomic" in op and "sc0" in self.mods:
                if op.startswith("buffer_"):
                    self.dst = R(a[0])
                    for x in a:
                        self.src |= R(x)
                else:
                    self.dst = R(a[0])
                    for x in a[1:]:
                        self.src |= R(x)
            else:
                for x in a:
                    self.src |= R(x)
                if "store" in op and ("x4" in op or "x3" in op):
                    self.wide_data = R(a[0]) if op.startswith("buffer_") else R(a[1])
        elif op.startswith("ds_"):
            self.kind = "ds"
            if op.startswith("ds_read") or "permute" in op or "swizzle" in op or "_rtn" in op:
                self.dst = R(a[0])
                for x in a[1:]:
                    self.src |= R(x)
            else:
                for x in a:
                    self.src |= R(x)
        elif op.startswith("s_"):
            self.kind = "salu"
            if op.startswith("s_cmp") or op.startswith("s_cbranch") or op in ("s_branch", "s_waitcnt", "s_barrier", "s_nop", "s_endpgm", "s_sleep", "s_setprio", "s_bitcmp1_b32", "s_bitcmp0_b32"):
                for x in a:
                    self.src |= R(x)
            else:
                if a:
                    self.dst = R(a[0])
                for x in a[1:]:
                    self.src |= R(x)
                if "saveexec" in op:
                    self.dst |= {("exec", 0)}
            if op.startswith("s_load") or op.startswith("s_mem"):
                self.kind = "smem"

    def states(self):
        if self.op == "s_nop":
            return int(self.args[0], 0) + 1
        return 1


def is_sreg(r):
    return r[0] in ("s", "vcc")


def need(prod, cons):
    n = 0
    pk, ck = prod.kind, cons.kind
    vd = {r for r in prod.dst if r[0] in ("v", "a")}
    if pk == "valu":
        isdot = prod.op.startswith("v_dot")
        if ck == "mfma" and (vd & cons.src):
            n = max(n, 3 if isdot else 2)
        if ck == "valu":
            if prod.op.replace("_e32", "").replace("_e64", "") in TRANS and (vd & cons.src):
                n = max(n, 1)
            if cons.dpp and (vd & cons.src):
                n = max(n, 2)
            if cons.op.startswith("v_permlane") and (vd & cons.src):
                n = max(n, 2)
            if (cons.op.startswith("v_readlane") or cons.op.startswith("v_readfirstlane")) and (vd & cons.src):
                n = max(n, 1)
            sd = {r for r in prod.dst if is_sreg(r)}
            if sd & cons.src:
                n = max(n, 4 if (cons.op.startswith("v_readlane") or cons.op.startswith("v_writelane")) else 2)
            if "sdwa" in prod.op and (vd & (cons.src | cons.dst)):
                n = max(n, 1)
            if isdot and (vd & (cons.src | cons.dst)):
                same = cons.op == prod.op and len(cons.args) == 4 and regs_of(cons.args[3]) == vd and not (vd & (regs_of(cons.args[1]) | regs_of(cons.args[2])))
                if not same:
                    n = max(n, 3)
            if ("exec", 0) in prod.dst:
                n = max(n, 5)
        if isdot and ck in ("vmem", "ds") and (vd & cons.src):
            n = max(n, 3)
        if ck == "vmem":
            sd = {r for r in prod.dst if is_sreg(r)}
            if sd & cons.src:
                n = max(n, 5)
        if ck == "mfma" and ("exec", 0) in prod.dst:
            n = max(n, 4)
        if ck in ("salu", "smem"):
            sd = {r for r in prod.dst if is_sreg(r)}
            if sd & cons.src:
                n = max(n, 2)
    if pk == "mfma":
        big = prod.passes == 8
        if ck == "mfma":
            if vd & cons.srcAB:
                n = max(n, 12 if big else 8)
            if vd & cons.srcC:
                if not (cons.srcC == vd and cons.passes == prod.passes):
                    n = max(n, 10 if big else 6)
            elif vd & cons.dst:
                n = max(n, 10 if big else 6)
        elif ck in ("valu", "vmem", "ds"):
            if vd & (cons.src | cons.dst):
                n = max(n, 12 if big else 8)
            if ck == "valu" and (prod.srcC & cons.dst):
                n = max(n, 7 if big else 3)
    if pk == "vmem" and getattr(prod, "wide_data", None):
        if prod.wide_data & cons.dst:
            n = max(n, 2)
    if pk == "ds" and prod.op in ("ds_write_b128", "ds_write_b96") and ck == "valu":
        pass
    if pk == "salu" and ("m0", 0) in prod.dst:
        if ("m0", 0) in cons.src and ck in ("vmem", "ds"):
            n = max(n, 1)
    return n


class Asm:
    def __init__(self):
        self.items = []
        self.nvm = 0
        self.nds = 0
        self.in_gemm = False

    def I(self, op, *args, mods="", c=""):
        ins = Ins(op, args, mods, c)
        self.items.append(ins)
        if ins.kind == "vmem":
            self.nvm += 1
            return self.nvm
        if ins.kind == "ds":
            self.nds += 1
            return self.nds

    def wvm(self, ticket):
        n = self.nvm - ticket
        if n <= 63:
            self.wait(vm=n)

    def wboth(self, vticket, dticket):
        n = self.nvm - vticket
        self.wait(vm=n if n <= 63 else None, lgkm=min(self.nds - dticket, 15))

    def wds(self, ticket):
        n = self.nds - ticket
        self.wait(lgkm=min(n, 15))

    def raw(self, s):
        self.items.append(s)

    def label(self, name):
        self.items.append(name + ":")

    def __getattr__(self, name):
        if name.startswith(("v_", "s_", "ds_", "buffer_", "global_")):
            def f(*args, mods="", c=""):
                return self.I(name, *args, mods=mods, c=c)
            return f
        raise AttributeError(name)

    def wait(self, vm=None, lgkm=None):
        parts = []
        if vm is not None:
            assert 0 <= vm <= 63
            parts.append(f"vmcnt({vm})")
        if lgkm is not None:
            assert 0 <= lgkm <= 15
            parts.append(f"lgkmcnt({lgkm})")
        self.items.append(Ins("s_waitcnt", [" ".join(parts)]))

    def finalize(self):
        out = []
        hist = []
        nnop = 0
        for it in self.items:
            if isinstance(it, str):
                out.append(it)
                continue
            req = 0
            dist = 0
            for p in reversed(hist[-24:]):
                n = need(p, it)
                if n > dist:
                    req = max(req, n - dist)
                dist += p.states()
                if dist >= 20:
                    break
            while req > 0:
                k = min(req, 16)
                nop = Ins("s_nop", [str(k - 1)])
                out.append(nop)
                hist.append(nop)
                req -= k
                nnop += 1
            out.append(it)
            hist.append(it)
        self.nnop = nnop
        if getattr(self, "align", True):
            out = align_pass(out, getattr(self, "name", "k"))
        return "\n".join(x if isinstance(x, str) else x.text() for x in out) + "\n"


E64_OK = ("v_mov_b32", "v_add_u32", "v_sub_u32", "v_subrev_u32", "v_and_b32", "v_or_b32", "v_xor_b32", "v_lshlrev_b32", "v_lshrrev_b32",
          "v_add_f32", "v_sub_f32", "v_mul_f32", "v_max_f32", "v_min_f32", "v_min_u32", "v_max_u32", "v_mul_u32_u24", "v_fract_f32",
          "v_exp_f32", "v_sin_f32", "v_cos_f32", "v_rcp_f32", "v_sqrt_f32", "v_cndmask_b32", "v_cmp_eq_u32", "v_cmp_ne_u32", "v_cmp_gt_u32")


def sizes_of(items, name):
    import subprocess, tempfile, os
    src = '.amdgcn_target "amdgcn-amd-amdhsa--gfx950"\n.text\n' + name + ":\n" + "\n".join(x if isinstance(x, str) else x.text() for x in items) + "\n"
    d = tempfile.mkdtemp()
    open(d + "/a.s", "w").write(src)
    r = subprocess.run(["clang", "-x", "assembler", "-target", "amdgcn-amd-amdhsa", "-mcpu=gfx950", "-c", d + "/a.s", "-o", d + "/a.o"], capture_output=True, text=True)
    assert r.returncode == 0, r.stderr[:2000]
    o = subprocess.run(["llvm-objdump", "-d", "--mcpu=gfx950", d + "/a.o"], capture_output=True, text=True).stdout
    sz = []
    for line in o.splitlines():
        m = re.search(r"// [0-9A-F]{12}: ((?:[0-9A-F]{8} ?)+)", line)
        if m:
            sz.append(4 * len(m.group(1).split()))
    return sz


def align_pass(items, name, minrun=3):
    if any(isinstance(x, str) and x.strip().startswith(".") for x in items):
        return items
    sz = sizes_of(items, name)
    ins = [x for x in items if not isinstance(x, str)]
    assert len(sz) == len(ins), (len(sz), len(ins))
    size = {id(x): n for x, n in zip(ins, sz)}
    out = []
    off = 0
    idx = 0
    on = True
    for it in items:
        if isinstance(it, str):
            if it == "; align off":
                on = False
            elif it == "; align on":
                on = True
            else:
                out.append(it)
            continue
        n = size[id(it)]
        if on and n % 8 == 0 and off % 8 == 4:
            run = 0
            while idx + run < len(ins) and sz[idx + run] % 8 == 0:
                run += 1
            if run >= minrun:
                prev = out[-1] if out else None
                if prev is not None and not isinstance(prev, str) and prev.op in E64_OK and size.get(id(prev)) == 4:
                    prev.op += "_e64"
                else:
                    out.append(Ins("s_nop", ["0"]))
                off += 4
        out.append(it)
        off += n
        idx += 1
    return out


def kernel_text(name, asm, nvgpr, nagpr=0, nsgpr=96, extra=""):
    acc = (nvgpr + 3) // 4 * 4
    nfv = acc + nagpr if nagpr else nvgpr
    asm.name = name
    body = asm.finalize()
    return f""".text
.globl {name}
.p2align 8
.type {name},@function
{name}:
{body}
.section .rodata,"a"
.p2align 6
.amdhsa_kernel {name}
  .amdhsa_next_free_vgpr {nfv}
  .amdhsa_next_free_sgpr {nsgpr}
  .amdhsa_accum_offset {acc}
  .amdhsa_group_segment_fixed_size 0
  .amdhsa_kernarg_size 120
  .amdhsa_user_sgpr_count 2
  .amdhsa_user_sgpr_kernarg_segment_ptr 1
  .amdhsa_system_sgpr_workgroup_id_x 1
{extra}.end_amdhsa_kernel
"""
```

```python
import sys, struct, os
sys.path.insert(0, "dev")
from asmlib import *

NAME = "sequential_preLN__ssm_conv_s4__dense_activation_relu__prompt"
STAMPS = os.environ.get("STAMPS", "0") == "1"

SY_OFF, SY_SZ = 0x0, 0x28000
FRP, FH, FH1 = 0x4000, 0x8000, 0x10000
FH1B = 0x20000
FCS = 0x18000
W2P_OFF, W2P_SZ = 0x100000, 8 * 54 * 5 * 1024
H4_OFF, H4_SZ = 0x700000, 64 * 40960
H1_OFF, H1_SZ = 0xA00000, 64 * 110592
ST_OFF = 0x2000000

P_U, P_ARE, P_AIM, P_BRE, P_BIM, P_CRE, P_CIM, P_LDT = 16, 18, 20, 22, 24, 26, 28, 30
P_DSK, P_BX, P_W1, P_W2 = 32, 34, 36, 38
P_OUT, P_DBG, P_WS = 40, 42, 44
S_WAVE = 3
R_SY, R_DBG = 64, 68
S_NONCE, S_SPIN, S_M0W, S_D2 = 72, 73, 74, 75
R_W1 = 52
VPA = 231
DUMMY_L = 0x100000
S_XCC = 0
S_MIS = 18
MODE_L = 147456
RS_L = 151552
VW1 = 248
SPIN_MAX = 400000

KS_SZ = 23296
WT_L, WT_P = 93184, 8256
UB_L = 126208
CSP_L, CS_L = 144640, 148480
XH_L, XH_P = 147200, 4160
LDS_SZ = 163840
Q_EARLY = 21
NCODE = 5
H1P = int(os.environ.get("H1P", "0"))
PSLEEP = int(os.environ.get("PSLEEP", "0"))
SYT = os.environ.get("SYT", "1") == "1"
H1WN = eval(os.environ.get("H1WN", "[(i,28) for i in range(7)]"))
H1W = os.environ.get("H1W", "0") == "1"
DMAN = eval(os.environ.get("DMAN", "(26, 30, 34)"))
XTOUCH = os.environ.get("XTOUCH", "0") == "1"
W2Q = eval(os.environ.get("W2Q", "[]"))
STEARLY = os.environ.get("STEARLY", "0") == "1"
NODMA = os.environ.get("NODMA", "0") == "1"
POISON = os.environ.get("POISON", "1") == "1"
GATHER = eval(os.environ.get("GATHER", "{-1:[0,1,2,3,4], 6:[5], 10:[6], 14:[7]}"))
HLD = os.environ.get("HLD", "sc1")
LOG2E = 1.4426950408889634


def f32(x):
    return "0x%08x" % struct.unpack("<I", struct.pack("<f", x))[0]


def stamp(a, i):
    if STAMPS:
        if os.environ.get("STAMPCLK", "0") == "1":
            a.s_memtime(S(76 + 2 * i, 2))
        else:
            a.s_memrealtime(S(76 + 2 * i, 2))


def srd(a, d, p, off, size):
    if off == 0:
        a.s_mov_b32(S(d), S(p))
        a.s_mov_b32(S(d + 1), S(p + 1))
    else:
        a.s_add_u32(S(d), S(p), off if isinstance(off, str) else hex(off))
        a.s_addc_u32(S(d + 1), S(p + 1), 0)
    a.s_mov_b32(S(d + 2), hex(size))
    a.s_mov_b32(S(d + 3), "0x20000")


def srd2(a, d, p, off, soff, size):
    a.s_add_u32(S(d), S(p), soff)
    a.s_addc_u32(S(d + 1), S(p + 1), 0)
    a.s_add_u32(S(d), S(d), hex(off))
    a.s_addc_u32(S(d + 1), S(d + 1), 0)
    a.s_mov_b32(S(d + 2), hex(size))
    a.s_mov_b32(S(d + 3), "0x20000")


def cmuln(a, dsts, xs, ws, tmps):
    n = len(dsts)
    for i in range(n):
        a.v_pk_mul_f32(V(tmps[i], 2), V(xs[i], 2), V(ws[i], 2), mods="op_sel:[0,0] op_sel_hi:[1,0]")
    for i in range(n):
        a.v_pk_fma_f32(V(dsts[i], 2), V(xs[i], 2), V(ws[i], 2), V(tmps[i], 2), mods="op_sel:[1,1,0] op_sel_hi:[0,1,1] neg_lo:[1,0,0]")


def rnd2(a, x0, x1, t):
    a.v_cvt_pk_bf16_f32(V(t), V(x0), V(x1))
    a.v_lshlrev_b32(V(x0), 16, V(t))
    a.v_and_b32(V(x1), "0xffff0000", V(t))


def ln_stats2(a, s1, s2, rs, nm, t0, t1, n):
    inv = f32(1.0 / n)
    for i in range(2):
        a.v_mul_f32(V(s1[i]), inv, V(s1[i]))
    for i in range(2):
        a.v_mul_f32(V(s2[i]), inv, V(s2[i]))
    for i in range(2):
        a.v_fma_f32(V(s2[i]), "-" + V(s1[i]), V(s1[i]), V(s2[i]))
    for i in range(2):
        a.v_max_f32(V(s2[i]), 0, V(s2[i]))
    rnd2(a, s2[0], s2[1], t0)
    rnd2(a, s1[0], s1[1], t1)
    for i in range(2):
        a.v_add_f32(V(s2[i]), f32(1e-5), V(s2[i]))
    rnd2(a, s2[0], s2[1], t0)
    for i in range(2):
        a.v_sqrt_f32(V(s2[i]), V(s2[i]))
    rnd2(a, s2[0], s2[1], t0)
    for i in range(2):
        a.v_rcp_f32(V(rs[i]), V(s2[i]))
    for i in range(2):
        a.v_mul_f32(V(nm[i]), "-" + V(s1[i]), V(rs[i]))


_lab = [0]


def newlab(p):
    _lab[0] += 1
    return f"L{p}_{_lab[0]}"


def spin_branch(a, loop, done_fallthrough=True):
    out = newlab("to")
    a.s_sub_u32(S(S_SPIN), S(S_SPIN), 1)
    a.s_cmp_lt_i32(S(S_SPIN), 0)
    a.s_cbranch_scc1(out)
    a.s_cbranch_vccnz(loop)
    a.label(out)


def flag_loads(a, voff, base, count, dst):
    n = (count + 63) // 64
    t = None
    for q in range(n):
        t = a.buffer_load_dwordx2(V(dst + 2 * q, 2), V(voff + q), S(R_SY, 4), base, mods="offen sc1")
    return t


def xcc_mismatch(a, voff, count, dst, sacc):
    n = (count + 63) // 64
    a.s_and_b32(S(6), S(2), 7)
    for q in range(n):
        a.v_bfe_u32(V(dst + 2 * q), V(voff + q), 7, 3)
        a.v_cmp_eq_u32(S(48, 2), S(6), V(dst + 2 * q))
        a.v_cmp_ne_u32("vcc", S(S_XCC), V(dst + 2 * q + 1))
        a.s_and_b64(S(48, 2), S(48, 2), "vcc")
        a.s_or_b64(S(sacc, 2), S(sacc, 2), S(48, 2))


def flag_addr(a, voff, count, vlane):
    n = (count + 63) // 64
    for q in range(n):
        if q:
            a.v_add_u32(V(voff + q), 64 * q, V(vlane))
            a.v_min_u32(V(voff + q), count - 1, V(voff + q))
        else:
            a.v_min_u32(V(voff), count - 1, V(vlane))
        a.v_lshlrev_b32(V(voff + q), 7, V(voff + q))


def flag_check(a, dst, count):
    n = (count + 63) // 64
    for q in range(n):
        a.v_xor_b32(V(dst + 2 * q), S(S_NONCE), V(dst + 2 * q))
    for q in range(1, n):
        a.v_or_b32(V(dst), V(dst), V(dst + 2 * q))
    a.v_cmp_ne_u32("vcc", 0, V(dst))


def poll_flags(a, voff, base, count, dst, sleep=0):
    n = (count + 63) // 64
    lp, out = newlab("poll"), newlab("pollx")
    for q in range(n):
        a.s_mov_b64(S(32 + 2 * q, 2), -1)
    a.label(lp)
    for q in range(n):
        sk = newlab("pq")
        a.s_mov_b64("exec", S(32 + 2 * q, 2))
        if n > 1:
            a.s_cbranch_execz(sk)
        a.buffer_load_dwordx2(V(dst + 2 * q, 2), V(voff + q), S(R_SY, 4), base, mods="offen sc1")
        a.label(sk)
    a.s_mov_b64("exec", -1)
    a.wait(vm=0)
    for q in range(n):
        a.v_cmp_ne_u32(S(32 + 2 * q, 2), S(S_NONCE), V(dst + 2 * q))
    if n == 1:
        a.s_mov_b64("vcc", S(32, 2))
    else:
        a.s_or_b64("vcc", S(32, 2), S(34, 2))
        if n == 3:
            a.s_or_b64("vcc", "vcc", S(36, 2))
    if PSLEEP:
        a.s_cbranch_vccz(out)
        a.s_sleep(PSLEEP)
    spin_branch(a, lp)
    a.label(out)


def set_flag(a, soff, vt, sc="sc1"):
    skip = newlab("nf")
    a.s_cmp_lg_u32(S(S_WAVE), 0)
    a.s_cbranch_scc1(skip)
    a.v_mov_b32(V(vt + 2), 0)
    a.v_mov_b32(V(vt), S(S_NONCE))
    a.v_mov_b32(V(vt + 1), S(S_XCC))
    a.s_mov_b64("exec", 1)
    a.buffer_store_dwordx2(V(vt, 2), V(vt + 2), S(R_SY, 4), soff, mods=f"offen {sc}")
    a.s_mov_b64("exec", -1)
    a.label(skip)


def kgen_loads(a, s_d):
    VL = 1
    PR = 8
    a.s_lshl_b32(S(5), S(s_d), 8)
    a.v_lshl_add_u32(V(2), V(VL), 2, S(5))
    a.s_lshl_b32(S(5), S(s_d), 1)
    a.v_mov_b32(V(3), S(5))
    t_ldt = a.global_load_ushort(V(PR + 6), V(3), S(P_LDT, 2))
    for i, p in enumerate((P_ARE, P_AIM, P_BRE, P_BIM, P_CRE, P_CIM)):
        t_par = a.global_load_dword(V(PR + i), V(2), S(p, 2))
    t_dsk = a.global_load_ushort(V(PR + 7), V(3), S(P_DSK, 2))
    return t_ldt, t_dsk


def kgen(a, tks, s_lds, s_wt, hook):
    VL = 1
    PR = 8
    t_ldt, t_dsk = tks
    hook(-1)
    VW, VRA, VRB = 4, 5, 6
    a.v_lshl_add_u32(V(VW), V(VL), 3, S(s_lds))
    a.v_and_b32(V(16), 15, V(VL))
    a.v_lshrrev_b32(V(17), 4, V(VL))
    a.v_and_b32(V(18), 1, V(17))
    a.v_lshlrev_b32(V(18), 8, V(18))
    a.v_lshrrev_b32(V(19), 1, V(17))
    a.v_lshl_add_u32(V(18), V(19), 7, V(18))
    a.v_add_u32(V(18), S(s_lds), V(18))
    a.v_mul_u32_u24(V(19), 528, V(16))
    a.v_add_u32(V(VRA), V(18), V(19))
    a.v_min_u32(V(19), 8, V(16))
    a.v_mul_u32_u24(V(19), 528, V(19))
    a.v_add_u32(V(VRB), V(18), V(19))
    a.s_mov_b32(S(50), f32(LOG2E))
    a.s_mov_b32(S(51), f32(LOG2E - struct.unpack("<f", struct.pack("<f", LOG2E))[0]))
    a.s_mov_b32(S(52), f32(16.0))
    a.s_mov_b32(S(53), f32(16.0))
    a.s_mov_b32(S(54), f32(512.0))
    a.s_mov_b32(S(55), f32(512.0))
    TA1, TA2, TA3, TB3, TA4, TB4 = 224, 225, 226, 227, 228, 229
    TABO = 0
    a.s_add_u32(S(56), S(s_lds), TABO + 16)
    a.v_lshlrev_b32(V(TA1), 6, V(16))
    a.v_lshl_add_u32(V(TA1), V(17), 4, V(TA1))
    a.v_lshrrev_b32(V(TA2), 1, V(TA1))
    a.v_add_u32(V(TA1), S(56), V(TA1))
    a.v_add_u32(V(TA2), S(56), V(TA2))
    a.v_add_u32(V(TA2), 1024, V(TA2))
    a.v_cmp_eq_u32("vcc", 0, V(17))
    a.v_mov_b32(V(30), 8)
    a.v_mov_b32(V(31), 256)
    a.v_cndmask_b32(V(30), V(30), 16, "vcc")
    a.v_cndmask_b32(V(31), V(31), 8, "vcc")
    a.v_lshlrev_b32(V(TA3), 9, V(17))
    a.v_mad_u32_u24(V(TA3), V(30), V(16), V(TA3))
    a.v_add_u32(V(TA3), S(56), V(TA3))
    a.v_add_u32(V(TB3), V(TA3), V(31))
    a.v_lshl_add_u32(V(TA4), V(30), 4, V(TA3))
    a.v_add_u32(V(TB4), V(TA4), V(31))
    DT = 20
    a.wvm(t_ldt)
    a.v_lshlrev_b32(V(21), 16, V(PR + 6))
    a.v_mul_f32(V(22), S(50), V(21))
    a.v_fma_f32(V(23), V(21), S(50), "-" + V(22))
    a.v_fma_f32(V(23), V(21), S(51), V(23))
    a.v_exp_f32(V(22), V(22))
    a.v_mul_f32(V(23), f32(0.6931471805599453), V(23))
    a.v_fma_f32(V(22), V(22), V(23), V(22))
    a.v_cvt_pk_bf16_f32(V(22), V(22), V(22))
    a.v_lshlrev_b32(V(DT), 16, V(22))
    a.v_mul_f32(V(22), S(50), V(DT))
    a.v_mul_f32(V(23), "0.15915494", V(DT))
    Z = [24, 26]; B = [28, 30]; C = [32, 34]
    a.wvm(t_dsk)
    stamp(a, 1)
    hook(100)
    for base, pi in ((Z, 0), (B, 2), (C, 4)):
        for comp in range(2):
            a.v_lshlrev_b32(V(base[0] + comp), 16, V(PR + pi + comp))
            a.v_and_b32(V(base[1] + comp), "0xffff0000", V(PR + pi + comp))
    for s in range(2):
        a.v_pk_mul_f32(V(Z[s], 2), V(Z[s], 2), V(22, 2))
    for s in range(2):
        a.v_pk_mul_f32(V(B[s], 2), V(B[s], 2), V(DT, 2), mods="op_sel_hi:[1,0]")
    T = [36, 38]
    T2 = [216, 218]
    XC = [40, 42]
    W1 = [44, 46]; W16 = [48, 50]; W512 = [52, 54]
    ARG = [56, 58, 60, 62, 64, 66]
    EX = [68, 70, 72, 74, 76, 78]
    dsts = [W1[0], W1[1], W16[0], W16[1], W512[0], W512[1]]
    for s in range(2):
        a.v_pk_mul_f32(V(ARG[2 + s], 2), V(Z[s], 2), S(52, 2))
        a.v_pk_mul_f32(V(ARG[4 + s], 2), V(Z[s], 2), S(54, 2))
    cmuln(a, XC, C, B, T)
    srcs = [Z[0], Z[1], ARG[2], ARG[3], ARG[4], ARG[5]]
    for i in range(6):
        a.v_fract_f32(V(ARG[i] + 1), V(srcs[i] + 1))
    for s in range(2):
        a.v_xor_b32(V(XC[s] + 1), "0x80000000", V(XC[s] + 1))
    for i in range(6):
        a.v_exp_f32(V(EX[i]), V(srcs[i]))
        a.v_cos_f32(V(dsts[i]), V(ARG[i] + 1))
        a.v_sin_f32(V(dsts[i] + 1), V(ARG[i] + 1))
    for i in range(6):
        neg = " neg_hi:[1,0]" if i in (2, 3) else ""
        a.v_pk_mul_f32(V(dsts[i], 2), V(dsts[i], 2), V(EX[i], 2), mods="op_sel_hi:[1,0]" + neg)
    PK = [80, 82, 84, 86]
    npk = [0]

    def put_rows(rows):
        ps = []
        for row, r in rows:
            p = PK[npk[0] % 4]
            npk[0] += 1
            ps.append(p)
            a.v_cvt_pk_bf16_f32(V(p), V(r[0]), V(r[0] + 1))
            a.v_cvt_pk_bf16_f32(V(p + 1), V(r[1]), V(r[1] + 1))
        for (row, r), p in zip(rows, ps):
            a.ds_write_b64(V(VW), V(p, 2), mods=f"offset:{row*528}")

    XR0 = 25
    a.v_mov_b32(V(220), "0x3f80")
    a.v_mov_b32(V(221), "0x3f80")
    a.ds_write_b64(V(VW), V(220, 2), mods="offset:0")
    E4 = [56, 58]; E8 = [60, 62]; E12 = [64, 66]; CUR = [68, 70]
    E1024 = [72, 74]; E1536 = [76, 78]
    yprog = [(1, W1, None, None)]
    cur = W1
    for j in range(2, 16):
        dst = {4: E4, 8: E8, 12: E12}.get(j, CUR)
        yprog.append((j, dst, cur, W1))
        cur = dst
    yprog += [(16, W512, None, None), (17, CUR, W512, E4), (18, CUR, W512, E8), (19, CUR, W512, E12),
              (20, E1024, W512, W512), (21, CUR, E1024, E8), (22, E1536, E1024, W512), (23, CUR, E1536, E8), (24, CUR, E1024, E1024)]
    YA, YB, XF, XF2 = 88, 120, 152, 184
    ACC = 8
    reads = []
    for i in range(32):
        ds_, xs_, ws_, ts_, rows = [], [], [], [], []
        if i:
            ds_ += XC; xs_ += XC; ws_ += W16; ts_ += T
        rows.append((XR0 + i if i < 16 else i - 16, XC))
        if yprog:
            row, dst, x, w = yprog.pop(0)
            if x is not None:
                ds_ += dst; xs_ += x; ws_ += w; ts_ += T2
            rows.append((row, dst))
        cmuln(a, ds_, xs_, ws_, ts_)
        put_rows(rows)
        hook(i)
        if i == 14:
            for m in range(4):
                a.ds_read_b128(V(YA + 4 * m, 4), V(VRA), mods=f"offset:{16*m}")
        if i == 15:
            for m in range(4, 8):
                a.ds_read_b128(V(YA + 4 * m, 4), V(VRA), mods=f"offset:{16*m}")
        if i == 16:
            reads += [(XF + 4 * m, VRA, XR0 * 528 + 16 * m) for m in range(8)]
        if i == 23:
            reads += [(YB + 4 * m, VRB, 16 * 528 + 16 * m) for m in range(8)]
        for _ in range(2):
            if reads:
                d, ad, off = reads.pop(0)
                a.ds_read_b128(V(d, 4), V(ad), mods=f"offset:{off}")
    assert not reads and not yprog
    t_pre = a.nds
    tk = []
    for m in range(8):
        tk.append(a.ds_read_b128(V(XF2 + 4 * m, 4), V(VRA), mods=f"offset:{16*m}"))
    hook(200)
    a.v_lshlrev_b32(V(32), 16, V(PR + 7))
    a.v_cmp_eq_u32("vcc", 0, V(VL))
    a.v_cndmask_b32(V(32), 0, V(32), "vcc")
    a.v_mov_b32(V(33), 0)
    a.v_mov_b32(V(34), S(56))
    a.wds(t_pre)
    for m in range(8):
        a.v_mfma_f32_16x16x32_bf16(V(ACC, 4), V(YA + 4 * m, 4), V(XF + 4 * m, 4), V(ACC, 4) if m else 0)
        a.v_mfma_f32_16x16x32_bf16(V(ACC + 8, 4), V(YB + 4 * m, 4), V(XF + 4 * m, 4), V(ACC + 8, 4) if m else 0)
    a.wait(lgkm=0)
    for m in range(8):
        a.v_mfma_f32_16x16x32_bf16(V(ACC + 4, 4), V(YA + 4 * m, 4), V(XF2 + 4 * m, 4), V(ACC + 4, 4) if m else 0)
        a.v_mfma_f32_16x16x32_bf16(V(ACC + 12, 4), V(YB + 4 * m, 4), V(XF2 + 4 * m, 4), V(ACC + 12, 4) if m else 0)
        if m == 4:
            a.v_add_f32(V(ACC), V(ACC), V(32))
            a.v_subrev_u32(V(38), 4, V(34))
            a.ds_write_b32(V(38), V(33))
            a.ds_write_b128(V(TA1), V(ACC, 4))
            a.ds_write_b64(V(TA3), V(ACC + 8, 2), mods=f"offset:{384*4}")
            a.ds_write_b64(V(TB3), V(ACC + 10, 2), mods=f"offset:{384*4}")
    a.v_lshl_add_u32(V(35), V(VL), 4, S(56))
    a.v_lshl_add_u32(V(36), V(VL), 3, S(56))
    a.v_add_u32(V(37), 2048, V(36))
    a.v_subrev_u32(V(38), 4, V(35))
    a.v_lshl_add_u32(V(60), V(VL), 4, S(s_wt))
    a.v_lshl_add_u32(V(61), V(VL), 5, S(s_wt))
    a.v_lshl_add_u32(V(62), V(VL), 6, S(s_wt))
    R0, R0P, R1, R1P, R2, R3 = 40, 44, 48, 45, 52, 56
    a.ds_read_b128(V(R0, 4), V(35))
    t0 = a.ds_read_b32(V(R0P), V(38))
    a.ds_write2_b32(V(TA2), V(ACC + 4), V(ACC + 6), mods="offset0:0 offset1:1")
    a.ds_write_b64(V(TA4), V(ACC + 12, 2), mods=f"offset:{384*4}")
    a.ds_write_b64(V(TB4), V(ACC + 14, 2), mods=f"offset:{384*4}")
    a.ds_read2_b64(V(R1, 4), V(36), mods="offset0:128 offset1:129")
    t1 = a.ds_read_b32(V(R1P), V(34), mods=f"offset:{255*4}")
    t2 = a.ds_read2_b64(V(R2, 4), V(36), mods="offset0:192 offset1:193")
    t3 = a.ds_read2_b64(V(R3, 4), V(37), mods="offset0:0 offset1:1")

    def emit_out(region, q, vreg):
        voff = (60, 60, 61, 62)[region]
        imm = 64 + (0, 1024, 2048, 4096)[region] + 16 * q
        a.ds_write_b128(V(voff), V(vreg, 4), mods=f"offset:{imm}")

    OUT = 88
    cv = lambda d, x, y: a.v_cvt_pk_bf16_f32(V(d), V(x), V(y))
    a.wds(t0)
    cv(OUT, R0, R0P); cv(OUT + 1, R0 + 1, R0); cv(OUT + 2, R0 + 2, R0 + 1); cv(OUT + 3, R0 + 3, R0 + 2)
    emit_out(0, 0, OUT)
    a.wds(t1)
    a.v_cndmask_b32(V(R1P), V(R1), V(R1P), "vcc")
    o = OUT + 4
    cv(o + 1, R1, R1); cv(o + 2, R1 + 1, R1); cv(o + 3, R1 + 2, R1 + 1); cv(o, R1, R1P)
    emit_out(1, 0, o)
    a.wds(t2)
    A_, B_, C_ = R2, R2 + 1, R2 + 2
    o = OUT + 8
    for i, (x, y) in enumerate([(A_, A_), (A_, A_), (A_, A_), (B_, A_), (B_, B_), (B_, B_), (C_, B_), (C_, C_)]):
        cv(o + i, x, y)
    emit_out(2, 0, o); emit_out(2, 1, o + 4)
    a.wds(t3)
    A_, B_, C_ = R3, R3 + 1, R3 + 2
    o = OUT + 16
    seq = [(A_, A_)] * 5 + [(B_, A_)] + [(B_, B_)] * 6 + [(C_, B_)] + [(C_, C_)] * 3
    for i, (x, y) in enumerate(seq):
        cv(o + i, x, y)
        if i % 4 == 3:
            emit_out(3, i // 4, o + i - 3)


def calc_ct(a, sd):
    a.s_and_b32(S(sd), S(2), 7)
    a.s_lshl_b32(S(sd), S(sd), 4)
    a.s_add_u32(S(sd), S(sd), S(2))
    a.s_bfe_u32(S(sd), S(sd), "0x40003")


def w1_addr(a, t0, t1):
    a.s_mov_b32(S(48), 3456 - 224)
    calc_ct(a, 49)
    a.s_bitcmp1_b32(S(49), 0)
    a.s_cselect_b32(S(49), 0, 208)
    a.v_mov_b32(V(VPA), DUMMY_L)
    for q in range(7):
        a.v_add_u32(V(t0), 256 * q, V(0))
        a.v_mul_u32_u24(V(t1), 4682, V(t0))
        a.v_lshrrev_b32(V(t1), 16, V(t1))
        a.v_lshlrev_b32(V(t0), 4, V(t0))
        a.v_mad_u32_u24(V(VW1 + q), V(t1), S(48), V(t0))
        a.v_mul_u32_u24(V(t1), 224, V(t1))
        a.v_sub_u32(V(t1), V(t0), V(t1))
        a.v_cmp_eq_u32("vcc", S(49), V(t1))
        a.v_cndmask_b32(V(VPA), V(VPA), V(t0), "vcc")


def w1_patch(a, groups, vt, VPA=31):
    a.v_mov_b32(V(vt), "0x3f80")
    a.v_mov_b32(V(vt + 1), 0)
    a.s_sub_u32(S(6), 8, S(S_D2))
    a.v_cmp_gt_u32("vcc", DUMMY_L, V(VPA))
    a.v_add_u32(V(vt + 2), S(6), V(VPA))
    a.s_and_saveexec_b64(S(48, 2), "vcc")
    cur = 0
    for g in groups:
        off = g * 28672 - cur
        if off > 65535:
            a.v_add_u32(V(vt + 2), off, V(vt + 2))
            cur = g * 28672
            off = 0
        a.ds_write_b64(V(vt + 2), V(vt, 2), mods=f"offset:{off}")
    a.s_mov_b64("exec", S(48, 2))
    a.v_mov_b32(V(vt + 2), 143360)
    a.ds_write_b64(V(vt + 2), V(vt, 2))


def w1_srd(a):
    calc_ct(a, 6)
    a.s_mul_i32(S(6), S(6), 216)
    a.s_and_b32(S(S_D2), S(6), 15)
    a.s_sub_u32(S(6), S(6), S(S_D2))
    a.s_add_u32(S(R_W1), S(P_W1), S(6))
    a.s_addc_u32(S(R_W1 + 1), S(P_W1 + 1), 0)
    a.s_sub_u32(S(R_W1 + 2), 640 * 3456, S(6))
    a.s_mov_b32(S(R_W1 + 3), "0x20000")
    a.s_lshl_b32(S(S_M0W), S(S_WAVE), 10)


def w1_dma(a, q, perm=None):
    g = q // 7
    if perm is None or perm[g] == g:
        a.s_add_u32("m0", S(S_M0W), 4096 * q)
        a.s_mov_b32(S(63), g * 128 * 3456)
    else:
        if q % 7 == 0:
            a.s_bitcmp1_b32(S(2), 7)
            a.s_cselect_b32(S(50), perm[g], g)
            a.s_mul_i32(S(51), S(50), 7 * 4096)
            a.s_add_u32(S(51), S(51), S(S_M0W))
            a.s_mul_i32(S(50), S(50), 128 * 3456)
        a.s_add_u32("m0", S(51), 4096 * (q % 7))
        a.s_mov_b32(S(63), S(50))
    return a.buffer_load_dwordx4(V(VW1 + q % 7), S(R_W1, 4), S(63), mods="offen lds")


def w2_quarter_setup(a, vt):
    srd(a, 24, P_WS, W2P_OFF, W2P_SZ)
    a.s_lshr_b32(S(6), S(2), 3)
    a.s_mul_i32(S(6), S(6), 540 * 128)
    a.v_min_u32(V(vt), 179, V(0))
    a.v_lshl_add_u32(V(vt), V(vt), 7, S(6))


def w2_quarter_load(a, vt, i, dst):
    a.s_mov_b32(S(63), i * 180 * 128)
    a.buffer_load_dword(V(dst), V(vt), S(24, 4), S(63), mods="offen sc1")


def h1_prewrite_setup(a, vt):
    calc_ct(a, 6)
    a.s_mul_i32(S(6), S(6), 27 * 256)
    a.s_and_b32(S(7), S(2), 7)
    a.s_lshl_b32(S(7), S(7), 1)
    a.s_bfe_u32(S(5), S(2), "0x10007")
    a.s_add_u32(S(7), S(7), S(5))
    a.s_lshl_b32(S(7), S(7), 2)
    a.s_add_u32(S(7), S(7), S(S_WAVE))
    a.s_mul_i32(S(7), S(7), 110592)
    a.s_add_u32(S(6), S(6), S(7))
    srd2(a, 28, P_WS, H1_OFF, S(6), 6912)
    a.v_lshlrev_b32(V(vt), 4, V(1))


def h1_prewrite(a, vt, vd, i):
    a.s_mov_b32(S(63), 1024 * i)
    a.buffer_store_dwordx4(V(vd, 4), V(vt), S(28, 4), S(63), mods="offen sc1")


def conv_first(a):
    S_DG = 60
    a.s_and_b32(S(6), S(2), 7)
    a.s_mul_i32(S(6), S(6), 20)
    a.s_lshr_b32(S(7), S(2), 3)
    a.s_add_u32(S(S_DG), S(6), S(7))
    a.s_lshl_b32(S(6), S(S_DG), 2)
    a.s_add_u32(S(6), S(6), S(S_WAVE))
    return kgen_loads(a, 6)


def h_store_addr(a, vj, vg, voff):
    a.v_mul_u32_u24(V(voff), 40960, V(vg))
    a.v_lshl_add_u32(V(voff), V(vj), 4, V(voff))
    srd(a, 12, P_WS, H4_OFF, H4_SZ)
    a.s_mul_i32(S(58), S(S_WAVE), 16 * 40960)
    a.s_lshl_b32(S(57), S(60), 8)
    a.s_add_u32(S(58), S(58), S(57))


def conv_role(a, ktk):
    VL = 1
    S_DG, S_KS, S_WT = 60, 61, 59
    a.s_mul_i32(S(S_KS), S(S_WAVE), KS_SZ)
    a.s_mul_i32(S(S_WT), S(S_WAVE), WT_P)
    a.s_add_u32(S(S_WT), S(S_WT), WT_L)
    XR = 232
    tk = {}

    def hook(i):
        if i < 0:
            srd(a, 8, P_U, 0, 2048 * 640 * 2)
            a.v_mul_u32_u24(V(7), 10240, V(0))
            a.s_lshl_b32(S(6), S(S_DG), 3)
            a.s_add_u32(S(7), S(6), 5120)
            if XTOUCH:
                a.s_lshr_b32(S(46), S(2), 3)
                a.s_mul_i32(S(46), S(46), 103 * 1280)
                a.s_and_b32(S(47), S(2), 7)
                a.s_mul_i32(S(47), S(47), 160)
                a.s_add_u32(S(46), S(46), S(47))
                a.v_lshrrev_b32(V(24), 1, V(0))
                a.v_min_u32(V(24), 102, V(24))
                a.v_mul_u32_u24(V(24), 1280, V(24))
                a.v_and_b32(V(25), 1, V(0))
                a.v_mul_u32_u24(V(25), 156, V(25))
                a.v_add_u32(V(24), V(24), V(25))
                a.buffer_load_dword(V(231), V(24), S(8, 4), S(46), mods="offen")
            if -1 in GATHER:
                a.s_barrier()
                for e in GATHER[-1]:
                    tk["x"] = a.buffer_load_dwordx2(V(XR + 2 * e, 2), V(7), S(8, 4), S(6 if e < 4 else 7), mods=f"offen offset:{(e%4)*1280}")
            w1_addr(a, 24, 25)
        elif i == 200:
            a.v_lshlrev_b32(V(2), 6, V(0))
            a.v_mov_b32(V(3), 0)
            if STEARLY:
                stat_loads()
        else:
            for e in GATHER.get(i, []):
                tk["x"] = a.buffer_load_dwordx2(V(XR + 2 * e, 2), V(7), S(8, 4), S(6 if e < 4 else 7), mods=f"offen offset:{(e%4)*1280}")

    SR = 64

    def stat_loads():
        for i in range(4):
            a.buffer_load_dwordx4(V(SR + 4 * i, 4), V(2), S(R_SY, 4), 0, mods=f"offen offset:{16*i} sc1")
        a.buffer_load_dword(V(24), V(3), S(R_DBG, 4), 0, mods="offen sc1")

    kgen(a, ktk, S_KS, S_WT, hook)
    stamp(a, 3)
    if not STEARLY:
        stat_loads()
    a.v_mov_b32(V(31), V(VPA))
    a.v_mov_b32(V(25), 0)
    a.s_mul_i32(S(5), S(S_WAVE), 4608)
    a.s_add_u32(S(5), S(5), UB_L)
    a.v_lshl_add_u32(V(26), V(VL), 2, S(5))
    a.ds_write_b32(V(26), V(25))
    a.ds_write_b32(V(26), V(25), mods="offset:2304")
    a.v_and_b32(V(27), 15, V(VL))
    a.v_lshrrev_b32(V(28), 4, V(VL))
    a.v_lshl_add_u32(V(29), V(27), 2, S(S_WT))
    a.ds_write_b32(V(29), V(25))
    VA, VBQ = 32, 40
    a.v_lshl_add_u32(V(VA), V(VL), 2, S(S_WT))
    for c in range(1, 8):
        a.v_add_u32(V(VA + c), 1024 * c, V(VA))
    a.v_sub_u32(V(VBQ), V(27), V(28))
    a.v_add_u32(V(VBQ), 3, V(VBQ))
    a.v_lshl_add_u32(V(VBQ), V(VBQ), 4, S(5))
    a.s_mov_b32(S(46), "0x05040100")
    a.s_mov_b32(S(47), "0x07060302")
    XS, F = 48, 128
    a.wvm(tk["x"])
    stamp(a, 2)
    for c in range(4):
        for k in range(4):
            a.v_perm_b32(V(XS + 4 * c + k), V(XR + 2 * (2 * k + 1) + (c >> 1)), V(XR + 2 * (2 * k) + (c >> 1)), S(46 + (c & 1)))
    a.v_lshlrev_b32(V(41), 4, V(0))
    a.v_add_u32(V(41), XH_L, V(41))
    for c in range(4):
        a.ds_write_b128(V(41), V(XS + 4 * c, 4), mods=f"offset:{c*XH_P}")
    for i in range(16):
        a.v_lshlrev_b32(V(F + 2 * i), 16, V(XS + i))
        a.v_and_b32(V(F + 2 * i + 1), "0xffff0000", V(XS + i))
    a.v_and_b32(V(42), 1, V(0))
    a.v_mul_u32_u24(V(42), 2304, V(42))
    a.v_lshrrev_b32(V(43), 1, V(0))
    a.v_lshl_add_u32(V(42), V(43), 4, V(42))
    a.v_add_u32(V(42), UB_L + 256, V(42))
    h_store_addr(a, 27, 28, 255)
    for q in range(4):
        a.v_mov_b32(V(212 + q), -1)
    lp, first = newlab("st"), newlab("stf")
    a.s_branch(first)
    a.label(lp)
    stat_loads()
    a.label(first)
    a.wait(vm=0)
    a.v_readfirstlane_b32(S(S_NONCE), V(24))
    a.v_min3_u32(V(25), V(SR + 1), V(SR + 3), V(SR + 5))
    a.v_max3_u32(V(26), V(SR + 1), V(SR + 3), V(SR + 5))
    a.v_min3_u32(V(25), V(25), V(SR + 7), V(SR + 9))
    a.v_max3_u32(V(26), V(26), V(SR + 7), V(SR + 9))
    a.v_min3_u32(V(25), V(25), V(SR + 11), V(SR + 13))
    a.v_max3_u32(V(26), V(26), V(SR + 11), V(SR + 13))
    a.v_min3_u32(V(25), V(25), V(SR + 15), V(24))
    a.v_max3_u32(V(26), V(26), V(SR + 15), V(24))
    a.v_max_u32(V(26), 1, V(26))
    a.v_cmp_ne_u32("vcc", V(25), V(26))
    spin_branch(a, lp)
    stamp(a, 4)
    if POISON:
        for q in range(4):
            a.s_add_u32(S(57), S(58), 4 * q * 40960)
            t_poi = a.buffer_store_dwordx4(V(212, 4), V(255), S(12, 4), S(57), mods="offen sc1")
    RS, NM = 96, 104
    for e in range(8):
        a.v_and_b32(V(RS + e), "0xffff0000", V(SR + 2 * e))
        a.v_lshlrev_b32(V(NM + e), 16, V(SR + 2 * e))
    for e in range(8):
        a.v_rcp_f32(V(RS + e), V(RS + e))
    for k in range(4):
        a.v_pk_mul_f32(V(NM + 2 * k, 2), V(NM + 2 * k, 2), V(RS + 2 * k, 2), mods="neg_lo:[1,0] neg_hi:[1,0]")
    for c in range(4):
        for k in range(4):
            f = F + 2 * (4 * c + k)
            a.v_pk_fma_f32(V(f, 2), V(f, 2), V(RS + 2 * k, 2), V(NM + 2 * k, 2))
        for k in range(4):
            f = F + 2 * (4 * c + k)
            a.v_cvt_pk_bf16_f32(V(XS + 4 * c + k), V(f), V(f + 1))
        a.ds_write_b128(V(42), V(XS + 4 * c, 4), mods=f"offset:{c*4608}")
    OPS = [48, 112]
    ACC = 216
    XQ, XFL = 8, 176
    subs = [(g, h) for g in range(4) for h in range(2)]

    def loadsA(si):
        g, h = subs[si]
        base = OPS[si % 2]
        out = []
        for c in range(8):
            o = 8 + 64 * g + 8 * h
            out.append(("ds_read2_b32", (V(base + 4 * c, 2), V(VA + c)), f"offset0:{o} offset1:{o-2}"))
            out.append(("ds_read2_b32", (V(base + 4 * c + 2, 2), V(VA + c)), f"offset0:{o-4} offset1:{o-6}"))
        return out

    def loadsB(si):
        g, h = subs[si]
        base = OPS[si % 2]
        par = 1 - h
        return [("ds_read_b128", (V(base + 32 + 4 * c, 4), V(VBQ)), f"offset:{par*2304 + (13 + 16*c - 4*g)*16}") for c in range(8)]

    a.s_mul_i32(S(6), S(S_WAVE), XH_P)
    a.s_add_u32(S(6), S(6), XH_L)
    a.v_lshlrev_b32(V(44), 5, V(27))
    a.v_lshl_add_u32(V(44), V(28), 3, V(44))
    a.v_add_u32(V(44), S(6), V(44))
    flag_addr(a, 45, 96, VL)
    w1_srd(a)
    w2_quarter_setup(a, 47)
    h1_prewrite_setup(a, 30)
    if os.environ.get("OT", "0") == "2":
        a.v_lshlrev_b32(V(29), 21, V(VL))
        a.v_min_u32(V(29), 0x200000, V(29))
        a.global_load_dword(V(29), V(29), S(P_OUT, 2))
    a.wait(lgkm=0)
    a.s_barrier()
    stamp(a, 5)
    for op, args, mods in loadsB(0) + loadsA(0):
        a.I(op, *args, mods=mods)
    started = set()
    t_rp = None
    nq = 0
    for si in range(8):
        base = OPS[si % 2]
        nxt = []
        if si < 7:
            la, lb = loadsA(si + 1), loadsB(si + 1)
            for c in range(8):
                nxt += [la[2 * c], la[2 * c + 1], lb[c]]
        if si == 0:
            nxt += [("ds_read_b64", (V(XQ + 2 * T, 2), V(44)), f"offset:{512*T}") for T in range(8)]
        extra = []
        if si == 1:
            for i in range(16):
                extra.append(("v_lshlrev_b32", (V(XFL + 2 * i), 16, V(XQ + i)), ""))
                extra.append(("v_and_b32", (V(XFL + 2 * i + 1), "0xffff0000", V(XQ + i)), ""))
        a.wait(lgkm=0)
        if si == 7:
            t_rp = flag_loads(a, 45, S(62), 96, 208)
        if si == 4:
            a.s_mov_b32(S(62), FRP)
        order = [(c, gp) for c in range(8) for gp in range(8 - c)]
        for n, (c, gp) in enumerate(order):
            T = c + gp
            a.v_mfma_f32_16x16x32_bf16(V(ACC + 4 * T, 4), V(base + 4 * c, 4), V(base + 32 + 4 * gp, 4), V(ACC + 4 * T, 4) if T in started else 0)
            started.add(T)
            if nxt:
                op, args, mods = nxt.pop(0)
                a.I(op, *args, mods=mods)
            if extra:
                op, args, mods = extra.pop(0)
                a.I(op, *args, mods=mods)
            if n in DMAN and nq < Q_EARLY:
                if not NODMA:
                    w1_dma(a, nq, perm=[1, 2, 0])
                nq += 1
            if H1W and (si, n) in H1WN:
                h1_prewrite(a, 30, 212, H1WN.index((si, n)))
            if (si, n) in W2Q:
                w2_quarter_load(a, 47, W2Q.index((si, n)), 29)
    assert nq == Q_EARLY
    stamp(a, 6)
    for T in range(8):
        for hh in range(2):
            r = ACC + 4 * T + 2 * hh
            a.v_pk_add_f32(V(r, 2), V(r, 2), V(XFL + 4 * T + 2 * hh, 2))
        p = 48 + 2 * T
        a.v_cvt_pk_bf16_f32(V(p), V(ACC + 4 * T), V(ACC + 4 * T + 1))
        a.v_cvt_pk_bf16_f32(V(p + 1), V(ACC + 4 * T + 2), V(ACC + 4 * T + 3))
        a.ds_write_b64(V(44), V(p, 2), mods=f"offset:{512*T}")
    a.v_bfe_u32(V(8), V(VL), 2, 2)
    a.v_mul_u32_u24(V(8), XH_P, V(8))
    a.v_lshl_add_u32(V(8), V(28), 6, V(8))
    a.v_and_b32(V(9), 3, V(VL))
    a.v_lshl_add_u32(V(8), V(9), 3, V(8))
    a.s_lshl_b32(S(6), S(S_WAVE), 10)
    a.s_add_u32(S(6), S(6), XH_L)
    a.v_add_u32(V(8), S(6), V(8))
    if POISON:
        a.wvm(t_poi)
    a.wait(lgkm=0)
    a.s_barrier()
    HO = 64
    tks = []
    for i in range(4):
        a.ds_read_b64_tr_b16(V(HO + 4 * i, 2), V(8), mods=f"offset:{256*i}")
        tks.append(a.ds_read_b64_tr_b16(V(HO + 4 * i + 2, 2), V(8), mods=f"offset:{256*i+32}"))
    for i in range(4):
        a.wds(tks[i])
        a.s_add_u32(S(7), S(58), 4 * i * 40960)
        t_st = a.buffer_store_dwordx4(V(HO + 4 * i, 4), V(255), S(12, 4), S(7), mods="offen sc1")
    a.s_lshl_b32(S(6), S(2), 7)
    a.s_add_u32(S(6), S(6), FH)
    if not POISON:
        a.wvm(t_st)
    a.s_barrier()
    set_flag(a, S(6), 10)
    stamp(a, 7)
    a.nvm -= 1
    for q in range(Q_EARLY, 35):
        w1_dma(a, q, perm=[0, 1, 2, 4, 3])
    a.wvm(t_rp)
    ok = newlab("rpok")
    flag_check(a, 208, 96)
    a.s_cbranch_vccz(ok)
    poll_flags(a, 45, S(62), 96, 208)
    a.label(ok)


def repack_addr(a, vo):
    a.s_mov_b32(S(48), 1280 - 160)
    for i in range(5):
        a.v_add_u32(V(4), 64 * i, V(1))
        a.v_mul_u32_u24(V(3), 6554, V(4))
        a.v_lshrrev_b32(V(3), 16, V(3))
        a.v_lshlrev_b32(V(4), 4, V(4))
        a.v_mad_u32_u24(V(vo + i), V(3), S(48), V(4))
    a.v_lshrrev_b32(V(4), 2, V(1))
    a.v_mul_u32_u24(V(4), 160, V(4))
    a.v_and_b32(V(3), 3, V(1))
    a.v_lshl_add_u32(V(vo + 5), V(3), 3, V(4))


def repack_load(a, s_idx, s_keep, vo, vd, rsrc):
    a.s_and_b32(S(s_keep), S(s_idx), 7)
    a.s_lshr_b32(S(s_keep + 1), S(s_idx), 3)
    a.s_mul_i32(S(6), S(s_keep + 1), 32 * 1280)
    a.s_mul_i32(S(7), S(s_keep), 160)
    a.s_add_u32(S(6), S(6), S(7))
    return [a.buffer_load_dwordx4(V(vd + 4 * i, 4), V(vo + i), S(rsrc, 4), S(6), mods="offen") for i in range(5)]


def repack_proc(a, s_keep, vo, vd, tks, s_lds):
    a.v_lshl_add_u32(V(4), V(1), 4, S(s_lds))
    a.v_add_u32(V(5), S(s_lds), V(vo + 5))
    a.v_lshlrev_b32(V(7), 4, V(1))
    a.s_mul_i32(S(49), S(s_keep), 54)
    a.s_add_u32(S(49), S(49), S(s_keep + 1))
    a.s_mul_i32(S(49), S(49), 5 * 1024)
    a.s_add_u32(S(50), S(49), 4096)
    for i in range(5):
        a.wvm(tks[i])
        a.ds_write_b128(V(4), V(vd + 4 * i, 4), mods=f"offset:{1024*i}")
    if vd == 104:
        stamp(a, 4)
    rt = []
    for t in range(5):
        a.ds_read_b64_tr_b16(V(vd + 4 * t, 2), V(5), mods=f"offset:{32*t}")
        rt.append(a.ds_read_b64_tr_b16(V(vd + 4 * t + 2, 2), V(5), mods=f"offset:{32*t+16*160}"))
    for t in range(5):
        a.wds(rt[t])
        a.buffer_store_dwordx4(V(vd + 4 * t, 4), V(7), S(12, 4), S(49 if t < 4 else 50), mods=f"offen offset:{1024*(t%4)} sc1")


def aux_first(a):
    VL = 1
    S_AI, S_O = 60, 57
    a.s_sub_u32(S(S_AI), S(2), 160)
    a.s_mul_i32(S(S_O), S(S_AI), 3)
    a.s_add_u32(S(S_O), S(S_O), S(S_WAVE))
    a.v_lshrrev_b32(V(2), 3, V(VL))
    a.v_mul_u32_u24(V(2), 1280, V(2))
    a.v_and_b32(V(3), 7, V(VL))
    a.v_lshl_add_u32(V(2), V(3), 4, V(2))
    a.s_mul_i32(S(6), S(S_O), 10240)
    a.wait(lgkm=0)
    srd(a, 8, P_U, 0, 2048 * 640 * 2)
    return [a.buffer_load_dwordx4(V(16 + 4 * i, 4), V(2), S(8, 4), S(6), mods=f"offen offset:{128*i}") for i in range(10)]


def code_prefetch(a):
    a.s_getpc_b64(S(6, 2))
    a.label("L_PC")
    a.s_sub_u32(S(6), S(6), "L_PC-" + NAME + "_kernel")
    a.s_subb_u32(S(7), S(7), 0)
    a.v_lshlrev_b32(V(2), 7, V(1))
    for i in range(NCODE):
        a.v_min_u32(V(3), "L_END-" + NAME + "_kernel", V(2))
        a.global_load_dword(V(244), V(3), S(6, 2))
        a.v_add_u32(V(2), 8192, V(2))


def aux_role(a, xt):
    VL = 1
    S_AI, S_GW, S_KS, S_O = 60, 61, 62, 57
    XB = 16
    if xt is None:
        a.s_sub_u32(S(S_AI), S(2), 160)
        a.s_mov_b32(S(S_NONCE), S(4))
    a.s_lshl_b32(S(S_GW), S(S_AI), 2)
    a.s_add_u32(S(S_GW), S(S_GW), S(S_WAVE))
    a.s_mul_i32(S(S_KS), S(S_WAVE), 5120)
    a.s_add_u32(S(S_KS), S(S_KS), 143360)
    repack_addr(a, 64)
    srd(a, 24, P_W2, 0, 1728 * 640 * 2)
    srd(a, 28, P_W1, 0, 640 * 1728 * 2)
    tt = {}

    def wloads():
        tt[2] = repack_load(a, S_GW, 4, 64, 104, 24)
        if xt is None:
            a.s_add_u32(S(56), S(S_AI), 384)
            tt[3] = repack_load(a, 56, 58, 64, 72, 24)
        if os.environ.get("W1E", "0") == "1":
            a.v_lshlrev_b32(V(6), 7, V(VL))
            a.s_lshl_b32(S(6), S(S_GW), 13)
            a.buffer_load_dword(V(238), V(6), S(28, 4), S(6), mods="offen")

    AUXLATE = os.environ.get("AUXLATE", "1") == "1"
    if not AUXLATE:
        wloads()
    if xt is None:
        a.v_and_b32(V(71), 3, V(VL))
        a.v_lshlrev_b32(V(71), 10, V(71))
    else:
        a.s_lshl_b32(S(6), S(S_WAVE), 10)
        a.v_mov_b32(V(71), S(6))
    if xt is None:
        a.wvm(1)
        a.v_readfirstlane_b32(S(6), V(12))
        a.s_cmp_eq_u32(S(6), 0)
        a.s_cselect_b32(S(S_NONCE), S(S_NONCE), S(6))
        a.v_mov_b32(V(13), S(S_NONCE))
        a.ds_write_b32(V(71), V(13))
        a.wait(lgkm=0)
        stamp(a, 7)
        a.s_barrier()
    w1_addr(a, 4, 5)
    srd(a, 12, P_WS, W2P_OFF, W2P_SZ)
    if xt is not None:
        a.s_mov_b32(S(46), "0x3f803f80")
        for i in range(10):
            a.wvm(xt[i])
            for q in range(4):
                x = V(XB + 4 * i + q)
                first = (i == 0 and q < 2)
                a.v_dot2_f32_bf16(V(8 + (q & 1)), x, S(46), 0 if first else V(8 + (q & 1)))
                a.v_dot2_f32_bf16(V(10 + (q & 1)), x, x, 0 if first else V(10 + (q & 1)))
        stamp(a, 7)
        a.s_barrier()
        a.ds_read_b32(V(15), V(71))
        a.v_add_f32(V(8), V(8), V(9))
        a.v_add_f32(V(10), V(10), V(11))
        for m in ("quad_perm:[1,0,3,2]", "quad_perm:[2,3,0,1]", "row_half_mirror"):
            a.v_add_f32_dpp(V(8), V(8), V(8), mods=f"{m} row_mask:0xf bank_mask:0xf")
            a.v_add_f32_dpp(V(10), V(10), V(10), mods=f"{m} row_mask:0xf bank_mask:0xf")
        inv = f32(1.0 / 640)
        a.v_mul_f32(V(8), inv, V(8))
        a.v_mul_f32(V(10), inv, V(10))
        a.v_fma_f32(V(10), "-" + V(8), V(8), V(10))
        a.v_max_f32(V(10), 0, V(10))
        a.v_cvt_pk_bf16_f32(V(9), V(10), V(10))
        a.v_lshlrev_b32(V(10), 16, V(9))
        a.v_add_f32(V(10), f32(1e-5), V(10))
        a.v_cvt_pk_bf16_f32(V(9), V(10), V(10))
        a.v_lshlrev_b32(V(10), 16, V(9))
        a.v_sqrt_f32(V(10), V(10))
        a.v_cvt_pk_bf16_f32(V(14), V(8), V(10))
        a.v_and_b32(V(3), 7, V(VL))
        a.v_cmp_eq_u32("vcc", 0, V(3))
        a.v_mov_b32(V(9), "0x40000000")
        a.v_cndmask_b32(V(9), V(9), V(VL), "vcc")
        a.s_lshl_b32(S(6), S(S_O), 6)
        a.s_cmp_ge_u32(S(S_O), 256)
        a.s_cselect_b32(S(6), "0x40000000", S(6))
        a.wait(lgkm=0)
        a.buffer_store_dwordx2(V(14, 2), V(9), S(R_SY, 4), S(6), mods="offen sc1")
        a.v_readfirstlane_b32(S(S_NONCE), V(15))
        stamp(a, 1)
    if AUXLATE:
        wloads()
    repack_proc(a, 4, 64, 104, tt[2], S_KS)
    if xt is None:
        join = newlab("aj")
        a.s_cmp_ge_u32(S(56), 432)
        a.s_cbranch_scc1(join)
        repack_proc(a, 58, 64, 72, tt[3], S_KS)
        a.label(join)


def aux_tail(a):
    VL = 1
    S_AI = 60
    stamp(a, 5)
    t_rs = a.nvm
    a.v_lshlrev_b32(V(6), 7, V(VL))
    a.s_lshl_b32(S(6), S(61), 13)
    if os.environ.get("W1E", "0") != "1":
        a.buffer_load_dword(V(238), V(6), S(28, 4), S(6), mods="offen")
    w1_srd(a)
    a.v_mov_b32(V(31), V(VPA))
    QB = int(os.environ.get("QB", "0"))
    for q in range(QB):
        w1_dma(a, q, perm=eval(os.environ.get("AP", "[3, 4, 2, 0, 1]")))
    a.wvm(t_rs)
    stamp(a, 6)
    a.s_barrier()
    a.s_lshl_b32(S(6), S(S_AI), 7)
    a.s_add_u32(S(6), S(6), FRP)
    set_flag(a, S(6), 10)
    stamp(a, 2)
    LPF = os.environ.get("LPF", "late")

    def lpf(first, n):
        a.s_lshr_b32(S(5), S(S_AI), 3)
        a.s_mul_i32(S(5), S(5), 192 * 128)
        a.v_min_u32(V(2), 191, V(0))
        a.v_lshlrev_b32(V(2), 7, V(2))
        for i in range(n):
            a.s_add_u32(S(6), S(5), (first + i * 2304) * 128)
            a.buffer_load_dword(V(239), V(2), S(28, 4), S(6), mods="offen")

    if LPF == "all":
        lpf(0, 8)
    if LPF == "first":
        lpf(384 * 27, 3)
    for q in range(QB, 35):
        t_own = w1_dma(a, q, perm=eval(os.environ.get("AP", "[3, 4, 2, 0, 1]")))
    if LPF == "late":
        lpf(384 * 27, 3)
    if H1W:
        h1_prewrite_setup(a, 30)
        for q in range(4):
            a.v_mov_b32(V(212 + q), -1)
        for i in range(7):
            h1_prewrite(a, 30, 212, i)
    nocs = newlab("nocs")
    a.s_cmp_ge_u32(S(S_AI), 16)
    a.s_cbranch_scc1(nocs)
    a.v_lshrrev_b32(V(6), 2, V(VL))
    a.v_mul_u32_u24(V(6), 224, V(6))
    a.v_and_b32(V(7), 3, V(VL))
    a.v_lshl_add_u32(V(6), V(7), 3, V(6))
    a.s_mul_i32(S(47), S(S_WAVE), 5 * 7168)
    a.s_add_u32(S(47), S(47), S(S_D2))
    a.v_add_u32(V(6), S(47), V(6))
    for i in range(4):
        a.v_mov_b32(V(12 + i), "0x3f803f80")
    a.s_lshl_b32(S(47), S(S_WAVE), 9)
    a.s_add_u32(S(47), S(47), CSP_L)
    a.v_lshrrev_b32(V(7), 4, V(VL))
    a.v_lshl_add_u32(V(7), V(7), 4, S(47))
    a.wvm(t_own)
    a.s_barrier()
    FR, CA = 32, 176
    for kk in range(6):
        if kk < 5:
            for t in range(7):
                for hh in range(2):
                    a.ds_read_b64_tr_b16(V(FR + 28 * kk + 4 * t + 2 * hh, 2), V(6), mods=f"offset:{kk*7168 + hh*3584 + 32*t}")
        if kk:
            a.wait(lgkm=14 if kk < 5 else 0)
            for t in range(7):
                a.v_mfma_f32_16x16x32_bf16(V(CA + 4 * t, 4), V(FR + 28 * (kk - 1) + 4 * t, 4), V(12, 4), V(CA + 4 * t, 4) if kk > 1 else 0)
    a.s_mov_b32("exec_lo", "0x00010001")
    a.s_mov_b32("exec_hi", "0x00010001")
    for t in range(7):
        a.ds_write_b128(V(7), V(CA + 4 * t, 4), mods=f"offset:{64*t}")
    a.s_mov_b64("exec", -1)
    a.v_and_b32(V(8), 127, V(0))
    a.v_lshlrev_b32(V(9), 2, V(8))
    a.v_add_u32(V(9), CSP_L, V(9))
    a.v_lshlrev_b32(V(8), 3, V(8))
    calc_ct(a, 6)
    a.s_lshl_b32(S(6), S(6), 10)
    a.s_add_u32(S(6), S(6), FCS)
    a.wait(lgkm=0)
    a.s_barrier()
    for w in range(4):
        a.ds_read_b32(V(16 + w), V(9), mods=f"offset:{512*w}")
    a.wait(lgkm=0)
    a.v_add_f32(V(16), V(16), V(17))
    a.v_add_f32(V(18), V(18), V(19))
    a.v_add_f32(V(16), V(16), V(18))
    a.v_mov_b32(V(17), S(S_NONCE))
    a.s_cmp_ge_u32(S(S_WAVE), 2)
    a.s_cbranch_scc1(nocs)
    a.buffer_store_dwordx2(V(16, 2), V(8), S(R_SY, 4), S(6), mods="offen sc1")
    a.label(nocs)
    flag_addr(a, 45, 96, VL)
    a.s_mov_b32(S(62), FRP)
    poll_flags(a, 45, S(62), 96, 208)
    stamp(a, 3)
    AW2 = eval(os.environ.get("AW2", "[]"))
    if AW2:
        srd(a, 24, P_WS, W2P_OFF, W2P_SZ)
        a.s_lshr_b32(S(5), S(S_AI), 3)
        a.s_mul_i32(S(5), S(5), 30 * 128)
        a.v_lshrrev_b32(V(47), 5, V(0))
        a.v_mul_u32_u24(V(47), 2160, V(47))
        a.v_and_b32(V(2), 31, V(0))
        a.v_min_u32(V(2), 29, V(2))
        a.v_add_u32(V(47), V(47), V(2))
        a.v_lshlrev_b32(V(47), 7, V(47))
        for i in AW2:
            a.s_add_u32(S(6), S(5), i * 360 * 128)
            a.buffer_load_dword(V(238), V(47), S(24, 4), S(6), mods="offen sc1")


def gemms(a):
    VL = 1
    S_CT, S_TB, S_CT2, S_RB2 = 56, 57, 58, 59
    R_H, R_X, R_W2 = 8, 12, 20
    t_dma = a.nvm
    a.s_bfe_u32(S(S_CT2), S(2), "0x30004")
    a.v_lshlrev_b32(V(5), 4, V(VL))
    a.s_mul_i32(S(7), S(S_CT2), 270 * 1024)
    srd2(a, R_W2, P_WS, W2P_OFF, S(7), 270 * 1024)
    a.s_mul_i32(S(46), S(S_WAVE), 5 * 1024)
    ACC, BB = 16, 96
    W2V = 192
    NA = 8

    def w2dst(s, t):
        if s < 10:
            return A(56 + 20 * s + 4 * t, 4)
        if s < 12:
            return A(20 * (s - 10) + 4 * t, 4)
        return V(W2V + 20 * (s - 12) + 4 * t, 4)

    wtk = {}

    def wload(n, part=None):
        s, t = divmod(n, 5)
        if part != 1:
            if t == 0:
                a.s_add_u32(S(49), S(46), s * 20 * 1024)
            if t == 4:
                a.s_add_u32(S(49), S(49), 4096)
        if part == 0:
            return
        wtk[n] = a.buffer_load_dwordx4(w2dst(s, t), V(5), S(R_W2, 4), S(49), mods=f"offen offset:{1024*(t%4)} sc1")

    wq = list(range(70))
    NPRE = int(os.environ.get("NPRE", "20"))
    for _ in range(NPRE):
        wload(wq.pop(0))
    a.s_and_b32(S(4), S(2), 7)
    a.s_lshl_b32(S(5), S(4), 1)
    a.s_bfe_u32(S(6), S(2), "0x10007")
    a.s_add_u32(S(60), S(5), S(6))
    calc_ct(a, S_CT)
    a.s_lshl_b32(S(S_TB), S(60), 2)
    a.s_add_u32(S(S_TB), S(S_TB), S(S_WAVE))
    a.s_lshl_b32(S(5), S(60), 1)
    a.s_bfe_u32(S(6), S(2), "0x10003")
    a.s_add_u32(S(S_RB2), S(5), S(6))
    a.v_and_b32(V(2), 15, V(VL))
    a.v_lshrrev_b32(V(3), 4, V(VL))
    a.s_mul_i32(S(7), S(S_TB), 110592)
    srd2(a, R_X, P_WS, H1_OFF, S(7), 110592)
    a.s_mul_i32(S(7), S(S_TB), 40960)
    srd2(a, R_H, P_WS, H4_OFF, S(7), 40960)
    a.v_lshrrev_b32(V(6), 2, V(VL))
    a.v_mul_u32_u24(V(6), 224, V(6))
    a.v_and_b32(V(7), 3, V(VL))
    a.v_lshl_add_u32(V(6), V(7), 3, V(6))
    a.v_add_u32(V(6), S(S_D2), V(6))
    a.v_add_u32(V(7), 9 * 7168, V(6))
    a.v_add_u32(V(4), 18 * 7168, V(6))
    VAB = [6, 7, 4]
    a.s_mov_b32(S(63), 64)
    a.s_lshl_b32(S(47), S(S_WAVE), 9)
    a.s_add_u32(S(47), S(47), CS_L)
    VCR, VCW, VBP, VST6 = 8, 9, 10, 11
    a.v_lshl_add_u32(V(VCR), V(3), 4, S(47))
    a.v_lshl_add_u32(V(VCW), V(VL), 3, S(47))
    a.v_lshlrev_b32(V(VBP), 2, V(2))
    a.v_add_u32(V(VBP), 192, V(VBP))
    a.v_cmp_eq_u32("vcc", 3, V(3))
    a.v_mov_b32(V(VST6), "0x40000000")
    a.v_cndmask_b32(V(VST6), V(5), V(VST6), "vcc")
    a.s_lshl_b32(S(50), S(S_CT), 10)
    a.s_add_u32(S(50), S(50), FCS)
    a.s_mul_i32(S(51), S(S_CT), 27 * 256)
    a.s_add_u32(S(61), S(51), 4096)
    a.s_lshl_b32(S(62), S(60), 4)
    a.s_add_u32(S(62), S(62), S(S_CT))
    a.s_lshl_b32(S(62), S(62), 7)
    a.s_add_u32(S(62), S(62), FH1)
    flag_addr(a, 24, 160, VL)
    a.s_mov_b32(S(47), FH)
    a.wvm(t_dma)
    w1_patch(a, range(5), 12)
    skip = newlab("ph")
    a.s_cmp_lg_u32(S(S_WAVE), 0)
    a.s_cbranch_scc1(skip)
    poll_flags(a, 24, S(47), 160, 16)
    a.label(skip)
    a.wait(lgkm=0)
    a.s_barrier()
    stamp(a, 8)
    a.label("L_G1")
    btk = {}

    def bload(n, part=None):
        if n % 4 == 0 and part != 1:
            a.s_mov_b32(S(48), n * 1024)
        if part == 0:
            return
        btk[n] = a.buffer_load_dwordx4(V(BB + 4 * n, 4), V(5), S(R_H, 4), S(48), mods=f"offen offset:{(n%4)*1024} sc1")

    ctk = {}

    def csload(n, part=None):
        if part == 0:
            return
        ctk[0] = a.buffer_load_dwordx4(V(84, 4), V(5), S(R_SY, 4), S(50), mods="offen sc1")

    def areads(ks):
        out = []
        for t in range(7):
            for hh in range(2):
                out.append((A(28 * (ks % 2) + 4 * t + 2 * hh, 2), V(VAB[ks // 9]), f"offset:{(ks%9)*7168 + hh*3584 + 32*t}"))
        return out

    queue = [(bload, n) for n in range(40)] + [(csload, 0)] + [(wload, n) for n in wq if n < 50]
    for _ in range(12):
        f, n = queue.pop(0); f(n)
    atk = [a.ds_read_b64_tr_b16(d, ad, mods=mods) for d, ad, mods in areads(0)]
    CSR = 72
    S1 = [12, 13]
    NMv = [92, 94]
    NLP = eval(os.environ.get("NLP", "[3]"))
    a.wvm(btk[1])
    a.v_swap_b32(V(BB + 2), V(BB + 4))
    a.v_swap_b32(V(BB + 3), V(BB + 5))
    for ks in range(19):
        if ks == 15:
            a.wvm(ctk[0])
            a.v_xor_b32(V(85), S(S_NONCE), V(85))
            a.v_xor_b32(V(87), S(S_NONCE), V(87))
            a.v_or_b32(V(85), V(85), V(87))
            a.v_cmp_ne_u32("vcc", 0, V(85))
            a.s_cbranch_vccnz("L_CSW")
            a.label("L_CSOK")
            a.ds_write2_b32(V(VCW), V(84), V(86), mods="offset0:0 offset1:1")
        b = BB + 8 * ks
        if os.environ.get("G1ST", "0") == "1" and ks in (0, 4, 9, 14):
            stamp(a, {0: 1, 4: 2, 9: 3, 14: 4}[ks])
        nxt = areads(ks + 1)
        if ks == 18:
            nxt = nxt[12:] + nxt[:12]
        ntk = []
        lg = (1, 4, 10, 13)[:NLP[ks % len(NLP)]]
        bn = BB + 8 * (ks + 1)
        for t in range(7):
            for p in range(2):
                g = 2 * t + p
                acc = ACC + 8 * t + 4 * p
                if g == 0:
                    a.wds(atk[5])
                a.v_mfma_f32_16x16x32_bf16(V(acc, 4), A(28 * (ks % 2) + 4 * t, 4), V(b + 4 * p, 4), V(acc, 4) if ks else 0)
                d, ad, mods = nxt.pop(0)
                ntk.append(a.ds_read_b64_tr_b16(d, ad, mods=mods))
                if g + 1 in lg and queue:
                    f, n = queue[0]; f(n, 0)
                if g in lg and queue:
                    f, n = queue.pop(0); f(n, 1)
                if g == 5:
                    a.wboth(btk[2 * ks + 3], atk[13])
                if g == 7:
                    a.v_swap_b32(V(bn + 2), V(bn + 4))
                if g == 8:
                    a.v_swap_b32(V(bn + 3), V(bn + 5))
        atk = ntk
    b = BB + 8 * 19
    a.wds(atk[1])
    for p in range(2):
        acc = ACC + 48 + 4 * p
        a.v_mfma_f32_16x16x32_bf16(V(acc, 4), A(28 + 24, 4), V(b + 4 * p, 4), V(acc, 4))
    order = [6, 0, 1, 2, 3, 4, 5]
    cst = {}
    a.wds(atk[13])
    pre = []
    for t in range(6):
        for p in range(2):
            g = 2 * t + p
            acc = ACC + 8 * t + 4 * p
            a.v_mfma_f32_16x16x32_bf16(V(acc, 4), A(28 + 4 * t, 4), V(b + 4 * p, 4), V(acc, 4))
            if g < 3:
                cst[order[g]] = a.ds_read_b128(V(CSR + 4 * g, 4), V(VCR), mods=f"offset:{64*order[g]}")
            elif g < 5:
                t_bp = a.ds_bpermute_b32(V(S1[g - 3]), V(VBP), V(ACC + 48 + 4 * (g - 3)))
            elif g < 7:
                cst[order[g - 2]] = a.ds_read_b128(V(CSR + 4 * (g - 2), 4), V(VCR), mods=f"offset:{64*order[g-2]}")
            elif g == 9:
                a.wds(t_bp)
                a.v_cmp_u_f32("vcc", V(S1[0]), V(S1[1]))
                a.v_mul_f32(V(S1[0]), f32(1.0 / 640), V(S1[0]))
            elif g == 10:
                a.v_mul_f32(V(S1[1]), f32(1.0 / 640), V(S1[1]))
                a.v_cvt_pk_bf16_f32(V(NMv[1]), "-" + V(S1[0]), "-" + V(S1[1]))
            elif g == 11:
                a.v_lshlrev_b32(V(NMv[0]), 16, V(NMv[1]))
                a.v_and_b32(V(NMv[1]), "0xffff0000", V(NMv[1]))
    stamp(a, 9)
    a.s_cbranch_vccnz("L_G1RETRY")
    a.label("L_G1OK")
    for i, t in enumerate(order):
        cs = CSR + 4 * (i % 5)
        if i >= 3:
            a.wds(cst[t])
        for p in range(2):
            for hh in range(2):
                r = ACC + 8 * t + 4 * p + 2 * hh
                a.v_pk_fma_f32(V(r, 2), V(cs + 2 * hh, 2), V(NMv[p], 2), V(r, 2), mods="op_sel_hi:[1,0,1]")
        if i < 2:
            cst[order[5 + i]] = a.ds_read_b128(V(cs, 4), V(VCR), mods=f"offset:{64*order[5+i]}")
        ob = ACC + 8 * t
        for q in range(4):
            a.v_cvt_pk_bf16_f32(V(ob + q), V(ob + 2 * q), V(ob + 2 * q + 1))
        for q in range(4):
            a.v_pk_max_i16(V(ob + q), V(ob + q), 0)
        t_st = a.buffer_store_dwordx4(V(ob, 4), V(VST6 if t == 6 else 5), S(R_X, 4), S(51 if t < 4 else 61), mods=f"offen offset:{1024*(t%4)} sc1")
    queue += [(wload, n) for n in range(50, 60)]
    SQ = 72
    nep = int(os.environ.get("NEP", "10"))
    for ks in range(20):
        for p in range(2):
            bb = BB + 8 * ks + 4 * p
            a.v_mfma_f32_16x16x32_bf16(V(SQ + 4 * p, 4), V(bb, 4), V(bb, 4), V(SQ + 4 * p, 4) if ks else 0)
        if ks % 2 == 1 and nep and queue:
            f, n = queue.pop(0); f(n); nep -= 1
    a.v_mov_b32(V(14), S(S_NONCE))
    a.v_mov_b32(V(15), 0)
    a.wvm(t_st)
    a.s_barrier()
    skip = newlab("fa")
    a.s_cmp_lg_u32(S(S_WAVE), 0)
    a.s_cbranch_scc1(skip)
    a.s_mov_b64("exec", 1)
    if os.environ.get("NOA", "0") != "1":
        a.buffer_store_dword(V(14), V(15), S(R_SY, 4), S(62), mods="offen")
        a.nvm -= 1
    a.s_mov_b64("exec", -1)
    a.label(skip)
    stamp(a, 10)
    queue += [(wload, n) for n in range(60, 70)]
    for _ in range(int(os.environ.get("NPOST", "6"))):
        if queue:
            f, n = queue.pop(0); f(n)
    HR = 232
    a.s_lshl_b32(S(4), S(S_RB2), 1)
    a.s_lshr_b32(S(6), S(S_WAVE), 1)
    a.s_add_u32(S(5), S(6), S(4))
    a.s_mul_i32(S(7), S(5), 40960)
    srd2(a, R_H, P_WS, H4_OFF, S(7), 40960)
    a.s_mul_i32(S(50), S(S_CT2), 20 * 256)
    a.s_and_b32(S(5), S(S_WAVE), 1)
    a.s_lshl_b32(S(5), S(5), 3)
    a.s_add_u32(S(50), S(50), S(5))
    a.s_add_u32(S(51), S(50), 4096)
    for t in range(5):
        a.buffer_load_dwordx2(V(HR + 2 * t, 2), V(5), S(R_H, 4), S(50 if t < 4 else 51), mods=f"offen offset:{1024*(t%4)} sc1")
    a.v_and_b32(V(8), 3, V(2))
    for r in (1, 2, 3):
        a.v_cmp_eq_u32("vcc", r, V(8))
        for p in range(2):
            a.v_cndmask_b32(V(SQ + 4 * p), V(SQ + 4 * p), V(SQ + 4 * p + r), "vcc")
    S2 = [SQ, SQ + 4]
    for p in range(2):
        a.v_mul_f32(V(S2[p]), f32(1.0 / 640), V(S2[p]))
    for p in range(2):
        a.v_fma_f32(V(S2[p]), "-" + V(S1[p]), V(S1[p]), V(S2[p]))
    for p in range(2):
        a.v_max_f32(V(S2[p]), 0, V(S2[p]))
    rnd2(a, S2[0], S2[1], 9)
    for p in range(2):
        a.v_add_f32(V(S2[p]), f32(1e-5), V(S2[p]))
    rnd2(a, S2[0], S2[1], 9)
    for p in range(2):
        a.v_sqrt_f32(V(S2[p]), V(S2[p]))
    rnd2(a, S2[0], S2[1], 9)
    for p in range(2):
        a.v_rcp_f32(V(S2[p]), V(S2[p]))
    a.v_lshrrev_b32(V(8), 2, V(2))
    a.s_lshl_b32(S(6), S(S_WAVE), 7)
    a.s_add_u32(S(6), S(6), RS_L)
    a.v_lshl_add_u32(V(9), V(2), 2, S(6))
    a.v_cmp_eq_u32("vcc", V(8), V(3))
    a.s_and_saveexec_b64(S(32, 2), "vcc")
    a.ds_write2_b32(V(9), V(S2[0]), V(S2[1]), mods="offset0:0 offset1:16")
    a.s_mov_b64("exec", S(32, 2))
    RB = [24, 28]
    a.s_lshl_b32(S(4), S(S_RB2), 1)
    a.s_lshr_b32(S(6), S(S_WAVE), 1)
    for lp in range(2):
        a.s_xor_b32(S(5), S(6), lp)
        a.s_add_u32(S(5), S(5), S(4))
        a.s_mul_i32(S(7), S(5), 110592)
        srd2(a, RB[lp], P_WS, H1_OFF, S(7), 110592)
    a.v_lshlrev_b32(V(8), 7, V(2))
    a.s_lshl_b32(S(47), S(60), 11)
    a.s_add_u32(S(47), S(47), FH1)
    a.s_add_u32(S(61), S(62), FH1B - FH1)
    a.s_mov_b32(S(63), int(os.environ.get("KA", "24")))
    skip = newlab("p1")
    a.s_cmp_lg_u32(S(S_WAVE), 0)
    a.s_cbranch_scc1(skip)
    save = a.nvm
    lp = newlab("p1l")
    a.label(lp)
    a.buffer_load_dword(V(12), V(8), S(R_SY, 4), S(47), mods="offen sc1")
    a.wait(vm=0)
    a.v_cmp_ne_u32("vcc", S(S_NONCE), V(12))
    a.s_cbranch_vccz(skip)
    a.s_sub_u32(S(63), S(63), 1)
    a.s_cbranch_scc0(lp)
    a.s_branch("L_SLOW1")
    a.label(skip)
    a.label("L_SLOW1X")
    a.nvm = save
    HR = 232
    a.s_lshl_b32(S(47), S(S_WAVE), 11)
    a.wait(lgkm=0)
    a.s_barrier()
    stamp(a, 11)
    NR = 12
    htk = {}

    def bbuf(u):
        return BB + 8 * (u % NR)

    def hload(n, part=None):
        u, hh = divmod(n, 2)
        s = u % 14
        if hh == 0 and part != 1:
            a.s_add_u32(S(48), S(47), s * 8192)
        if part == 0:
            return
        htk[n] = a.buffer_load_dwordx4(V(bbuf(u) + 4 * hh, 4), V(5), S(RB[1 if u < 14 else 0], 4), S(48), mods=f"offen offset:{1024*hh} {HLD}")

    def accr(lp, par, t):
        return ACC + ((2 * lp + par) * 5 + t) * 4

    nissued = 0
    for _ in range(12):
        hload(nissued); nissued += 1
    VRS, VW1_, VWP0, VWP1, VRD, VOUT = 4, 6, 7, 8, 9, 10
    a.s_bfe_u32(S(6), S(2), "0x10003")
    a.s_lshl_b32(S(6), S(6), 2)
    a.s_add_u32(S(6), S(6), S(S_WAVE))
    a.s_lshl_b32(S(6), S(6), 6)
    a.s_add_u32(S(6), S(6), RS_L)
    a.v_lshl_add_u32(V(VRS), V(2), 2, S(6))
    a.ds_read_b32(V(12), V(VRS))
    a.s_xor_b32(S(6), S(S_WAVE), 1)
    a.s_mul_i32(S(6), S(6), 20480)
    a.s_add_u32(S(6), S(6), 5120)
    a.v_add_u32(V(VW1_), S(6), V(5))
    for par, vw in ((0, VWP0), (1, VWP1)):
        a.s_and_b32(S(5), S(S_WAVE), 2)
        a.s_xor_b32(S(5), S(5), 2 + par)
        a.s_xor_b32(S(6), S(5), S(S_WAVE))
        a.s_mul_i32(S(5), S(5), 20480)
        a.s_mul_i32(S(6), S(6), 5120)
        a.s_add_u32(S(6), S(6), S(5))
        a.v_add_u32(V(vw), S(6), V(5))
    a.s_mul_i32(S(6), S(S_WAVE), 20480)
    a.v_add_u32(V(VRD), S(6), V(5))
    srd(a, 12, P_OUT, 0, 2048 * 640 * 2)
    a.v_mul_u32_u24(V(VOUT), 1280, V(2))
    a.v_lshl_add_u32(V(VOUT), V(3), 3, V(VOUT))
    a.s_lshl_b32(S(50), S(S_RB2), 2)
    a.s_add_u32(S(50), S(50), S(S_WAVE))
    a.s_mul_i32(S(50), S(50), 16 * 1280)
    a.s_mul_i32(S(51), S(S_CT2), 160)
    a.s_add_u32(S(50), S(50), S(51))
    a.wvm(htk[1])
    a.v_swap_b32(V(bbuf(0) + 2), V(bbuf(0) + 4))
    a.v_swap_b32(V(bbuf(0) + 3), V(bbuf(0) + 5))
    UF = int(os.environ.get("UF", "24"))
    HG = eval(os.environ.get("HG", "(0, 3)"))
    R23 = accr(1, 0, 0)
    fill = []
    for u in range(UF):
        lp, s = (1, u) if u < 14 else (0, u - 14)
        b, bn = bbuf(u), bbuf(u + 1)
        if os.environ.get("G1ST", "0") == "1" and u in (0, 10, 20):
            stamp(a, {0: 5, 10: 6, 20: 7}[u])
        if u == 15:
            fill += [("w", accr(1, par, t), (VWP0, VWP1)[par], 1024 * t) for par in range(2) for t in range(5)]
        if u == 19:
            assert not fill
            a.wait(lgkm=0)
            a.s_barrier()
            fill += [("r", R23 + 20 * x + 4 * t, (x + 2) * 5120 + t * 1024) for x in range(2) for t in range(5)]
        if u == 21:
            a.wds(t_r23)
            R3 = R23 + 20
            fill += [("v", "v_add_f32", (V(R23 + i), V(R23 + i), V(R3 + i))) for i in range(20)]
            for i in range(10):
                fill.append(("v", "v_lshlrev_b32", (V(R3 + 2 * i), 16, V(HR + i))))
                fill.append(("v", "v_and_b32", (V(R3 + 2 * i + 1), "0xffff0000", V(HR + i))))
            fill += [("v", "v_fma_f32", (V(R23 + i), V(R23 + i), V(12), V(R3 + i))) for i in range(20)]
        g = 0
        for t in range(5):
            for par in range(2):
                acc = accr(lp, par, t)
                a.v_mfma_f32_16x16x32_bf16(V(acc, 4), w2dst(s, t), V(b + 4 * par, 4), V(acc, 4) if s else 0)
                lim = min(56, 2 * (u + NR))
                if g in HG and nissued < lim:
                    hload(nissued); nissued += 1
                elif g == 8 and queue:
                    f, nn = queue.pop(0); f(nn)
                elif g == 4:
                    a.wvm(max(htk[2 * u + 3], wtk[min(69, 5 * s + 9)] if u < 13 else 0))
                elif g in (5, 6):
                    a.v_swap_b32(V(bn + g - 3), V(bn + g - 1))
                elif fill:
                    it = fill.pop(0)
                    if it[0] == "w":
                        a.ds_write_b128(V(it[2]), V(it[1], 4), mods=f"offset:{it[3]}")
                    elif it[0] == "r":
                        t_r23 = a.ds_read_b128(V(it[1], 4), V(VRD), mods=f"offset:{it[2]}")
                    else:
                        a.I(it[1], *it[2])
                        if fill:
                            it = fill.pop(0)
                            a.I(it[1], *it[2])
                g += 1
    assert nissued == 56 and not queue
    work0 = [(it[1], it[2]) for it in fill]

    def wbl2():
        nowb = newlab("nowb")
        a.s_lshr_b32(S(6), S(2), 3)
        a.s_add_u32(S(6), S(6), S(S_WAVE))
        a.s_cmp_lg_u32(S(6), 0)
        a.s_cbranch_scc1(nowb)
        a.I("buffer_wbl2", mods="sc1")
        a.label(nowb)

    WB = os.environ.get("WBL2", "0")
    odd, fin = newlab("odd"), newlab("fin")
    a.s_bitcmp1_b32(S(S_WAVE), 0)
    a.s_cbranch_scc1(odd)
    HU = R23
    R1 = bbuf(16)
    nds0, nvm1 = a.nds, a.nvm
    for par in range(2):
        a.nds, a.nvm = nds0, nvm1
        work = list(work0)
        for s in range(UF - 14, 14):
            u = 14 + s
            for t in range(5):
                acc = accr(0, par ^ 1, t)
                a.v_mfma_f32_16x16x32_bf16(V(acc, 4), w2dst(s, t), V(bbuf(u) + 4 * (par ^ 1), 4), V(acc, 4))
                if s < 13 and t == 0:
                    a.wvm(htk[2 * u + 3])
                if s < 13 and t in (1, 2):
                    a.v_swap_b32(V(bbuf(u + 1) + t + 1), V(bbuf(u + 1) + t + 3))
                else:
                    for _ in range(2):
                        if work:
                            op, args = work.pop(0); a.I(op, *args)
        if par == 0:
            skip = newlab("fb")
            a.s_cmp_lg_u32(S(S_WAVE), 0)
            a.s_cbranch_scc1(skip)
            a.s_mov_b64("exec", 1)
            a.buffer_store_dword(V(14), V(15), S(R_SY, 4), S(61), mods="offen sc1")
            a.s_mov_b64("exec", -1)
            a.label(skip)
        n = 0
        NB_ = 5 * (28 - UF) - 6
        for s in range(UF - 14, 14):
            u = 14 + s
            for t in range(5):
                acc = accr(0, par, t)
                a.v_mfma_f32_16x16x32_bf16(V(acc, 4), w2dst(s, t), V(bbuf(u) + 4 * par, 4), V(acc, 4))
                if 1 <= n <= 5:
                    tt_ = n - 1
                    a.ds_write_b128(V(VW1_), V(accr(0, par ^ 1, tt_), 4), mods=f"offset:{1024*tt_}")
                elif n == NB_:
                    a.wait(lgkm=0)
                    a.s_barrier()
                elif n > NB_:
                    rt = a.ds_read_b128(V(R1 + 4 * (n - NB_ - 1), 4), V(VRD), mods=f"offset:{5120 + (n-NB_-1)*1024}")
                else:
                    for _ in range(2):
                        if work:
                            op, args = work.pop(0); a.I(op, *args)
                n += 1
        while work:
            op, args = work.pop(0); a.I(op, *args)
        if os.environ.get("E0ST", "0") != "1":
            stamp(a, 12)
        if WB == "3" and par == 0:
            wbl2()
        a.wds(rt)
        for t in range(5):
            for hh in range(2):
                a.v_pk_fma_f32(V(HU + 4 * t + 2 * hh, 2), V(R1 + 4 * t + 2 * hh, 2), V(12, 2), V(HU + 4 * t + 2 * hh, 2), mods="op_sel_hi:[1,0,1]")
        for t in range(5):
            acc = accr(0, par, t)
            for hh in range(2):
                a.v_pk_fma_f32(V(acc + 2 * hh, 2), V(acc + 2 * hh, 2), V(12, 2), V(HU + 4 * t + 2 * hh, 2), mods="op_sel_hi:[1,0,1]")
            for hh in range(2):
                a.v_cvt_pk_bf16_f32(V(R1 + 4 * t + hh), V(acc + 2 * hh), V(acc + 2 * hh + 1))
            a.buffer_store_dwordx2(V(R1 + 4 * t, 2), V(VOUT), S(12, 4), S(50), mods=f"offen offset:{32*t} " + os.environ.get("OUTF", ""))
        if WB == "4" and par == 0:
            wbl2()
        if par == 0:
            a.s_branch(fin)
            a.label(odd)
    a.label(fin)


def slow_wait1(a):
    a.label("L_SLOW1")
    a.s_mov_b64("exec", 1)
    a.buffer_store_dword(V(14), V(15), S(R_SY, 4), S(61), mods="offen sc1")
    a.s_mov_b64("exec", -1)
    a.v_and_b32(V(9), 1, V(3))
    a.v_mul_u32_u24(V(9), FH1B - FH1, V(9))
    a.v_add_u32(V(8), V(8), V(9))
    lp = newlab("s1l")
    a.label(lp)
    a.buffer_load_dword(V(12), V(8), S(R_SY, 4), S(47), mods="offen sc1")
    a.wait(vm=0)
    a.v_cmp_ne_u32("vcc", S(S_NONCE), V(12))
    a.s_lshr_b32(S(6), "vcc_lo", 16)
    a.s_and_b32(S(6), "vcc_lo", S(6))
    a.s_mov_b32(S(7), 0)
    a.s_mov_b64("vcc", S(6, 2))
    spin_branch(a, lp)
    a.s_branch("L_SLOW1X")


def cs_wait(a):
    a.label("L_CSW")
    a.buffer_load_dwordx4(V(84, 4), V(5), S(R_SY, 4), S(50), mods="offen sc1")
    a.wait(vm=0)
    a.v_xor_b32(V(85), S(S_NONCE), V(85))
    a.v_xor_b32(V(87), S(S_NONCE), V(87))
    a.v_or_b32(V(85), V(85), V(87))
    a.v_cmp_ne_u32("vcc", 0, V(85))
    spin_branch(a, "L_CSW")
    a.s_branch("L_CSOK")


def gemm1_retry(a):
    a.label("L_G1RETRY")
    a.s_sub_u32(S(63), S(63), 1)
    a.s_cbranch_scc1("L_G1OK")
    if STAMPS and os.environ.get("DBGT", "0") != "1":
        a.v_mov_b32(V(80), 4)
        a.v_mov_b32(V(81), 1)
        a.s_mov_b64("exec", 1)
        a.buffer_atomic_add(V(81), V(80), S(R_DBG, 4), 0, mods="offen sc1")
        a.s_mov_b64("exec", -1)
    a.wait(vm=0)
    a.s_branch("L_G1")


NSTAMP = 13


def gen():
    a = Asm()
    a.s_load_dwordx16(S(16, 16), S(0, 2), 0)
    a.s_load_dwordx8(S(32, 8), S(0, 2), 64)
    a.s_load_dwordx4(S(40, 4), S(0, 2), 96)
    a.s_load_dwordx2(S(44, 2), S(0, 2), 112)
    a.s_memrealtime(S(4, 2))
    if STAMPS:
        for i in range(1, NSTAMP):
            a.s_mov_b32(S(76 + 2 * i), 0)
    stamp(a, 0)
    a.s_cmp_ge_u32(S(2), 256)
    a.s_cbranch_scc1("L_END")
    a.v_lshrrev_b32(V(1), 6, V(0))
    a.v_readfirstlane_b32(S(S_WAVE), V(1))
    a.v_and_b32(V(1), 63, V(0))

    def common_setup():
        a.s_mov_b32(S(S_SPIN), SPIN_MAX)
        a.s_getreg_b32(S(S_XCC), "hwreg(HW_REG_XCC_ID, 0, 4)")
        srd(a, R_DBG, P_DBG, 0, 256)
        srd(a, R_SY, P_WS, SY_OFF, SY_SZ)

    a.s_cmp_lt_u32(S(2), 160)
    a.s_cbranch_scc1("L_CONV")
    a.s_cmp_eq_u32(S(S_WAVE), 3)
    a.s_cbranch_scc1("L_AUX3")
    xt = aux_first(a)
    nvm_aux = a.nvm
    a.s_branch("L_AUX")
    a.label("L_AUX3")
    a.v_mov_b32(V(14), 0)
    a.v_mov_b32(V(13), 0)
    a.wait(lgkm=0)
    srd(a, R_DBG, P_DBG, 0, 256)
    a.s_or_b32(S(4), S(4), 1)
    a.v_mov_b32(V(12), S(4))
    a.s_mov_b64("exec", 1)
    a.buffer_atomic_cmpswap(V(12, 2), V(14), S(R_DBG, 4), 0, mods="offen sc0 sc1")
    a.s_mov_b64("exec", -1)
    if SYT:
        srd(a, R_SY, P_WS, SY_OFF, SY_SZ)
        a.s_sub_u32(S(6), S(2), 160)
        a.s_lshl_b32(S(6), S(6), 13)
        a.v_lshlrev_b32(V(2), 7, V(1))
        a.buffer_load_dword(V(245), V(2), S(R_SY, 4), S(6), mods="offen sc1")
    code_prefetch(a)
    a.s_branch("L_AUX3B")
    a.label("L_CONV")
    a.nvm = 0
    a.wait(lgkm=0)
    if os.environ.get("E0ST", "0") == "1":
        stamp(a, 12)
    ktk = conv_first(a)
    common_setup()
    conv_role(a, ktk)
    a.s_branch("L_COMMON")
    if POISON:
        gemm1_retry(a)
    cs_wait(a)
    slow_wait1(a)
    a.label("L_AUX3B")
    a.nvm = 1 + NCODE + (1 if SYT else 0)
    common_setup()
    aux_role(a, None)
    a.s_branch("L_AUXJ")
    a.label("L_AUX")
    a.nvm = nvm_aux
    common_setup()
    aux_role(a, xt)
    a.label("L_AUXJ")
    aux_tail(a)
    a.label("L_COMMON")
    gemms(a)
    if STAMPS:
        a.wait(vm=0)
        a.s_memrealtime(S(4, 2))
        a.wait(lgkm=0)
        srd(a, 8, P_WS, ST_OFF, 0x100000)
        a.s_lshl_b32(S(6), S(2), 2)
        a.s_add_u32(S(6), S(6), S(S_WAVE))
        a.s_lshl_b32(S(6), S(6), 6)
        for i in range(NSTAMP):
            a.v_mov_b32(V(8 + i), S(76 + 2 * i))
        a.v_mov_b32(V(8 + NSTAMP), S(4))
        a.v_mov_b32(V(2), 0)
        a.s_mov_b64("exec", 1)
        for q in range(4):
            a.buffer_store_dwordx4(V(8 + 4 * q, 4), V(2), S(8, 4), S(6), mods=f"offen offset:{16*q}")
        if os.environ.get("DBGT", "0") == "1":
            a.v_not_b32(V(30), V(8))
            a.buffer_atomic_umax(V(30), V(2), S(R_DBG, 4), 0, mods="offen offset:4 sc1")
            for i in range(NSTAMP + 1):
                a.buffer_atomic_umax(V(8 + i), V(2), S(R_DBG, 4), 0, mods=f"offen offset:{8+4*i} sc1")
    if os.environ.get("FIXT", "0") != "0":
        a.label("L_FIX")
        a.s_memrealtime(S(4, 2))
        a.wait(lgkm=0)
        a.s_sub_u32(S(4), S(4), S(S_NONCE))
        a.s_cmp_lt_u32(S(4), int(os.environ["FIXT"]))
        a.s_cbranch_scc1("L_FIX")
    a.label("L_END")
    a.s_endpgm()
    return kernel_text(NAME + "_kernel", a, 256, nagpr=256, nsgpr=102)


def main(path):
    ref = open(f"cdna_kernels/{NAME}.s.ref").read().splitlines()
    head = [l for l in ref if l.startswith(";") and "@launch" not in l]
    out = "\n".join(head) + "\n"
    out += f"; @launch grid=(256,1,1) block=(256,1,1) lds={LDS_SZ}\n"
    out += '.amdgcn_target "amdgcn-amd-amdhsa--gfx950"\n'
    out += gen()
    open(path, "w").write(out)


if __name__ == "__main__":
    main(sys.argv[1] if len(sys.argv) > 1 else f"cdna_kernels/{NAME}.s")
```

```python
import sys, struct, os
sys.path.insert(0, "dev")
from asmlib import *

NAME = "sequential_preLN__ssm_conv_s4__dense_activation_relu__prompt"
STAMPS = os.environ.get("STAMPS", "0") == "1"

SY_OFF, SY_SZ = 0x0, 0x28000
FRP, FH, FH1 = 0x4000, 0x8000, 0x10000
FH1B = 0x20000
FCS = 0x18000
W2P_OFF, W2P_SZ = 0x100000, 8 * 54 * 5 * 1024
H4_OFF, H4_SZ = 0x700000, 64 * 40960
H1_OFF, H1_SZ = 0xA00000, 64 * 110592
ST_OFF = 0x2000000

P_U, P_ARE, P_AIM, P_BRE, P_BIM, P_CRE, P_CIM, P_LDT = 16, 18, 20, 22, 24, 26, 28, 30
P_DSK, P_BX, P_W1, P_W2 = 32, 34, 36, 38
P_OUT, P_DBG, P_WS = 40, 42, 44
S_WAVE = 3
R_SY, R_DBG = 64, 68
S_NONCE, S_SPIN, S_M0W, S_D2 = 72, 73, 74, 75
R_W1 = 52
VPA = 231
DUMMY_L = 0x100000
S_XCC = 0
S_MIS = 18
MODE_L = 147456
RS_L = 151552
VW1 = 248
SPIN_MAX = 400000

KS_SZ = 23296
WT_L, WT_P = 93184, 8256
UB_L = 126208
CSP_L, CS_L = 144640, 148480
XH_L, XH_P = 147200, 4160
LDS_SZ = 163840
Q_EARLY = 21
NCODE = 5
NCW = int(os.environ.get("NCW", "0"))
SIW = int(os.environ.get("SIW", "4"))
CWN = eval(os.environ.get("CWN", "(26, 28, 32, 34)"))
POIN = int(os.environ.get("POIN", "35"))
H1P = int(os.environ.get("H1P", "0"))
PSLEEP = int(os.environ.get("PSLEEP", "0"))
SYT = os.environ.get("SYT", "1") == "1"
H1WN = eval(os.environ.get("H1WN", "[(i,28) for i in range(7)]"))
H1W = os.environ.get("H1W", "0") == "1"
DMAN = eval(os.environ.get("DMAN", "(6, 18, 30)"))
XTOUCH = os.environ.get("XTOUCH", "0") == "1"
W2Q = eval(os.environ.get("W2Q", "[]"))
STEARLY = os.environ.get("STEARLY", "0") == "1"
NODMA = os.environ.get("NODMA", "0") == "1"
POISON = os.environ.get("POISON", "1") == "1"
GATHER = eval(os.environ.get("GATHER", "{-1:[0,1,2,3,4], 6:[5], 10:[6], 14:[7]}"))
HLD = os.environ.get("HLD", "sc1")
LOG2E = 1.4426950408889634


def f32(x):
    return "0x%08x" % struct.unpack("<I", struct.pack("<f", x))[0]


def stamp(a, i):
    if (os.environ.get("CST", "0") == "1" or os.environ.get("KST", "0") == "1") and getattr(a, "in_gemm", False) and i in (9, 10, 11, 12):
        return
    if STAMPS:
        if os.environ.get("STAMPCLK", "0") == "1":
            a.s_memtime(S(76 + 2 * i, 2))
        else:
            a.s_memrealtime(S(76 + 2 * i, 2))


def srd(a, d, p, off, size):
    if off == 0:
        a.s_mov_b32(S(d), S(p))
        a.s_mov_b32(S(d + 1), S(p + 1))
    else:
        a.s_add_u32(S(d), S(p), off if isinstance(off, str) else hex(off))
        a.s_addc_u32(S(d + 1), S(p + 1), 0)
    a.s_mov_b32(S(d + 2), hex(size))
    a.s_mov_b32(S(d + 3), "0x20000")


def srd2(a, d, p, off, soff, size):
    a.s_add_u32(S(d), S(p), soff)
    a.s_addc_u32(S(d + 1), S(p + 1), 0)
    a.s_add_u32(S(d), S(d), hex(off))
    a.s_addc_u32(S(d + 1), S(d + 1), 0)
    a.s_mov_b32(S(d + 2), hex(size))
    a.s_mov_b32(S(d + 3), "0x20000")


def cmuln(a, dsts, xs, ws, tmps):
    n = len(dsts)
    for i in range(n):
        a.v_pk_mul_f32(V(tmps[i], 2), V(xs[i], 2), V(ws[i], 2), mods="op_sel:[0,0] op_sel_hi:[1,0]")
    for i in range(n):
        a.v_pk_fma_f32(V(dsts[i], 2), V(xs[i], 2), V(ws[i], 2), V(tmps[i], 2), mods="op_sel:[1,1,0] op_sel_hi:[0,1,1] neg_lo:[1,0,0]")


def rnd2(a, x0, x1, t):
    a.v_cvt_pk_bf16_f32(V(t), V(x0), V(x1))
    a.v_lshlrev_b32(V(x0), 16, V(t))
    a.v_and_b32(V(x1), "0xffff0000", V(t))


def ln_stats2(a, s1, s2, rs, nm, t0, t1, n):
    inv = f32(1.0 / n)
    for i in range(2):
        a.v_mul_f32(V(s1[i]), inv, V(s1[i]))
    for i in range(2):
        a.v_mul_f32(V(s2[i]), inv, V(s2[i]))
    for i in range(2):
        a.v_fma_f32(V(s2[i]), "-" + V(s1[i]), V(s1[i]), V(s2[i]))
    for i in range(2):
        a.v_max_f32(V(s2[i]), 0, V(s2[i]))
    rnd2(a, s2[0], s2[1], t0)
    rnd2(a, s1[0], s1[1], t1)
    for i in range(2):
        a.v_add_f32(V(s2[i]), f32(1e-5), V(s2[i]))
    rnd2(a, s2[0], s2[1], t0)
    for i in range(2):
        a.v_sqrt_f32(V(s2[i]), V(s2[i]))
    rnd2(a, s2[0], s2[1], t0)
    for i in range(2):
        a.v_rcp_f32(V(rs[i]), V(s2[i]))
    for i in range(2):
        a.v_mul_f32(V(nm[i]), "-" + V(s1[i]), V(rs[i]))


_lab = [0]


def newlab(p):
    _lab[0] += 1
    return f"L{p}_{_lab[0]}"


def spin_branch(a, loop, done_fallthrough=True):
    out = newlab("to")
    a.s_sub_u32(S(S_SPIN), S(S_SPIN), 1)
    a.s_cmp_lt_i32(S(S_SPIN), 0)
    a.s_cbranch_scc1(out)
    a.s_cbranch_vccnz(loop)
    a.label(out)


def flag_loads(a, voff, base, count, dst):
    n = (count + 63) // 64
    t = None
    for q in range(n):
        t = a.buffer_load_dwordx2(V(dst + 2 * q, 2), V(voff + q), S(R_SY, 4), base, mods="offen sc1")
    return t


def xcc_mismatch(a, voff, count, dst, sacc):
    n = (count + 63) // 64
    a.s_and_b32(S(6), S(2), 7)
    for q in range(n):
        a.v_bfe_u32(V(dst + 2 * q), V(voff + q), 7, 3)
        a.v_cmp_eq_u32(S(48, 2), S(6), V(dst + 2 * q))
        a.v_cmp_ne_u32("vcc", S(S_XCC), V(dst + 2 * q + 1))
        a.s_and_b64(S(48, 2), S(48, 2), "vcc")
        a.s_or_b64(S(sacc, 2), S(sacc, 2), S(48, 2))


def flag_addr(a, voff, count, vlane):
    n = (count + 63) // 64
    for q in range(n):
        if q:
            a.v_add_u32(V(voff + q), 64 * q, V(vlane))
            a.v_min_u32(V(voff + q), count - 1, V(voff + q))
        else:
            a.v_min_u32(V(voff), count - 1, V(vlane))
        a.v_lshlrev_b32(V(voff + q), 7, V(voff + q))


def flag_check(a, dst, count):
    n = (count + 63) // 64
    for q in range(n):
        a.v_xor_b32(V(dst + 2 * q), S(S_NONCE), V(dst + 2 * q))
    for q in range(1, n):
        a.v_or_b32(V(dst), V(dst), V(dst + 2 * q))
    a.v_cmp_ne_u32("vcc", 0, V(dst))


def poll_flags(a, voff, base, count, dst, sleep=0):
    n = (count + 63) // 64
    lp, out = newlab("poll"), newlab("pollx")
    for q in range(n):
        a.s_mov_b64(S(32 + 2 * q, 2), -1)
    a.label(lp)
    for q in range(n):
        sk = newlab("pq")
        a.s_mov_b64("exec", S(32 + 2 * q, 2))
        if n > 1:
            a.s_cbranch_execz(sk)
        a.buffer_load_dwordx2(V(dst + 2 * q, 2), V(voff + q), S(R_SY, 4), base, mods="offen sc1")
        a.label(sk)
    a.s_mov_b64("exec", -1)
    a.wait(vm=0)
    for q in range(n):
        a.v_cmp_ne_u32(S(32 + 2 * q, 2), S(S_NONCE), V(dst + 2 * q))
    if n == 1:
        a.s_mov_b64("vcc", S(32, 2))
    else:
        a.s_or_b64("vcc", S(32, 2), S(34, 2))
        if n == 3:
            a.s_or_b64("vcc", "vcc", S(36, 2))
    if PSLEEP:
        a.s_cbranch_vccz(out)
        a.s_sleep(PSLEEP)
    spin_branch(a, lp)
    a.label(out)


def set_flag(a, soff, vt, sc="sc1"):
    skip = newlab("nf")
    a.s_cmp_lg_u32(S(S_WAVE), 0)
    a.s_cbranch_scc1(skip)
    a.v_mov_b32(V(vt + 2), 0)
    a.v_mov_b32(V(vt), S(S_NONCE))
    a.v_mov_b32(V(vt + 1), S(S_XCC))
    a.s_mov_b64("exec", 1)
    a.buffer_store_dwordx2(V(vt, 2), V(vt + 2), S(R_SY, 4), soff, mods=f"offen {sc}")
    a.s_mov_b64("exec", -1)
    a.label(skip)


def kgen_loads(a, s_d):
    VL = 1
    PR = 8
    a.s_lshl_b32(S(5), S(s_d), 8)
    a.v_lshl_add_u32(V(2), V(VL), 2, S(5))
    a.s_lshl_b32(S(5), S(s_d), 1)
    a.v_mov_b32(V(3), S(5))
    t_ldt = a.global_load_ushort(V(PR + 6), V(3), S(P_LDT, 2))
    for i, p in enumerate((P_ARE, P_AIM, P_BRE, P_BIM, P_CRE, P_CIM)):
        t_par = a.global_load_dword(V(PR + i), V(2), S(p, 2))
    t_dsk = a.global_load_ushort(V(PR + 7), V(3), S(P_DSK, 2))
    return t_ldt, t_dsk


def kgen(a, tks, s_lds, s_wt, hook):
    VL = 1
    PR = 8
    t_ldt, t_dsk = tks
    hook(-1)
    VW, VRA, VRB = 4, 5, 6
    a.v_lshl_add_u32(V(VW), V(VL), 3, S(s_lds))
    a.v_and_b32(V(16), 15, V(VL))
    a.v_lshrrev_b32(V(17), 4, V(VL))
    a.v_and_b32(V(18), 1, V(17))
    a.v_lshlrev_b32(V(18), 8, V(18))
    a.v_lshrrev_b32(V(19), 1, V(17))
    a.v_lshl_add_u32(V(18), V(19), 7, V(18))
    a.v_add_u32(V(18), S(s_lds), V(18))
    a.v_mul_u32_u24(V(19), 528, V(16))
    a.v_add_u32(V(VRA), V(18), V(19))
    a.v_min_u32(V(19), 8, V(16))
    a.v_mul_u32_u24(V(19), 528, V(19))
    a.v_add_u32(V(VRB), V(18), V(19))
    a.s_mov_b32(S(50), f32(LOG2E))
    a.s_mov_b32(S(51), f32(LOG2E - struct.unpack("<f", struct.pack("<f", LOG2E))[0]))
    a.s_mov_b32(S(52), f32(16.0))
    a.s_mov_b32(S(53), f32(16.0))
    a.s_mov_b32(S(54), f32(512.0))
    a.s_mov_b32(S(55), f32(512.0))
    TA1, TA2, TA3, TB3, TA4, TB4 = 224, 225, 226, 227, 228, 229
    TABO = 0
    a.s_add_u32(S(56), S(s_lds), TABO + 16)
    a.v_lshlrev_b32(V(TA1), 6, V(16))
    a.v_lshl_add_u32(V(TA1), V(17), 4, V(TA1))
    a.v_lshrrev_b32(V(TA2), 1, V(TA1))
    a.v_add_u32(V(TA1), S(56), V(TA1))
    a.v_add_u32(V(TA2), S(56), V(TA2))
    a.v_add_u32(V(TA2), 1024, V(TA2))
    a.v_cmp_eq_u32("vcc", 0, V(17))
    a.v_mov_b32(V(30), 8)
    a.v_mov_b32(V(31), 256)
    a.v_cndmask_b32(V(30), V(30), 16, "vcc")
    a.v_cndmask_b32(V(31), V(31), 8, "vcc")
    a.v_lshlrev_b32(V(TA3), 9, V(17))
    a.v_mad_u32_u24(V(TA3), V(30), V(16), V(TA3))
    a.v_add_u32(V(TA3), S(56), V(TA3))
    a.v_add_u32(V(TB3), V(TA3), V(31))
    a.v_lshl_add_u32(V(TA4), V(30), 4, V(TA3))
    a.v_add_u32(V(TB4), V(TA4), V(31))
    DT = 20
    a.wvm(t_ldt)
    a.v_lshlrev_b32(V(21), 16, V(PR + 6))
    a.v_mul_f32(V(22), S(50), V(21))
    a.v_fma_f32(V(23), V(21), S(50), "-" + V(22))
    a.v_fma_f32(V(23), V(21), S(51), V(23))
    a.v_exp_f32(V(22), V(22))
    a.v_mul_f32(V(23), f32(0.6931471805599453), V(23))
    a.v_fma_f32(V(22), V(22), V(23), V(22))
    a.v_cvt_pk_bf16_f32(V(22), V(22), V(22))
    a.v_lshlrev_b32(V(DT), 16, V(22))
    a.v_mul_f32(V(22), S(50), V(DT))
    a.v_mul_f32(V(23), "0.15915494", V(DT))
    Z = [24, 26]; B = [28, 30]; C = [32, 34]
    a.wvm(t_dsk)
    stamp(a, 1)
    hook(100)
    for base, pi in ((Z, 0), (B, 2), (C, 4)):
        for comp in range(2):
            a.v_lshlrev_b32(V(base[0] + comp), 16, V(PR + pi + comp))
            a.v_and_b32(V(base[1] + comp), "0xffff0000", V(PR + pi + comp))
    for s in range(2):
        a.v_pk_mul_f32(V(Z[s], 2), V(Z[s], 2), V(22, 2))
    for s in range(2):
        a.v_pk_mul_f32(V(B[s], 2), V(B[s], 2), V(DT, 2), mods="op_sel_hi:[1,0]")
    T = [36, 38]
    T2 = [216, 218]
    XC = [40, 42]
    W1 = [44, 46]; W16 = [48, 50]; W512 = [52, 54]
    ARG = [56, 58, 60, 62, 64, 66]
    EX = [68, 70, 72, 74, 76, 78]
    dsts = [W1[0], W1[1], W16[0], W16[1], W512[0], W512[1]]
    for s in range(2):
        a.v_pk_mul_f32(V(ARG[2 + s], 2), V(Z[s], 2), S(52, 2))
        a.v_pk_mul_f32(V(ARG[4 + s], 2), V(Z[s], 2), S(54, 2))
    cmuln(a, XC, C, B, T)
    srcs = [Z[0], Z[1], ARG[2], ARG[3], ARG[4], ARG[5]]
    for i in range(6):
        a.v_fract_f32(V(ARG[i] + 1), V(srcs[i] + 1))
    for s in range(2):
        a.v_xor_b32(V(XC[s] + 1), "0x80000000", V(XC[s] + 1))
    for i in range(6):
        a.v_exp_f32(V(EX[i]), V(srcs[i]))
        a.v_cos_f32(V(dsts[i]), V(ARG[i] + 1))
        a.v_sin_f32(V(dsts[i] + 1), V(ARG[i] + 1))
    for i in range(6):
        neg = " neg_hi:[1,0]" if i in (2, 3) else ""
        a.v_pk_mul_f32(V(dsts[i], 2), V(dsts[i], 2), V(EX[i], 2), mods="op_sel_hi:[1,0]" + neg)
    PK = [80, 82, 84, 86]
    npk = [0]

    def put_rows(rows):
        ps = []
        for row, r in rows:
            p = PK[npk[0] % 4]
            npk[0] += 1
            ps.append(p)
            a.v_cvt_pk_bf16_f32(V(p), V(r[0]), V(r[0] + 1))
            a.v_cvt_pk_bf16_f32(V(p + 1), V(r[1]), V(r[1] + 1))
        for (row, r), p in zip(rows, ps):
            a.ds_write_b64(V(VW), V(p, 2), mods=f"offset:{row*528}")

    KST = os.environ.get("KST", "0") == "1"
    if KST:
        stamp(a, 9)
    XR0 = 25
    a.v_mov_b32(V(220), "0x3f80")
    a.v_mov_b32(V(221), "0x3f80")
    a.ds_write_b64(V(VW), V(220, 2), mods="offset:0")
    E4 = [56, 58]; E8 = [60, 62]; E12 = [64, 66]; CUR = [68, 70]
    E1024 = [72, 74]; E1536 = [76, 78]
    yprog = [(1, W1, None, None)]
    cur = W1
    for j in range(2, 16):
        dst = {4: E4, 8: E8, 12: E12}.get(j, CUR)
        yprog.append((j, dst, cur, W1))
        cur = dst
    yprog += [(16, W512, None, None), (17, CUR, W512, E4), (18, CUR, W512, E8), (19, CUR, W512, E12),
              (20, E1024, W512, W512), (21, CUR, E1024, E8), (22, E1536, E1024, W512), (23, CUR, E1536, E8), (24, CUR, E1024, E1024)]
    YA, YB, XF, XF2 = 88, 120, 152, 184
    ACC = 8
    reads = []
    for i in range(32):
        ds_, xs_, ws_, ts_, rows = [], [], [], [], []
        if i:
            ds_ += XC; xs_ += XC; ws_ += W16; ts_ += T
        rows.append((XR0 + i if i < 16 else i - 16, XC))
        if yprog:
            row, dst, x, w = yprog.pop(0)
            if x is not None:
                ds_ += dst; xs_ += x; ws_ += w; ts_ += T2
            rows.append((row, dst))
        cmuln(a, ds_, xs_, ws_, ts_)
        put_rows(rows)
        hook(i)
        if i == 14:
            for m in range(4):
                a.ds_read_b128(V(YA + 4 * m, 4), V(VRA), mods=f"offset:{16*m}")
        if i == 15:
            for m in range(4, 8):
                a.ds_read_b128(V(YA + 4 * m, 4), V(VRA), mods=f"offset:{16*m}")
        if i == 16:
            reads += [(XF + 4 * m, VRA, XR0 * 528 + 16 * m) for m in range(8)]
        if i == 23:
            reads += [(YB + 4 * m, VRB, 16 * 528 + 16 * m) for m in range(8)]
        for _ in range(2):
            if reads:
                d, ad, off = reads.pop(0)
                a.ds_read_b128(V(d, 4), V(ad), mods=f"offset:{off}")
    assert not reads and not yprog
    if KST:
        stamp(a, 10)
    t_pre = a.nds
    tk = []
    for m in range(8):
        tk.append(a.ds_read_b128(V(XF2 + 4 * m, 4), V(VRA), mods=f"offset:{16*m}"))
    hook(200)
    a.v_lshlrev_b32(V(32), 16, V(PR + 7))
    a.v_cmp_eq_u32("vcc", 0, V(VL))
    a.v_cndmask_b32(V(32), 0, V(32), "vcc")
    a.v_mov_b32(V(33), 0)
    a.v_mov_b32(V(34), S(56))
    a.wds(t_pre)
    for m in range(8):
        a.v_mfma_f32_16x16x32_bf16(V(ACC, 4), V(YA + 4 * m, 4), V(XF + 4 * m, 4), V(ACC, 4) if m else 0)
        a.v_mfma_f32_16x16x32_bf16(V(ACC + 8, 4), V(YB + 4 * m, 4), V(XF + 4 * m, 4), V(ACC + 8, 4) if m else 0)
    a.wait(lgkm=0)
    for m in range(8):
        a.v_mfma_f32_16x16x32_bf16(V(ACC + 4, 4), V(YA + 4 * m, 4), V(XF2 + 4 * m, 4), V(ACC + 4, 4) if m else 0)
        a.v_mfma_f32_16x16x32_bf16(V(ACC + 12, 4), V(YB + 4 * m, 4), V(XF2 + 4 * m, 4), V(ACC + 12, 4) if m else 0)
        if m == 4:
            a.v_add_f32(V(ACC), V(ACC), V(32))
            a.v_subrev_u32(V(38), 4, V(34))
            a.ds_write_b32(V(38), V(33))
            a.ds_write_b128(V(TA1), V(ACC, 4))
            a.ds_write_b64(V(TA3), V(ACC + 8, 2), mods=f"offset:{384*4}")
            a.ds_write_b64(V(TB3), V(ACC + 10, 2), mods=f"offset:{384*4}")
    if KST:
        stamp(a, 11)
    a.v_lshl_add_u32(V(35), V(VL), 4, S(56))
    a.v_lshl_add_u32(V(36), V(VL), 3, S(56))
    a.v_add_u32(V(37), 2048, V(36))
    a.v_subrev_u32(V(38), 4, V(35))
    a.v_lshl_add_u32(V(60), V(VL), 4, S(s_wt))
    a.v_lshl_add_u32(V(61), V(VL), 5, S(s_wt))
    a.v_lshl_add_u32(V(62), V(VL), 6, S(s_wt))
    R0, R0P, R1, R1P, R2, R3 = 40, 44, 48, 45, 52, 56
    a.ds_read_b128(V(R0, 4), V(35))
    t0 = a.ds_read_b32(V(R0P), V(38))
    a.ds_write2_b32(V(TA2), V(ACC + 4), V(ACC + 6), mods="offset0:0 offset1:1")
    a.ds_write_b64(V(TA4), V(ACC + 12, 2), mods=f"offset:{384*4}")
    a.ds_write_b64(V(TB4), V(ACC + 14, 2), mods=f"offset:{384*4}")
    a.ds_read2_b64(V(R1, 4), V(36), mods="offset0:128 offset1:129")
    t1 = a.ds_read_b32(V(R1P), V(34), mods=f"offset:{255*4}")
    t2 = a.ds_read2_b64(V(R2, 4), V(36), mods="offset0:192 offset1:193")
    t3 = a.ds_read2_b64(V(R3, 4), V(37), mods="offset0:0 offset1:1")

    def emit_out(region, q, vreg):
        voff = (60, 60, 61, 62)[region]
        imm = 64 + (0, 1024, 2048, 4096)[region] + 16 * q
        a.ds_write_b128(V(voff), V(vreg, 4), mods=f"offset:{imm}")

    OUT = 88
    cv = lambda d, x, y: a.v_cvt_pk_bf16_f32(V(d), V(x), V(y))
    a.wds(t0)
    if KST:
        stamp(a, 12)
    cv(OUT, R0, R0P); cv(OUT + 1, R0 + 1, R0); cv(OUT + 2, R0 + 2, R0 + 1); cv(OUT + 3, R0 + 3, R0 + 2)
    emit_out(0, 0, OUT)
    a.wds(t1)
    a.v_cndmask_b32(V(R1P), V(R1), V(R1P), "vcc")
    o = OUT + 4
    cv(o + 1, R1, R1); cv(o + 2, R1 + 1, R1); cv(o + 3, R1 + 2, R1 + 1); cv(o, R1, R1P)
    emit_out(1, 0, o)
    a.wds(t2)
    A_, B_, C_ = R2, R2 + 1, R2 + 2
    o = OUT + 8
    for i, (x, y) in enumerate([(A_, A_), (A_, A_), (A_, A_), (B_, A_), (B_, B_), (B_, B_), (C_, B_), (C_, C_)]):
        cv(o + i, x, y)
    emit_out(2, 0, o); emit_out(2, 1, o + 4)
    a.wds(t3)
    A_, B_, C_ = R3, R3 + 1, R3 + 2
    o = OUT + 16
    seq = [(A_, A_)] * 5 + [(B_, A_)] + [(B_, B_)] * 6 + [(C_, B_)] + [(C_, C_)] * 3
    for i, (x, y) in enumerate(seq):
        cv(o + i, x, y)
        if i % 4 == 3:
            emit_out(3, i // 4, o + i - 3)


def calc_ct(a, sd):
    a.s_and_b32(S(sd), S(2), 7)
    a.s_lshl_b32(S(sd), S(sd), 4)
    a.s_add_u32(S(sd), S(sd), S(2))
    a.s_bfe_u32(S(sd), S(sd), "0x40003")


def w1_addr(a, t0, t1):
    a.s_mov_b32(S(48), 3456 - 224)
    calc_ct(a, 49)
    a.s_bitcmp1_b32(S(49), 0)
    a.s_cselect_b32(S(49), 0, 208)
    a.v_mov_b32(V(VPA), DUMMY_L)
    for q in range(7):
        a.v_add_u32(V(t0), 256 * q, V(0))
        a.v_mul_u32_u24(V(t1), 4682, V(t0))
        a.v_lshrrev_b32(V(t1), 16, V(t1))
        a.v_lshlrev_b32(V(t0), 4, V(t0))
        a.v_mad_u32_u24(V(VW1 + q), V(t1), S(48), V(t0))
        a.v_mul_u32_u24(V(t1), 224, V(t1))
        a.v_sub_u32(V(t1), V(t0), V(t1))
        a.v_cmp_eq_u32("vcc", S(49), V(t1))
        a.v_cndmask_b32(V(VPA), V(VPA), V(t0), "vcc")


def w1_patch(a, groups, vt, VPA=31):
    a.v_mov_b32(V(vt), "0x3f80")
    a.v_mov_b32(V(vt + 1), 0)
    a.s_sub_u32(S(6), 8, S(S_D2))
    a.v_cmp_gt_u32("vcc", DUMMY_L, V(VPA))
    a.v_add_u32(V(vt + 2), S(6), V(VPA))
    a.s_and_saveexec_b64(S(48, 2), "vcc")
    cur = 0
    for g in groups:
        off = g * 28672 - cur
        if off > 65535:
            a.v_add_u32(V(vt + 2), off, V(vt + 2))
            cur = g * 28672
            off = 0
        a.ds_write_b64(V(vt + 2), V(vt, 2), mods=f"offset:{off}")
    a.s_mov_b64("exec", S(48, 2))
    a.v_mov_b32(V(vt + 2), 143360)
    a.ds_write_b64(V(vt + 2), V(vt, 2))


def w1_srd(a):
    calc_ct(a, 6)
    a.s_mul_i32(S(6), S(6), 216)
    a.s_and_b32(S(S_D2), S(6), 15)
    a.s_sub_u32(S(6), S(6), S(S_D2))
    a.s_add_u32(S(R_W1), S(P_W1), S(6))
    a.s_addc_u32(S(R_W1 + 1), S(P_W1 + 1), 0)
    a.s_sub_u32(S(R_W1 + 2), 640 * 3456, S(6))
    a.s_mov_b32(S(R_W1 + 3), "0x20000")
    a.s_lshl_b32(S(S_M0W), S(S_WAVE), 10)


def w1_dma(a, q, perm=None, part=None):
    g = q // 7
    if part == 1:
        pass
    elif perm is None or perm[g] == g:
        a.s_add_u32("m0", S(S_M0W), 4096 * q)
        a.s_mov_b32(S(63), g * 128 * 3456)
    else:
        if q % 7 == 0:
            a.s_bitcmp1_b32(S(2), 7)
            a.s_cselect_b32(S(50), perm[g], g)
            a.s_mul_i32(S(51), S(50), 7 * 4096)
            a.s_add_u32(S(51), S(51), S(S_M0W))
            a.s_mul_i32(S(50), S(50), 128 * 3456)
        a.s_add_u32("m0", S(51), 4096 * (q % 7))
        a.s_mov_b32(S(63), S(50))
    if part == 0:
        return
    return a.buffer_load_dwordx4(V(VW1 + q % 7), S(R_W1, 4), S(63), mods="offen lds")


def w2_quarter_setup(a, vt):
    srd(a, 24, P_WS, W2P_OFF, W2P_SZ)
    a.s_lshr_b32(S(6), S(2), 3)
    a.s_mul_i32(S(6), S(6), 540 * 128)
    a.v_min_u32(V(vt), 179, V(0))
    a.v_lshl_add_u32(V(vt), V(vt), 7, S(6))


def w2_quarter_load(a, vt, i, dst):
    a.s_mov_b32(S(63), i * 180 * 128)
    a.buffer_load_dword(V(dst), V(vt), S(24, 4), S(63), mods="offen sc1")


def h1_prewrite_setup(a, vt):
    calc_ct(a, 6)
    a.s_mul_i32(S(6), S(6), 27 * 256)
    a.s_and_b32(S(7), S(2), 7)
    a.s_lshl_b32(S(7), S(7), 1)
    a.s_bfe_u32(S(5), S(2), "0x10007")
    a.s_add_u32(S(7), S(7), S(5))
    a.s_lshl_b32(S(7), S(7), 2)
    a.s_add_u32(S(7), S(7), S(S_WAVE))
    a.s_mul_i32(S(7), S(7), 110592)
    a.s_add_u32(S(6), S(6), S(7))
    srd2(a, 28, P_WS, H1_OFF, S(6), 6912)
    a.v_lshlrev_b32(V(vt), 4, V(1))


def h1_prewrite(a, vt, vd, i):
    a.s_mov_b32(S(63), 1024 * i)
    a.buffer_store_dwordx4(V(vd, 4), V(vt), S(28, 4), S(63), mods="offen sc1")


def w2_srd(a):
    a.s_bfe_u32(S(7), S(2), "0x30004")
    a.s_mul_i32(S(7), S(7), 270 * 1024)
    srd2(a, 20, P_WS, W2P_OFF, S(7), 270 * 1024)


def conv_first(a):
    S_DG = 60
    a.s_and_b32(S(6), S(2), 7)
    a.s_mul_i32(S(6), S(6), 20)
    a.s_lshr_b32(S(7), S(2), 3)
    a.s_add_u32(S(S_DG), S(6), S(7))
    a.s_lshl_b32(S(6), S(S_DG), 2)
    a.s_add_u32(S(6), S(6), S(S_WAVE))
    return kgen_loads(a, 6)


def h_store_addr(a, vj, vg, voff):
    a.v_mul_u32_u24(V(voff), 40960, V(vg))
    a.v_lshl_add_u32(V(voff), V(vj), 4, V(voff))
    srd(a, 12, P_WS, H4_OFF, H4_SZ)
    a.s_mul_i32(S(58), S(S_WAVE), 16 * 40960)
    a.s_lshl_b32(S(57), S(60), 8)
    a.s_add_u32(S(58), S(58), S(57))


def conv_role(a, ktk):
    VL = 1
    S_DG, S_KS, S_WT = 60, 61, 59
    a.s_mul_i32(S(S_KS), S(S_WAVE), KS_SZ)
    a.s_mul_i32(S(S_WT), S(S_WAVE), WT_P)
    a.s_add_u32(S(S_WT), S(S_WT), WT_L)
    XR = 232
    tk = {}

    def hook(i):
        if i < 0:
            srd(a, 8, P_U, 0, 2048 * 640 * 2)
            a.v_mul_u32_u24(V(7), 10240, V(0))
            a.s_lshl_b32(S(6), S(S_DG), 3)
            a.s_add_u32(S(7), S(6), 5120)
            if XTOUCH:
                a.s_lshr_b32(S(46), S(2), 3)
                a.s_mul_i32(S(46), S(46), 103 * 1280)
                a.s_and_b32(S(47), S(2), 7)
                a.s_mul_i32(S(47), S(47), 160)
                a.s_add_u32(S(46), S(46), S(47))
                a.v_lshrrev_b32(V(24), 1, V(0))
                a.v_min_u32(V(24), 102, V(24))
                a.v_mul_u32_u24(V(24), 1280, V(24))
                a.v_and_b32(V(25), 1, V(0))
                a.v_mul_u32_u24(V(25), 156, V(25))
                a.v_add_u32(V(24), V(24), V(25))
                a.buffer_load_dword(V(231), V(24), S(8, 4), S(46), mods="offen")
            if -1 in GATHER:
                a.s_barrier()
                for e in GATHER[-1]:
                    tk["x"] = a.buffer_load_dwordx2(V(XR + 2 * e, 2), V(7), S(8, 4), S(6 if e < 4 else 7), mods=f"offen offset:{(e%4)*1280}")
            w1_addr(a, 24, 25)
        elif i == 200:
            a.v_lshlrev_b32(V(2), 6, V(0))
            a.v_mov_b32(V(3), 0)
            if STEARLY:
                stat_loads()
        else:
            for e in GATHER.get(i, []):
                tk["x"] = a.buffer_load_dwordx2(V(XR + 2 * e, 2), V(7), S(8, 4), S(6 if e < 4 else 7), mods=f"offen offset:{(e%4)*1280}")

    SR = 64

    def stat_loads():
        for i in range(4):
            a.buffer_load_dwordx4(V(SR + 4 * i, 4), V(2), S(R_SY, 4), 0, mods=f"offen offset:{16*i} sc1")
        a.buffer_load_dword(V(24), V(3), S(R_DBG, 4), 0, mods="offen sc1")

    kgen(a, ktk, S_KS, S_WT, hook)
    stamp(a, 3)
    if not STEARLY:
        stat_loads()
    a.v_mov_b32(V(31), V(VPA))
    a.v_mov_b32(V(25), 0)
    a.s_mul_i32(S(5), S(S_WAVE), 4608)
    a.s_add_u32(S(5), S(5), UB_L)
    a.v_lshl_add_u32(V(26), V(VL), 2, S(5))
    a.ds_write_b32(V(26), V(25))
    a.ds_write_b32(V(26), V(25), mods="offset:2304")
    a.v_and_b32(V(27), 15, V(VL))
    a.v_lshrrev_b32(V(28), 4, V(VL))
    a.v_lshl_add_u32(V(29), V(27), 2, S(S_WT))
    a.ds_write_b32(V(29), V(25))
    VA, VBQ = 32, 40
    a.v_lshl_add_u32(V(VA), V(VL), 2, S(S_WT))
    for c in range(1, 8):
        a.v_add_u32(V(VA + c), 1024 * c, V(VA))
    a.v_sub_u32(V(VBQ), V(27), V(28))
    a.v_add_u32(V(VBQ), 3, V(VBQ))
    a.v_lshl_add_u32(V(VBQ), V(VBQ), 4, S(5))
    a.s_mov_b32(S(46), "0x05040100")
    a.s_mov_b32(S(47), "0x07060302")
    XS, F = 48, 176
    a.wvm(tk["x"])
    stamp(a, 2)
    for c in range(4):
        for k in range(4):
            a.v_perm_b32(V(XS + 4 * c + k), V(XR + 2 * (2 * k + 1) + (c >> 1)), V(XR + 2 * (2 * k) + (c >> 1)), S(46 + (c & 1)))
    a.v_lshlrev_b32(V(41), 4, V(0))
    a.v_add_u32(V(41), XH_L, V(41))
    for c in range(4):
        a.ds_write_b128(V(41), V(XS + 4 * c, 4), mods=f"offset:{c*XH_P}")
    for i in range(16):
        a.v_lshlrev_b32(V(F + 2 * i), 16, V(XS + i))
        a.v_and_b32(V(F + 2 * i + 1), "0xffff0000", V(XS + i))
    a.v_and_b32(V(42), 1, V(0))
    a.v_mul_u32_u24(V(42), 2304, V(42))
    a.v_lshrrev_b32(V(43), 1, V(0))
    a.v_lshl_add_u32(V(42), V(43), 4, V(42))
    a.v_add_u32(V(42), UB_L + 256, V(42))
    h_store_addr(a, 27, 28, 255)
    for q in range(4):
        a.v_mov_b32(V(212 + q), -1)
    OPS = [112, 48]
    ACC = 216
    XQ, XFL = 8, 176
    subs = [(g, h) for g in range(4) for h in range(2)]

    def loadsA(si):
        g, h = subs[si]
        base = OPS[si % 2]
        out = []
        for c in range(8):
            o = 8 + 64 * g + 8 * h
            out.append(("ds_read2_b32", (V(base + 4 * c, 2), V(VA + c)), f"offset0:{o} offset1:{o-2}"))
            out.append(("ds_read2_b32", (V(base + 4 * c + 2, 2), V(VA + c)), f"offset0:{o-4} offset1:{o-6}"))
        return out

    def loadsB(si):
        g, h = subs[si]
        base = OPS[si % 2]
        par = 1 - h
        return [("ds_read_b128", (V(base + 32 + 4 * c, 4), V(VBQ)), f"offset:{par*2304 + (13 + 16*c - 4*g)*16}") for c in range(8)]

    a.s_mul_i32(S(6), S(S_WAVE), XH_P)
    a.s_add_u32(S(6), S(6), XH_L)
    a.v_lshlrev_b32(V(44), 5, V(27))
    a.v_lshl_add_u32(V(44), V(28), 3, V(44))
    a.v_add_u32(V(44), S(6), V(44))
    flag_addr(a, 45, 96, VL)
    w1_srd(a)
    a.s_mov_b32(S(62), FRP)
    w2_srd(a)
    a.v_lshlrev_b32(V(29), 4, V(VL))
    a.s_mul_i32(S(18), S(S_WAVE), 5 * 1024)
    a.v_bfe_u32(V(47), V(VL), 2, 2)
    a.v_mul_u32_u24(V(47), XH_P, V(47))
    a.v_lshl_add_u32(V(47), V(28), 6, V(47))
    a.v_and_b32(V(30), 3, V(VL))
    a.v_lshl_add_u32(V(47), V(30), 3, V(47))
    a.s_lshl_b32(S(6), S(S_WAVE), 10)
    a.s_add_u32(S(6), S(6), XH_L)
    a.v_add_u32(V(47), S(6), V(47))
    for op, args, mods in loadsA(0):
        a.I(op, *args, mods=mods)
    lp, first = newlab("st"), newlab("stf")
    a.s_branch(first)
    a.label(lp)
    stat_loads()
    a.label(first)
    a.wait(vm=0)
    a.v_readfirstlane_b32(S(S_NONCE), V(24))
    a.v_min3_u32(V(25), V(SR + 1), V(SR + 3), V(SR + 5))
    a.v_max3_u32(V(26), V(SR + 1), V(SR + 3), V(SR + 5))
    a.v_min3_u32(V(25), V(25), V(SR + 7), V(SR + 9))
    a.v_max3_u32(V(26), V(26), V(SR + 7), V(SR + 9))
    a.v_min3_u32(V(25), V(25), V(SR + 11), V(SR + 13))
    a.v_max3_u32(V(26), V(26), V(SR + 11), V(SR + 13))
    a.v_min3_u32(V(25), V(25), V(SR + 15), V(24))
    a.v_max3_u32(V(26), V(26), V(SR + 15), V(24))
    a.v_max_u32(V(26), 1, V(26))
    a.v_cmp_ne_u32("vcc", V(25), V(26))
    spin_branch(a, lp)
    stamp(a, 4)
    RS, NM = 96, 104
    for e in range(8):
        a.v_and_b32(V(RS + e), "0xffff0000", V(SR + 2 * e))
        a.v_lshlrev_b32(V(NM + e), 16, V(SR + 2 * e))
    for e in range(8):
        a.v_rcp_f32(V(RS + e), V(RS + e))
    for k in range(4):
        a.v_pk_mul_f32(V(NM + 2 * k, 2), V(NM + 2 * k, 2), V(RS + 2 * k, 2), mods="neg_lo:[1,0] neg_hi:[1,0]")
    for c in range(4):
        for k in range(4):
            f = F + 2 * (4 * c + k)
            a.v_pk_fma_f32(V(f, 2), V(f, 2), V(RS + 2 * k, 2), V(NM + 2 * k, 2))
        for k in range(4):
            f = F + 2 * (4 * c + k)
            a.v_cvt_pk_bf16_f32(V(XS + 4 * c + k), V(f), V(f + 1))
        a.ds_write_b128(V(42), V(XS + 4 * c, 4), mods=f"offset:{c*4608}")
    a.wait(lgkm=0)
    a.s_barrier()
    stamp(a, 5)
    for op, args, mods in loadsB(0):
        a.I(op, *args, mods=mods)
    started = set()
    nq = 0
    valu = []
    ncw = 0
    for si in range(8):
        base = OPS[si % 2]
        nxt = []
        if si < 7:
            la, lb = loadsA(si + 1), loadsB(si + 1)
            for c in range(8):
                nxt += [la[2 * c], la[2 * c + 1], lb[c]]
        if si == 0:
            nxt += [("ds_read_b64", (V(XQ + 2 * T, 2), V(44)), f"offset:{512*T}") for T in range(8)]
        if si == 1:
            for i in range(16):
                valu.append(("v_lshlrev_b32", (V(XFL + 2 * i), 16, V(XQ + i))))
                valu.append(("v_and_b32", (V(XFL + 2 * i + 1), "0xffff0000", V(XQ + i))))
        a.wait(lgkm=0)
        if os.environ.get("CST", "0") == "1":
            stamp(a, {0: 1, 1: 2, 2: 3, 3: 4, 4: 9, 5: 10, 6: 11, 7: 12}[si])
        if si >= 5:
            order = [(c, T - c) for T in range(7, -1, -1) for c in range(T + 1)]
        else:
            order = [(c, gp) for c in range(8) for gp in range(8 - c)]
        addT = {3: (31, [0, 1]), 4: (27, [2, 3]), 5: (24, [7, 6]), 6: (27, [5, 4])}.get(si)
        fin = []
        for n, (c, gp) in enumerate(order):
            T = c + gp
            a.v_mfma_f32_16x16x32_bf16(V(ACC + 4 * T, 4), V(base + 4 * c, 4), V(base + 32 + 4 * gp, 4), V(ACC + 4 * T, 4) if T in started else 0)
            started.add(T)
            if si == SIW and n == 20 and NCW:
                a.wvm(t_rp0)
                flag_check(a, 208, 96)
                a.s_cmp_eq_u64("vcc", 0)
                a.s_cselect_b32(S(22), S(22), 0)
            if addT and n == addT[0]:
                assert not valu
                valu += [("v_add_f32", (V(ACC + 4 * TT + q), V(ACC + 4 * TT + q), V(XFL + 4 * TT + q))) for TT in addT[1] for q in range(4)]
            if si == 7 and T < 7 and c == min(4, T):
                TT = T + 1
                p = 144 + 2 * TT
                fin += [("v_cvt_pk_bf16_f32", (V(p), V(ACC + 4 * TT), V(ACC + 4 * TT + 1)), ""), ("v_cvt_pk_bf16_f32", (V(p + 1), V(ACC + 4 * TT + 2), V(ACC + 4 * TT + 3)), ""),
                        ("ds_write_b64", (V(44), V(p, 2)), f"offset:{512*TT}")]
            if n + 1 in DMAN and nq < Q_EARLY:
                w1_dma(a, nq, perm=[1, 2, 0], part=0)
            if n in DMAN and nq < Q_EARLY:
                w1_dma(a, nq, perm=[1, 2, 0], part=1); nq += 1
            elif nxt:
                op, args, mods = nxt.pop(0)
                a.I(op, *args, mods=mods)
            elif n == POIN and 1 <= si <= 4:
                a.s_add_u32(S(57), S(58), 4 * (si - 1) * 40960)
                t_poi = a.buffer_store_dwordx4(V(212, 4), V(255), S(12, 4), S(57), mods="offen sc1")
            elif si == SIW - 1 and n in (27, 29) and NCW:
                t_rp0 = a.buffer_load_dwordx2(V(208 + n - 27, 2), V(45 + (n - 27) // 2), S(R_SY, 4), S(62), mods="offen sc1")
            elif si >= SIW and n in CWN and ncw < NCW:
                s_, t_ = divmod(ncw, 5)
                if t_ in (0, 4):
                    a.s_add_u32(S(19), S(18), s_ * 20 * 1024 + (4096 if t_ else 0))
                a.buffer_load_dwordx4(A(56 + 4 * ncw, 4), V(29), S(20, 4), S(19), mods=f"offen offset:{1024*(t_%4)} sc1")
                ncw += 1
            elif si == 7 and n in (1, 3):
                t_rp = a.buffer_load_dwordx2(V(208 + n - 1, 2), V(45 + n // 2), S(R_SY, 4), S(62), mods="offen sc1")
            elif fin:
                op, args, mods = fin.pop(0)
                a.I(op, *args, mods=mods)
            else:
                for _ in range(2):
                    if valu:
                        op, args = valu.pop(0)
                        a.I(op, *args)
        assert si < 3 or not valu, si
        assert not nxt
    assert nq == Q_EARLY and ncw == NCW, (nq, ncw)
    stamp(a, 6)
    p = 144
    fin += [("v_cvt_pk_bf16_f32", (V(p), V(ACC), V(ACC + 1)), ""), ("v_cvt_pk_bf16_f32", (V(p + 1), V(ACC + 2), V(ACC + 3)), ""), ("ds_write_b64", (V(44), V(p, 2)), "offset:0")]
    for op, args, mods in fin:
        a.I(op, *args, mods=mods)
    a.wvm(t_poi)
    a.wait(lgkm=0)
    a.s_barrier()
    HO = 64
    tks = []
    for i in range(4):
        a.ds_read_b64_tr_b16(V(HO + 4 * i, 2), V(47), mods=f"offset:{256*i}")
        tks.append(a.ds_read_b64_tr_b16(V(HO + 4 * i + 2, 2), V(47), mods=f"offset:{256*i+32}"))
    for i in range(4):
        a.wds(tks[i])
        a.s_add_u32(S(7), S(58), 4 * i * 40960)
        t_st = a.buffer_store_dwordx4(V(HO + 4 * i, 4), V(255), S(12, 4), S(7), mods="offen sc1")
    a.s_lshl_b32(S(6), S(2), 7)
    a.s_add_u32(S(6), S(6), FH)
    if not POISON:
        a.wvm(t_st)
    a.s_barrier()
    set_flag(a, S(6), 10)
    stamp(a, 7)
    a.nvm -= 1
    for q in range(Q_EARLY, 35):
        w1_dma(a, q, perm=[0, 1, 2, 4, 3])
    a.wvm(t_rp)
    ok = newlab("rpok")
    flag_check(a, 208, 96)
    a.s_cbranch_vccz(ok)
    poll_flags(a, 45, S(62), 96, 208)
    a.label(ok)


def repack_addr(a, vo):
    a.s_mov_b32(S(48), 1280 - 160)
    for i in range(5):
        a.v_add_u32(V(4), 64 * i, V(1))
        a.v_mul_u32_u24(V(3), 6554, V(4))
        a.v_lshrrev_b32(V(3), 16, V(3))
        a.v_lshlrev_b32(V(4), 4, V(4))
        a.v_mad_u32_u24(V(vo + i), V(3), S(48), V(4))
    a.v_lshrrev_b32(V(4), 2, V(1))
    a.v_mul_u32_u24(V(4), 160, V(4))
    a.v_and_b32(V(3), 3, V(1))
    a.v_lshl_add_u32(V(vo + 5), V(3), 3, V(4))


def repack_load(a, s_idx, s_keep, vo, vd, rsrc):
    a.s_and_b32(S(s_keep), S(s_idx), 7)
    a.s_lshr_b32(S(s_keep + 1), S(s_idx), 3)
    a.s_mul_i32(S(6), S(s_keep + 1), 32 * 1280)
    a.s_mul_i32(S(7), S(s_keep), 160)
    a.s_add_u32(S(6), S(6), S(7))
    return [a.buffer_load_dwordx4(V(vd + 4 * i, 4), V(vo + i), S(rsrc, 4), S(6), mods="offen") for i in range(5)]


def repack_proc(a, s_keep, vo, vd, tks, s_lds):
    a.v_lshl_add_u32(V(4), V(1), 4, S(s_lds))
    a.v_add_u32(V(5), S(s_lds), V(vo + 5))
    a.v_lshlrev_b32(V(7), 4, V(1))
    a.s_mul_i32(S(49), S(s_keep), 54)
    a.s_add_u32(S(49), S(49), S(s_keep + 1))
    a.s_mul_i32(S(49), S(49), 5 * 1024)
    a.s_add_u32(S(50), S(49), 4096)
    for i in range(5):
        a.wvm(tks[i])
        a.ds_write_b128(V(4), V(vd + 4 * i, 4), mods=f"offset:{1024*i}")
    if vd == 104:
        stamp(a, 4)
    rt = []
    for t in range(5):
        a.ds_read_b64_tr_b16(V(vd + 4 * t, 2), V(5), mods=f"offset:{32*t}")
        rt.append(a.ds_read_b64_tr_b16(V(vd + 4 * t + 2, 2), V(5), mods=f"offset:{32*t+16*160}"))
    for t in range(5):
        a.wds(rt[t])
        a.buffer_store_dwordx4(V(vd + 4 * t, 4), V(7), S(12, 4), S(49 if t < 4 else 50), mods=f"offen offset:{1024*(t%4)} sc1")


def aux_first(a):
    VL = 1
    S_AI, S_O = 60, 57
    a.s_sub_u32(S(S_AI), S(2), 160)
    a.s_mul_i32(S(S_O), S(S_AI), 3)
    a.s_add_u32(S(S_O), S(S_O), S(S_WAVE))
    a.v_lshrrev_b32(V(2), 3, V(VL))
    a.v_mul_u32_u24(V(2), 1280, V(2))
    a.v_and_b32(V(3), 7, V(VL))
    a.v_lshl_add_u32(V(2), V(3), 4, V(2))
    a.s_mul_i32(S(6), S(S_O), 10240)
    a.wait(lgkm=0)
    srd(a, 8, P_U, 0, 2048 * 640 * 2)
    return [a.buffer_load_dwordx4(V(16 + 4 * i, 4), V(2), S(8, 4), S(6), mods=f"offen offset:{128*i}") for i in range(10)]


def code_prefetch(a):
    a.s_getpc_b64(S(6, 2))
    a.label("L_PC")
    a.s_sub_u32(S(6), S(6), "L_PC-" + NAME + "_kernel")
    a.s_subb_u32(S(7), S(7), 0)
    a.v_lshlrev_b32(V(2), 7, V(1))
    for i in range(NCODE):
        a.v_min_u32(V(3), "L_END-" + NAME + "_kernel", V(2))
        a.global_load_dword(V(244), V(3), S(6, 2))
        a.v_add_u32(V(2), 8192, V(2))


def aux_role(a, xt):
    VL = 1
    S_AI, S_GW, S_KS, S_O = 60, 61, 62, 57
    XB = 16
    if xt is None:
        a.s_sub_u32(S(S_AI), S(2), 160)
        a.s_mov_b32(S(S_NONCE), S(4))
    a.s_lshl_b32(S(S_GW), S(S_AI), 2)
    a.s_add_u32(S(S_GW), S(S_GW), S(S_WAVE))
    a.s_mul_i32(S(S_KS), S(S_WAVE), 5120)
    a.s_add_u32(S(S_KS), S(S_KS), 143360)
    repack_addr(a, 64)
    srd(a, 24, P_W2, 0, 1728 * 640 * 2)
    srd(a, 28, P_W1, 0, 640 * 1728 * 2)
    tt = {}

    def wloads():
        tt[2] = repack_load(a, S_GW, 4, 64, 104, 24)
        if xt is None:
            a.s_add_u32(S(56), S(S_AI), 384)
            tt[3] = repack_load(a, 56, 58, 64, 72, 24)
        if os.environ.get("W1E", "0") == "1":
            a.v_lshlrev_b32(V(6), 7, V(VL))
            a.s_lshl_b32(S(6), S(S_GW), 13)
            a.buffer_load_dword(V(238), V(6), S(28, 4), S(6), mods="offen")

    AUXLATE = os.environ.get("AUXLATE", "1") == "1" and (xt is not None or os.environ.get("W3E", "1") != "1")
    if not AUXLATE:
        wloads()
    if xt is None:
        a.v_and_b32(V(71), 3, V(VL))
        a.v_lshlrev_b32(V(71), 10, V(71))
    else:
        a.s_lshl_b32(S(6), S(S_WAVE), 10)
        a.v_mov_b32(V(71), S(6))
    if xt is None:
        a.wvm(1)
        a.v_readfirstlane_b32(S(6), V(12))
        a.s_cmp_eq_u32(S(6), 0)
        a.s_cselect_b32(S(S_NONCE), S(S_NONCE), S(6))
        a.v_mov_b32(V(13), S(S_NONCE))
        a.ds_write_b32(V(71), V(13))
        a.wait(lgkm=0)
        stamp(a, 7)
        a.s_barrier()
    w1_addr(a, 4, 5)
    srd(a, 12, P_WS, W2P_OFF, W2P_SZ)
    if xt is not None:
        a.s_mov_b32(S(46), "0x3f803f80")
        for i in range(10):
            a.wvm(xt[i])
            for q in range(4):
                x = V(XB + 4 * i + q)
                first = (i == 0 and q < 2)
                a.v_dot2_f32_bf16(V(8 + (q & 1)), x, S(46), 0 if first else V(8 + (q & 1)))
                a.v_dot2_f32_bf16(V(10 + (q & 1)), x, x, 0 if first else V(10 + (q & 1)))
        stamp(a, 7)
        a.s_barrier()
        a.ds_read_b32(V(15), V(71))
        a.v_add_f32(V(8), V(8), V(9))
        a.v_add_f32(V(10), V(10), V(11))
        for m in ("quad_perm:[1,0,3,2]", "quad_perm:[2,3,0,1]", "row_half_mirror"):
            a.v_add_f32_dpp(V(8), V(8), V(8), mods=f"{m} row_mask:0xf bank_mask:0xf")
            a.v_add_f32_dpp(V(10), V(10), V(10), mods=f"{m} row_mask:0xf bank_mask:0xf")
        inv = f32(1.0 / 640)
        a.v_mul_f32(V(8), inv, V(8))
        a.v_mul_f32(V(10), inv, V(10))
        a.v_fma_f32(V(10), "-" + V(8), V(8), V(10))
        a.v_max_f32(V(10), 0, V(10))
        a.v_cvt_pk_bf16_f32(V(9), V(10), V(10))
        a.v_lshlrev_b32(V(10), 16, V(9))
        a.v_add_f32(V(10), f32(1e-5), V(10))
        a.v_cvt_pk_bf16_f32(V(9), V(10), V(10))
        a.v_lshlrev_b32(V(10), 16, V(9))
        a.v_sqrt_f32(V(10), V(10))
        a.v_cvt_pk_bf16_f32(V(14), V(8), V(10))
        a.v_and_b32(V(3), 7, V(VL))
        a.v_cmp_eq_u32("vcc", 0, V(3))
        a.v_mov_b32(V(9), "0x40000000")
        a.v_cndmask_b32(V(9), V(9), V(VL), "vcc")
        a.s_lshl_b32(S(6), S(S_O), 6)
        a.s_cmp_ge_u32(S(S_O), 256)
        a.s_cselect_b32(S(6), "0x40000000", S(6))
        a.wait(lgkm=0)
        a.buffer_store_dwordx2(V(14, 2), V(9), S(R_SY, 4), S(6), mods="offen sc1")
        a.v_readfirstlane_b32(S(S_NONCE), V(15))
        stamp(a, 1)
    if AUXLATE:
        wloads()
    repack_proc(a, 4, 64, 104, tt[2], S_KS)
    if xt is None:
        join = newlab("aj")
        a.s_cmp_ge_u32(S(56), 432)
        a.s_cbranch_scc1(join)
        repack_proc(a, 58, 64, 72, tt[3], S_KS)
        a.label(join)


def aux_tail(a):
    VL = 1
    S_AI = 60
    stamp(a, 5)
    t_rs = a.nvm
    a.v_lshlrev_b32(V(6), 7, V(VL))
    a.s_lshl_b32(S(6), S(61), 13)
    if os.environ.get("W1E", "0") != "1":
        a.buffer_load_dword(V(238), V(6), S(28, 4), S(6), mods="offen")
    w1_srd(a)
    a.v_mov_b32(V(31), V(VPA))
    QB = int(os.environ.get("QB", "0"))
    for q in range(QB):
        w1_dma(a, q, perm=eval(os.environ.get("AP", "[3, 4, 2, 0, 1]")))
    a.wvm(t_rs)
    stamp(a, 6)
    a.s_barrier()
    a.s_lshl_b32(S(6), S(S_AI), 7)
    a.s_add_u32(S(6), S(6), FRP)
    set_flag(a, S(6), 10)
    stamp(a, 2)
    LPF = os.environ.get("LPF", "late")

    def lpf(first, n):
        a.s_lshr_b32(S(5), S(S_AI), 3)
        a.s_mul_i32(S(5), S(5), 192 * 128)
        a.v_min_u32(V(2), 191, V(0))
        a.v_lshlrev_b32(V(2), 7, V(2))
        for i in range(n):
            a.s_add_u32(S(6), S(5), (first + i * 2304) * 128)
            a.buffer_load_dword(V(239), V(2), S(28, 4), S(6), mods="offen")

    if LPF == "all":
        lpf(0, 8)
    if LPF == "first":
        lpf(384 * 27, 3)
    for q in range(QB, 35):
        t_own = w1_dma(a, q, perm=eval(os.environ.get("AP", "[3, 4, 2, 0, 1]")))
    if LPF == "late":
        lpf(384 * 27, 3)
    if H1W:
        h1_prewrite_setup(a, 30)
        for q in range(4):
            a.v_mov_b32(V(212 + q), -1)
        for i in range(7):
            h1_prewrite(a, 30, 212, i)
    nocs = newlab("nocs")
    a.s_cmp_lt_u32(S(S_AI), 80)
    a.s_cbranch_scc1(nocs)
    a.v_lshrrev_b32(V(6), 2, V(VL))
    a.v_mul_u32_u24(V(6), 224, V(6))
    a.v_and_b32(V(7), 3, V(VL))
    a.v_lshl_add_u32(V(6), V(7), 3, V(6))
    a.s_mul_i32(S(47), S(S_WAVE), 5 * 7168)
    a.s_add_u32(S(47), S(47), S(S_D2))
    a.v_add_u32(V(6), S(47), V(6))
    for i in range(4):
        a.v_mov_b32(V(12 + i), "0x3f803f80")
    a.s_lshl_b32(S(47), S(S_WAVE), 9)
    a.s_add_u32(S(47), S(47), CSP_L)
    a.v_lshrrev_b32(V(7), 4, V(VL))
    a.v_lshl_add_u32(V(7), V(7), 4, S(47))
    a.wvm(t_own)
    a.s_barrier()
    FR, CA = 32, 176
    for kk in range(6):
        if kk < 5:
            for t in range(7):
                for hh in range(2):
                    a.ds_read_b64_tr_b16(V(FR + 28 * kk + 4 * t + 2 * hh, 2), V(6), mods=f"offset:{kk*7168 + hh*3584 + 32*t}")
        if kk:
            a.wait(lgkm=14 if kk < 5 else 0)
            for t in range(7):
                a.v_mfma_f32_16x16x32_bf16(V(CA + 4 * t, 4), V(FR + 28 * (kk - 1) + 4 * t, 4), V(12, 4), V(CA + 4 * t, 4) if kk > 1 else 0)
    a.s_mov_b32("exec_lo", "0x00010001")
    a.s_mov_b32("exec_hi", "0x00010001")
    for t in range(7):
        a.ds_write_b128(V(7), V(CA + 4 * t, 4), mods=f"offset:{64*t}")
    a.s_mov_b64("exec", -1)
    a.v_and_b32(V(8), 127, V(0))
    a.v_lshlrev_b32(V(9), 2, V(8))
    a.v_add_u32(V(9), CSP_L, V(9))
    a.v_lshlrev_b32(V(8), 3, V(8))
    calc_ct(a, 6)
    a.s_lshl_b32(S(6), S(6), 10)
    a.s_add_u32(S(6), S(6), FCS)
    a.wait(lgkm=0)
    a.s_barrier()
    for w in range(4):
        a.ds_read_b32(V(16 + w), V(9), mods=f"offset:{512*w}")
    a.wait(lgkm=0)
    a.v_add_f32(V(16), V(16), V(17))
    a.v_add_f32(V(18), V(18), V(19))
    a.v_add_f32(V(16), V(16), V(18))
    a.v_mov_b32(V(17), S(S_NONCE))
    a.s_cmp_ge_u32(S(S_WAVE), 2)
    a.s_cbranch_scc1(nocs)
    a.buffer_store_dwordx2(V(16, 2), V(8), S(R_SY, 4), S(6), mods="offen sc1")
    a.label(nocs)
    flag_addr(a, 45, 96, VL)
    a.s_mov_b32(S(62), FRP)
    poll_flags(a, 45, S(62), 96, 208)
    stamp(a, 3)
    a.s_mov_b32(S(22), 0)
    AW2 = eval(os.environ.get("AW2", "[]"))
    if AW2:
        srd(a, 24, P_WS, W2P_OFF, W2P_SZ)
        a.s_lshr_b32(S(5), S(S_AI), 3)
        a.s_mul_i32(S(5), S(5), 30 * 128)
        a.v_lshrrev_b32(V(47), 5, V(0))
        a.v_mul_u32_u24(V(47), 2160, V(47))
        a.v_and_b32(V(2), 31, V(0))
        a.v_min_u32(V(2), 29, V(2))
        a.v_add_u32(V(47), V(47), V(2))
        a.v_lshlrev_b32(V(47), 7, V(47))
        for i in AW2:
            a.s_add_u32(S(6), S(5), i * 360 * 128)
            a.buffer_load_dword(V(238), V(47), S(24, 4), S(6), mods="offen sc1")


def gemms(a):
    a.in_gemm = True
    VL = 1
    S_CT, S_TB, S_CT2, S_RB2 = 56, 57, 58, 59
    R_H, R_X, R_W2 = 8, 12, 20
    t_dma = a.nvm
    a.s_bfe_u32(S(S_CT2), S(2), "0x30004")
    a.v_lshlrev_b32(V(5), 4, V(VL))
    a.s_mov_b32(S(4), S(22))
    w2_srd(a)
    a.s_mul_i32(S(46), S(S_WAVE), 5 * 1024)
    ACC, BB = 16, 96
    W2V = 192
    NA = 8

    def w2dst(s, t):
        if s < 10:
            return A(56 + 20 * s + 4 * t, 4)
        if s < 12:
            return A(20 * (s - 10) + 4 * t, 4)
        return V(W2V + 20 * (s - 12) + 4 * t, 4)

    wtk = {}

    def wload(n, part=None):
        s, t = divmod(n, 5)
        if part != 1:
            if t == 0:
                a.s_add_u32(S(49), S(46), s * 20 * 1024)
            if t == 4:
                a.s_add_u32(S(49), S(49), 4096)
        if part == 0:
            return
        wtk[n] = a.buffer_load_dwordx4(w2dst(s, t), V(5), S(R_W2, 4), S(49), mods=f"offen offset:{1024*(t%4)} sc1")

    wq = list(range(70))
    NPRE = int(os.environ.get("NPRE", "20"))
    if NCW:
        skip = newlab("cw")
        a.s_cmp_lg_u32(S(4), 0)
        a.s_cbranch_scc1(skip)
        for _ in range(NCW):
            wload(wq.pop(0))
        a.nvm -= NCW
        a.label(skip)
    for _ in range(NPRE - NCW):
        wload(wq.pop(0))
    a.s_and_b32(S(4), S(2), 7)
    a.s_lshl_b32(S(5), S(4), 1)
    a.s_bfe_u32(S(6), S(2), "0x10007")
    a.s_add_u32(S(60), S(5), S(6))
    calc_ct(a, S_CT)
    a.s_lshl_b32(S(S_TB), S(60), 2)
    a.s_add_u32(S(S_TB), S(S_TB), S(S_WAVE))
    a.s_lshl_b32(S(5), S(60), 1)
    a.s_bfe_u32(S(6), S(2), "0x10003")
    a.s_add_u32(S(S_RB2), S(5), S(6))
    a.v_and_b32(V(2), 15, V(VL))
    a.v_lshrrev_b32(V(3), 4, V(VL))
    a.s_mul_i32(S(7), S(S_TB), 110592)
    srd2(a, R_X, P_WS, H1_OFF, S(7), 110592)
    a.s_mul_i32(S(7), S(S_TB), 40960)
    srd2(a, R_H, P_WS, H4_OFF, S(7), 40960)
    a.v_lshrrev_b32(V(6), 2, V(VL))
    a.v_mul_u32_u24(V(6), 224, V(6))
    a.v_and_b32(V(7), 3, V(VL))
    a.v_lshl_add_u32(V(6), V(7), 3, V(6))
    a.v_add_u32(V(6), S(S_D2), V(6))
    a.v_add_u32(V(7), 9 * 7168, V(6))
    a.v_add_u32(V(4), 18 * 7168, V(6))
    VAB = [6, 7, 4]
    a.s_mov_b32(S(63), 64)
    a.s_lshl_b32(S(47), S(S_WAVE), 9)
    a.s_add_u32(S(47), S(47), CS_L)
    VCR, VCW, VBP, VST6 = 8, 9, 10, 11
    a.v_lshl_add_u32(V(VCR), V(3), 4, S(47))
    a.v_lshl_add_u32(V(VCW), V(VL), 3, S(47))
    a.v_lshlrev_b32(V(VBP), 2, V(2))
    a.v_add_u32(V(VBP), 192, V(VBP))
    a.v_cmp_eq_u32("vcc", 3, V(3))
    a.v_mov_b32(V(VST6), "0x40000000")
    a.v_cndmask_b32(V(VST6), V(5), V(VST6), "vcc")
    a.s_lshl_b32(S(50), S(S_CT), 10)
    a.s_add_u32(S(50), S(50), FCS)
    a.s_mul_i32(S(51), S(S_CT), 27 * 256)
    a.s_add_u32(S(61), S(51), 4096)
    a.s_lshl_b32(S(62), S(60), 4)
    a.s_add_u32(S(62), S(62), S(S_CT))
    a.s_lshl_b32(S(62), S(62), 7)
    a.s_add_u32(S(62), S(62), FH1)
    flag_addr(a, 24, 160, VL)
    a.s_mov_b32(S(47), FH)
    a.wvm(t_dma)
    w1_patch(a, range(5), 12)
    skip = newlab("ph")
    a.s_cmp_lg_u32(S(S_WAVE), 0)
    a.s_cbranch_scc1(skip)
    poll_flags(a, 24, S(47), 160, 16)
    a.label(skip)
    a.wait(lgkm=0)
    a.s_barrier()
    stamp(a, 8)
    a.label("L_G1")
    btk = {}

    def bload(n, part=None):
        if n % 4 == 0 and part != 1:
            a.s_mov_b32(S(48), n * 1024)
        if part == 0:
            return
        btk[n] = a.buffer_load_dwordx4(V(BB + 4 * n, 4), V(5), S(R_H, 4), S(48), mods=f"offen offset:{(n%4)*1024} sc1")

    ctk = {}

    def csload(n, part=None):
        if part == 0:
            return
        ctk[0] = a.buffer_load_dwordx4(V(84, 4), V(5), S(R_SY, 4), S(50), mods="offen sc1")

    def areads(ks):
        out = []
        for t in range(7):
            for hh in range(2):
                out.append((A(28 * (ks % 2) + 4 * t + 2 * hh, 2), V(VAB[ks // 9]), f"offset:{(ks%9)*7168 + hh*3584 + 32*t}"))
        return out

    queue = [(bload, n) for n in range(40)] + [(csload, 0)] + [(wload, n) for n in wq if n < 50]
    for _ in range(12):
        f, n = queue.pop(0); f(n)
    atk = [a.ds_read_b64_tr_b16(d, ad, mods=mods) for d, ad, mods in areads(0)]
    CSR = 72
    S1 = [12, 13]
    NMv = [92, 94]
    NLP = eval(os.environ.get("NLP", "[3]"))
    a.wvm(btk[1])
    a.v_swap_b32(V(BB + 2), V(BB + 4))
    a.v_swap_b32(V(BB + 3), V(BB + 5))
    for ks in range(19):
        if ks == 15:
            a.wvm(ctk[0])
            a.v_xor_b32(V(85), S(S_NONCE), V(85))
            a.v_xor_b32(V(87), S(S_NONCE), V(87))
            a.v_or_b32(V(85), V(85), V(87))
            a.v_cmp_ne_u32("vcc", 0, V(85))
            a.s_cbranch_vccnz("L_CSW")
            a.label("L_CSOK")
            a.ds_write2_b32(V(VCW), V(84), V(86), mods="offset0:0 offset1:1")
        b = BB + 8 * ks
        if os.environ.get("G1ST", "0") == "1" and ks in (0, 4, 9, 14):
            stamp(a, {0: 1, 4: 2, 9: 3, 14: 4}[ks])
        nxt = areads(ks + 1)
        if ks == 18:
            nxt = nxt[12:] + nxt[:12]
        ntk = []
        lg = (1, 4, 10, 13)[:NLP[ks % len(NLP)]]
        bn = BB + 8 * (ks + 1)
        for t in range(7):
            for p in range(2):
                g = 2 * t + p
                acc = ACC + 8 * t + 4 * p
                if g == 0:
                    a.wds(atk[5])
                a.v_mfma_f32_16x16x32_bf16(V(acc, 4), A(28 * (ks % 2) + 4 * t, 4), V(b + 4 * p, 4), V(acc, 4) if ks else 0)
                d, ad, mods = nxt.pop(0)
                ntk.append(a.ds_read_b64_tr_b16(d, ad, mods=mods))
                if g + 1 in lg and queue:
                    f, n = queue[0]; f(n, 0)
                if g in lg and queue:
                    f, n = queue.pop(0); f(n, 1)
                if g == 5:
                    a.wboth(btk[2 * ks + 3], atk[13])
                if g == 7:
                    a.v_swap_b32(V(bn + 2), V(bn + 4))
                if g == 8:
                    a.v_swap_b32(V(bn + 3), V(bn + 5))
        atk = ntk
    b = BB + 8 * 19
    a.wds(atk[1])
    for p in range(2):
        acc = ACC + 48 + 4 * p
        a.v_mfma_f32_16x16x32_bf16(V(acc, 4), A(28 + 24, 4), V(b + 4 * p, 4), V(acc, 4))
    order = [6, 0, 1, 2, 3, 4, 5]
    cst = {}
    a.wds(atk[13])
    pre = []
    for t in range(6):
        for p in range(2):
            g = 2 * t + p
            acc = ACC + 8 * t + 4 * p
            a.v_mfma_f32_16x16x32_bf16(V(acc, 4), A(28 + 4 * t, 4), V(b + 4 * p, 4), V(acc, 4))
            if g < 3:
                cst[order[g]] = a.ds_read_b128(V(CSR + 4 * g, 4), V(VCR), mods=f"offset:{64*order[g]}")
            elif g < 5:
                t_bp = a.ds_bpermute_b32(V(S1[g - 3]), V(VBP), V(ACC + 48 + 4 * (g - 3)))
            elif g < 7:
                cst[order[g - 2]] = a.ds_read_b128(V(CSR + 4 * (g - 2), 4), V(VCR), mods=f"offset:{64*order[g-2]}")
            elif g == 9:
                a.wds(t_bp)
                a.v_cmp_u_f32("vcc", V(S1[0]), V(S1[1]))
                a.v_mul_f32(V(S1[0]), f32(1.0 / 640), V(S1[0]))
            elif g == 10:
                a.v_mul_f32(V(S1[1]), f32(1.0 / 640), V(S1[1]))
                a.v_cvt_pk_bf16_f32(V(NMv[1]), "-" + V(S1[0]), "-" + V(S1[1]))
            elif g == 11:
                a.v_lshlrev_b32(V(NMv[0]), 16, V(NMv[1]))
                a.v_and_b32(V(NMv[1]), "0xffff0000", V(NMv[1]))
    stamp(a, 9)
    a.s_cbranch_vccnz("L_G1RETRY")
    a.label("L_G1OK")
    for i, t in enumerate(order):
        cs = CSR + 4 * (i % 5)
        if i >= 3:
            a.wds(cst[t])
        for p in range(2):
            for hh in range(2):
                r = ACC + 8 * t + 4 * p + 2 * hh
                a.v_pk_fma_f32(V(r, 2), V(cs + 2 * hh, 2), V(NMv[p], 2), V(r, 2), mods="op_sel_hi:[1,0,1]")
        if i < 2:
            cst[order[5 + i]] = a.ds_read_b128(V(cs, 4), V(VCR), mods=f"offset:{64*order[5+i]}")
        ob = ACC + 8 * t
        for q in range(4):
            a.v_cvt_pk_bf16_f32(V(ob + q), V(ob + 2 * q), V(ob + 2 * q + 1))
        for q in range(4):
            a.v_pk_max_i16(V(ob + q), V(ob + q), 0)
        t_st = a.buffer_store_dwordx4(V(ob, 4), V(VST6 if t == 6 else 5), S(R_X, 4), S(51 if t < 4 else 61), mods=f"offen offset:{1024*(t%4)} sc1")
    queue += [(wload, n) for n in range(50, 60)]
    SQ = 72
    nep = int(os.environ.get("NEP", "10"))
    queue += [(wload, n) for n in range(60, 70)]
    for i_, ks in enumerate(list(range(12, 20)) + list(range(12))):
        for p in range(2):
            bb = BB + 8 * ks + 4 * p
            a.v_mfma_f32_16x16x32_bf16(V(SQ + 4 * p, 4), V(bb, 4), V(bb, 4), V(SQ + 4 * p, 4) if i_ else 0)
        if (i_ % 2 == 1 or nep > (20 - i_) // 2) and nep and queue:
            assert queue[0][1] < 60 or i_ >= 6
            f, n = queue.pop(0); f(n); nep -= 1
    HR = 232
    a.s_lshl_b32(S(4), S(S_RB2), 1)
    a.s_lshr_b32(S(6), S(S_WAVE), 1)
    a.s_add_u32(S(5), S(6), S(4))
    a.s_mul_i32(S(7), S(5), 40960)
    srd2(a, R_H, P_WS, H4_OFF, S(7), 40960)
    a.s_mul_i32(S(18), S(S_CT2), 20 * 256)
    a.s_and_b32(S(5), S(S_WAVE), 1)
    a.s_lshl_b32(S(5), S(5), 3)
    a.s_add_u32(S(18), S(18), S(5))
    a.s_add_u32(S(19), S(18), 4096)
    a.v_and_b32(V(8), 3, V(2))
    for r in (1, 2, 3):
        a.v_cmp_eq_u32("vcc", r, V(8))
        for p in range(2):
            a.v_cndmask_b32(V(SQ + 4 * p), V(SQ + 4 * p), V(SQ + 4 * p + r), "vcc")
    S2 = [SQ, SQ + 4]
    for p in range(2):
        a.v_mul_f32(V(S2[p]), f32(1.0 / 640), V(S2[p]))
    for p in range(2):
        a.v_fma_f32(V(S2[p]), "-" + V(S1[p]), V(S1[p]), V(S2[p]))
    for p in range(2):
        a.v_max_f32(V(S2[p]), 0, V(S2[p]))
    rnd2(a, S2[0], S2[1], 9)
    for p in range(2):
        a.v_add_f32(V(S2[p]), f32(1e-5), V(S2[p]))
    rnd2(a, S2[0], S2[1], 9)
    for p in range(2):
        a.v_sqrt_f32(V(S2[p]), V(S2[p]))
    rnd2(a, S2[0], S2[1], 9)
    for p in range(2):
        a.v_rcp_f32(V(S2[p]), V(S2[p]))
    a.v_lshrrev_b32(V(8), 2, V(2))
    a.s_lshl_b32(S(6), S(S_WAVE), 7)
    a.s_add_u32(S(6), S(6), RS_L)
    a.v_lshl_add_u32(V(9), V(2), 2, S(6))
    a.v_cmp_eq_u32("vcc", V(8), V(3))
    a.s_and_saveexec_b64(S(32, 2), "vcc")
    a.ds_write2_b32(V(9), V(S2[0]), V(S2[1]), mods="offset0:0 offset1:16")
    a.s_mov_b64("exec", S(32, 2))
    RB = [24, 28]
    a.s_lshl_b32(S(4), S(S_RB2), 1)
    a.s_lshr_b32(S(6), S(S_WAVE), 1)
    for lp in range(2):
        a.s_xor_b32(S(5), S(6), lp)
        a.s_add_u32(S(5), S(5), S(4))
        a.s_mul_i32(S(7), S(5), 110592)
        srd2(a, RB[lp], P_WS, H1_OFF, S(7), 110592)
    a.v_lshlrev_b32(V(8), 7, V(2))
    a.s_lshl_b32(S(47), S(60), 11)
    a.s_add_u32(S(47), S(47), FH1)
    a.s_add_u32(S(61), S(62), FH1B - FH1)
    a.s_mov_b32(S(63), int(os.environ.get("KA", "24")))
    a.v_mov_b32(V(14), S(S_NONCE))
    a.v_mov_b32(V(15), 0)
    a.wvm(t_st)
    a.s_barrier()
    skip = newlab("fa")
    a.s_cmp_lg_u32(S(S_WAVE), 0)
    a.s_cbranch_scc1(skip)
    a.s_mov_b64("exec", 1)
    if os.environ.get("NOA", "0") != "1":
        a.buffer_store_dword(V(14), V(15), S(R_SY, 4), S(62), mods="offen")
        a.nvm -= 1
    a.s_mov_b64("exec", -1)
    a.label(skip)
    stamp(a, 10)
    for _ in range(int(os.environ.get("NPOST", "6"))):
        if queue:
            f, n = queue.pop(0); f(n)
    HRL = os.environ.get("HRL", "1") == "1"

    hrt = {}

    def hrload(t):
        hrt[t] = a.buffer_load_dwordx2(V(HR + 2 * t, 2), V(5), S(R_H, 4), S(18 if t < 4 else 19), mods=f"offen offset:{1024*(t%4)} sc1")

    if not HRL:
        for t in range(5):
            hrload(t)
    skip = newlab("p1")
    a.s_cmp_lg_u32(S(S_WAVE), 0)
    a.s_cbranch_scc1(skip)
    save = a.nvm
    lp = newlab("p1l")
    a.label(lp)
    a.buffer_load_dword(V(12), V(8), S(R_SY, 4), S(47), mods="offen sc1")
    a.wait(vm=0)
    a.v_cmp_ne_u32("vcc", S(S_NONCE), V(12))
    a.s_cbranch_vccz(skip)
    a.s_sub_u32(S(63), S(63), 1)
    a.s_cbranch_scc0(lp)
    a.s_branch("L_SLOW1")
    a.label(skip)
    a.label("L_SLOW1X")
    a.nvm = save
    HR = 232
    a.s_lshl_b32(S(47), S(S_WAVE), 11)
    a.wait(lgkm=0)
    a.s_barrier()
    stamp(a, 11)
    NR = 12
    htk = {}

    def bbuf(u):
        return BB + 8 * (u % NR)

    def hload(n, part=None):
        u, hh = divmod(n, 2)
        s = u % 14
        if hh == 0 and part != 1:
            a.s_add_u32(S(48), S(47), s * 8192)
        if part == 0:
            return
        htk[n] = a.buffer_load_dwordx4(V(bbuf(u) + 4 * hh, 4), V(5), S(RB[1 if u < 14 else 0], 4), S(48), mods=f"offen offset:{1024*hh} {HLD}")

    def accr(lp, par, t):
        return ACC + ((2 * lp + par) * 5 + t) * 4

    nissued = 0
    for _ in range(12):
        hload(nissued); nissued += 1
    VRS, VW1_, VWP0, VWP1, VRD, VOUT = 4, 6, 7, 8, 9, 10
    a.s_bfe_u32(S(6), S(2), "0x10003")
    a.s_lshl_b32(S(6), S(6), 2)
    a.s_add_u32(S(6), S(6), S(S_WAVE))
    a.s_lshl_b32(S(6), S(6), 6)
    a.s_add_u32(S(6), S(6), RS_L)
    a.v_lshl_add_u32(V(VRS), V(2), 2, S(6))
    a.ds_read_b32(V(12), V(VRS))
    a.s_xor_b32(S(6), S(S_WAVE), 1)
    a.s_mul_i32(S(6), S(6), 20480)
    a.s_add_u32(S(6), S(6), 5120)
    a.v_add_u32(V(VW1_), S(6), V(5))
    for par, vw in ((0, VWP0), (1, VWP1)):
        a.s_and_b32(S(5), S(S_WAVE), 2)
        a.s_xor_b32(S(5), S(5), 2 + par)
        a.s_xor_b32(S(6), S(5), S(S_WAVE))
        a.s_mul_i32(S(5), S(5), 20480)
        a.s_mul_i32(S(6), S(6), 5120)
        a.s_add_u32(S(6), S(6), S(5))
        a.v_add_u32(V(vw), S(6), V(5))
    a.s_mul_i32(S(6), S(S_WAVE), 20480)
    a.v_add_u32(V(VRD), S(6), V(5))
    srd(a, 12, P_OUT, 0, 2048 * 640 * 2)
    a.v_mul_u32_u24(V(VOUT), 1280, V(2))
    WIDE = os.environ.get("WIDE", "1") == "1"
    a.v_and_b32(V(11), 1, V(3))
    a.v_lshl_add_u32(V(11), V(11), 5, V(VOUT))
    a.v_lshrrev_b32(V(13), 1, V(3))
    a.v_lshl_add_u32(V(11), V(13), 4, V(11))
    a.v_lshl_add_u32(V(VOUT), V(3), 3, V(VOUT))
    a.s_lshl_b32(S(50), S(S_RB2), 2)
    a.s_add_u32(S(50), S(50), S(S_WAVE))
    a.s_mul_i32(S(50), S(50), 16 * 1280)
    a.s_mul_i32(S(51), S(S_CT2), 160)
    a.s_add_u32(S(50), S(50), S(51))
    a.wvm(htk[1])
    a.v_swap_b32(V(bbuf(0) + 2), V(bbuf(0) + 4))
    a.v_swap_b32(V(bbuf(0) + 3), V(bbuf(0) + 5))
    UF = int(os.environ.get("UF", "24"))
    HG = eval(os.environ.get("HG", "(0, 3)"))
    R23 = accr(1, 0, 0)
    fill = []
    if HRL:
        queue += [(hrload, t) for t in range(5)]
    for u in range(UF):
        lp, s = (1, u) if u < 14 else (0, u - 14)
        b, bn = bbuf(u), bbuf(u + 1)
        if os.environ.get("G1ST", "0") == "1" and u in (0, 10, 20):
            stamp(a, {0: 5, 10: 6, 20: 7}[u])
        if u == 15:
            fill += [("w", accr(1, par, t), (VWP0, VWP1)[par], 1024 * t) for par in range(2) for t in range(5)]
        if u == 19:
            assert not fill
            a.wait(lgkm=0)
            a.s_barrier()
            fill += [("r", R23 + 20 * x + 4 * t, (x + 2) * 5120 + t * 1024) for x in range(2) for t in range(5)]
        if u == 21:
            a.wboth(hrt[4], t_r23)
            R3 = R23 + 20
            fill += [("v", "v_add_f32", (V(R23 + i), V(R23 + i), V(R3 + i))) for i in range(20)]
            for i in range(10):
                fill.append(("v", "v_lshlrev_b32", (V(R3 + 2 * i), 16, V(HR + i))))
                fill.append(("v", "v_and_b32", (V(R3 + 2 * i + 1), "0xffff0000", V(HR + i))))
            fill += [("v", "v_fma_f32", (V(R23 + i), V(R23 + i), V(12), V(R3 + i))) for i in range(20)]
        g = 0
        for t in range(5):
            for par in range(2):
                acc = accr(lp, par, t)
                a.v_mfma_f32_16x16x32_bf16(V(acc, 4), w2dst(s, t), V(b + 4 * par, 4), V(acc, 4) if s else 0)
                lim = min(56, 2 * (u + NR))
                if g in HG and nissued < lim:
                    hload(nissued); nissued += 1
                elif g == 8 and queue:
                    f, nn = queue.pop(0); f(nn)
                elif g == 4:
                    a.wvm(max(htk[2 * u + 3], wtk[min(69, 5 * s + 9)] if u < 13 else 0))
                elif g in (5, 6):
                    a.v_swap_b32(V(bn + g - 3), V(bn + g - 1))
                elif fill:
                    it = fill.pop(0)
                    if it[0] == "w":
                        a.ds_write_b128(V(it[2]), V(it[1], 4), mods=f"offset:{it[3]}")
                    elif it[0] == "r":
                        t_r23 = a.ds_read_b128(V(it[1], 4), V(VRD), mods=f"offset:{it[2]}")
                    else:
                        a.I(it[1], *it[2])
                        if fill:
                            it = fill.pop(0)
                            a.I(it[1], *it[2])
                g += 1
    assert nissued == 56 and not queue
    work0 = [(it[1], it[2]) for it in fill]

    def wbl2():
        nowb = newlab("nowb")
        a.s_lshr_b32(S(6), S(2), 3)
        a.s_add_u32(S(6), S(6), S(S_WAVE))
        a.s_cmp_lg_u32(S(6), 0)
        a.s_cbranch_scc1(nowb)
        a.I("buffer_wbl2", mods="sc1")
        a.label(nowb)

    WB = os.environ.get("WBL2", "0")
    odd, fin = newlab("odd"), newlab("fin")
    a.s_bitcmp1_b32(S(S_WAVE), 0)
    a.s_cbranch_scc1(odd)
    HU = R23
    R1 = bbuf(16)
    nds0, nvm1 = a.nds, a.nvm
    for par in range(2):
        a.nds, a.nvm = nds0, nvm1
        work = list(work0)
        for s in range(UF - 14, 14):
            u = 14 + s
            for t in range(5):
                acc = accr(0, par ^ 1, t)
                a.v_mfma_f32_16x16x32_bf16(V(acc, 4), w2dst(s, t), V(bbuf(u) + 4 * (par ^ 1), 4), V(acc, 4))
                if s < 13 and t == 0:
                    a.wvm(htk[2 * u + 3])
                if s < 13 and t in (1, 2):
                    a.v_swap_b32(V(bbuf(u + 1) + t + 1), V(bbuf(u + 1) + t + 3))
                else:
                    for _ in range(2):
                        if work:
                            op, args = work.pop(0); a.I(op, *args)
        if par == 0:
            skip = newlab("fb")
            a.s_cmp_lg_u32(S(S_WAVE), 0)
            a.s_cbranch_scc1(skip)
            a.s_mov_b64("exec", 1)
            a.buffer_store_dword(V(14), V(15), S(R_SY, 4), S(61), mods="offen sc1")
            a.s_mov_b64("exec", -1)
            a.label(skip)
        n = 0
        NB_ = 5 * (28 - UF) - 6
        for s in range(UF - 14, 14):
            u = 14 + s
            for t in range(5):
                acc = accr(0, par, t)
                a.v_mfma_f32_16x16x32_bf16(V(acc, 4), w2dst(s, t), V(bbuf(u) + 4 * par, 4), V(acc, 4))
                if 1 <= n <= 5:
                    tt_ = n - 1
                    a.ds_write_b128(V(VW1_), V(accr(0, par ^ 1, tt_), 4), mods=f"offset:{1024*tt_}")
                elif n == NB_:
                    a.wait(lgkm=0)
                    a.s_barrier()
                elif n > NB_:
                    rt = a.ds_read_b128(V(R1 + 4 * (n - NB_ - 1), 4), V(VRD), mods=f"offset:{5120 + (n-NB_-1)*1024}")
                else:
                    for _ in range(2):
                        if work:
                            op, args = work.pop(0); a.I(op, *args)
                n += 1
        while work:
            op, args = work.pop(0); a.I(op, *args)
        if os.environ.get("E0ST", "0") != "1":
            stamp(a, 12)
        if WB == "3" and par == 0:
            wbl2()
        a.wds(rt)
        for t in range(5):
            for hh in range(2):
                a.v_pk_fma_f32(V(HU + 4 * t + 2 * hh, 2), V(R1 + 4 * t + 2 * hh, 2), V(12, 2), V(HU + 4 * t + 2 * hh, 2), mods="op_sel_hi:[1,0,1]")
        for t in range(5):
            acc = accr(0, par, t)
            for hh in range(2):
                a.v_pk_fma_f32(V(acc + 2 * hh, 2), V(acc + 2 * hh, 2), V(12, 2), V(HU + 4 * t + 2 * hh, 2), mods="op_sel_hi:[1,0,1]")
            if WIDE:
                o = R1 + 2 * t
                for hh in range(2):
                    a.v_cvt_pk_bf16_f32(V(o + hh), V(acc + 2 * hh), V(acc + 2 * hh + 1))
                if t in (1, 3):
                    for hh in range(2):
                        a.v_permlane16_swap_b32(V(o - 2 + hh), V(o + hh))
                    a.buffer_store_dwordx4(V(o - 2, 4), V(11), S(12, 4), S(50), mods=f"offen offset:{32*(t-1)}")
                if t == 4:
                    a.buffer_store_dwordx2(V(o, 2), V(VOUT), S(12, 4), S(50), mods="offen offset:128")
                continue
            for hh in range(2):
                a.v_cvt_pk_bf16_f32(V(R1 + 4 * t + hh), V(acc + 2 * hh), V(acc + 2 * hh + 1))
            a.buffer_store_dwordx2(V(R1 + 4 * t, 2), V(VOUT), S(12, 4), S(50), mods=f"offen offset:{32*t} " + os.environ.get("OUTF", ""))
        if WB == "4" and par == 0:
            wbl2()
        if par == 0:
            a.s_branch(fin)
            a.label(odd)
    a.label(fin)


def slow_wait1(a):
    a.label("L_SLOW1")
    a.s_mov_b64("exec", 1)
    a.buffer_store_dword(V(14), V(15), S(R_SY, 4), S(61), mods="offen sc1")
    a.s_mov_b64("exec", -1)
    a.v_and_b32(V(9), 1, V(3))
    a.v_mul_u32_u24(V(9), FH1B - FH1, V(9))
    a.v_add_u32(V(8), V(8), V(9))
    lp = newlab("s1l")
    a.label(lp)
    a.buffer_load_dword(V(12), V(8), S(R_SY, 4), S(47), mods="offen sc1")
    a.wait(vm=0)
    a.v_cmp_ne_u32("vcc", S(S_NONCE), V(12))
    a.s_lshr_b32(S(6), "vcc_lo", 16)
    a.s_and_b32(S(6), "vcc_lo", S(6))
    a.s_mov_b32(S(7), 0)
    a.s_mov_b64("vcc", S(6, 2))
    spin_branch(a, lp)
    a.s_branch("L_SLOW1X")


def cs_wait(a):
    a.label("L_CSW")
    a.buffer_load_dwordx4(V(84, 4), V(5), S(R_SY, 4), S(50), mods="offen sc1")
    a.wait(vm=0)
    a.v_xor_b32(V(85), S(S_NONCE), V(85))
    a.v_xor_b32(V(87), S(S_NONCE), V(87))
    a.v_or_b32(V(85), V(85), V(87))
    a.v_cmp_ne_u32("vcc", 0, V(85))
    spin_branch(a, "L_CSW")
    a.s_branch("L_CSOK")


def gemm1_retry(a):
    a.label("L_G1RETRY")
    a.s_sub_u32(S(63), S(63), 1)
    a.s_cbranch_scc1("L_G1OK")
    if STAMPS and os.environ.get("DBGT", "0") != "1":
        a.v_mov_b32(V(80), 4)
        a.v_mov_b32(V(81), 1)
        a.s_mov_b64("exec", 1)
        a.buffer_atomic_add(V(81), V(80), S(R_DBG, 4), 0, mods="offen sc1")
        a.s_mov_b64("exec", -1)
    a.wait(vm=0)
    a.s_branch("L_G1")


NSTAMP = 13


def gen():
    a = Asm()
    a.s_load_dwordx16(S(16, 16), S(0, 2), 0)
    a.s_load_dwordx8(S(32, 8), S(0, 2), 64)
    a.s_load_dwordx4(S(40, 4), S(0, 2), 96)
    a.s_load_dwordx2(S(44, 2), S(0, 2), 112)
    a.s_memrealtime(S(4, 2))
    if STAMPS:
        for i in range(1, NSTAMP):
            a.s_mov_b32(S(76 + 2 * i), 0)
    stamp(a, 0)
    a.s_cmp_ge_u32(S(2), 256)
    a.s_cbranch_scc1("L_END")
    a.v_lshrrev_b32(V(1), 6, V(0))
    a.v_readfirstlane_b32(S(S_WAVE), V(1))
    a.v_and_b32(V(1), 63, V(0))

    def common_setup():
        a.s_mov_b32(S(S_SPIN), SPIN_MAX)
        a.s_getreg_b32(S(S_XCC), "hwreg(HW_REG_XCC_ID, 0, 4)")
        srd(a, R_DBG, P_DBG, 0, 256)
        srd(a, R_SY, P_WS, SY_OFF, SY_SZ)

    a.s_cmp_lt_u32(S(2), 160)
    a.s_cbranch_scc1("L_CONV")
    a.s_cmp_eq_u32(S(S_WAVE), 3)
    a.s_cbranch_scc1("L_AUX3")
    xt = aux_first(a)
    nvm_aux = a.nvm
    a.s_branch("L_AUX")
    a.label("L_AUX3")
    a.v_mov_b32(V(14), 0)
    a.v_mov_b32(V(13), 0)
    a.wait(lgkm=0)
    srd(a, R_DBG, P_DBG, 0, 256)
    a.s_or_b32(S(4), S(4), 1)
    a.v_mov_b32(V(12), S(4))
    a.s_mov_b64("exec", 1)
    a.buffer_atomic_cmpswap(V(12, 2), V(14), S(R_DBG, 4), 0, mods="offen sc0 sc1")
    a.s_mov_b64("exec", -1)
    if SYT:
        srd(a, R_SY, P_WS, SY_OFF, SY_SZ)
        a.s_sub_u32(S(6), S(2), 160)
        a.s_lshl_b32(S(6), S(6), 13)
        a.v_lshlrev_b32(V(2), 7, V(1))
        a.buffer_load_dword(V(245), V(2), S(R_SY, 4), S(6), mods="offen sc1")
    code_prefetch(a)
    a.s_branch("L_AUX3B")
    a.label("L_CONV")
    a.nvm = 0
    a.wait(lgkm=0)
    if os.environ.get("E0ST", "0") == "1":
        stamp(a, 12)
    ktk = conv_first(a)
    common_setup()
    conv_role(a, ktk)
    a.s_branch("L_COMMON")
    if POISON:
        gemm1_retry(a)
    cs_wait(a)
    slow_wait1(a)
    a.label("L_AUX3B")
    a.nvm = 1 + NCODE + (1 if SYT else 0)
    common_setup()
    aux_role(a, None)
    a.s_branch("L_AUXJ")
    a.label("L_AUX")
    a.nvm = nvm_aux
    common_setup()
    aux_role(a, xt)
    a.label("L_AUXJ")
    aux_tail(a)
    a.label("L_COMMON")
    gemms(a)
    if STAMPS:
        a.wait(vm=0)
        a.s_memrealtime(S(4, 2))
        a.wait(lgkm=0)
        srd(a, 8, P_WS, ST_OFF, 0x100000)
        a.s_lshl_b32(S(6), S(2), 2)
        a.s_add_u32(S(6), S(6), S(S_WAVE))
        a.s_lshl_b32(S(6), S(6), 6)
        for i in range(NSTAMP):
            a.v_mov_b32(V(8 + i), S(76 + 2 * i))
        a.v_mov_b32(V(8 + NSTAMP), S(4))
        a.v_mov_b32(V(2), 0)
        a.s_mov_b64("exec", 1)
        for q in range(4):
            a.buffer_store_dwordx4(V(8 + 4 * q, 4), V(2), S(8, 4), S(6), mods=f"offen offset:{16*q}")
        if os.environ.get("DBGT", "0") == "1":
            a.v_not_b32(V(30), V(8))
            a.buffer_atomic_umax(V(30), V(2), S(R_DBG, 4), 0, mods="offen offset:4 sc1")
            for i in range(NSTAMP + 1):
                a.buffer_atomic_umax(V(8 + i), V(2), S(R_DBG, 4), 0, mods=f"offen offset:{8+4*i} sc1")
    if os.environ.get("FIXT", "0") != "0":
        a.label("L_FIX")
        a.s_memrealtime(S(4, 2))
        a.wait(lgkm=0)
        a.s_sub_u32(S(4), S(4), S(S_NONCE))
        a.s_cmp_lt_u32(S(4), int(os.environ["FIXT"]))
        a.s_cbranch_scc1("L_FIX")
    a.label("L_END")
    a.s_endpgm()
    return kernel_text(NAME + "_kernel", a, 256, nagpr=256, nsgpr=102)


def main(path):
    ref = open(f"cdna_kernels/{NAME}.s.ref").read().splitlines()
    head = [l for l in ref if l.startswith(";") and "@launch" not in l]
    out = "\n".join(head) + "\n"
    out += f"; @launch grid=(256,1,1) block=(256,1,1) lds={LDS_SZ}\n"
    out += '.amdgcn_target "amdgcn-amd-amdhsa--gfx950"\n'
    out += gen()
    open(path, "w").write(out)


if __name__ == "__main__":
    main(sys.argv[1] if len(sys.argv) > 1 else f"cdna_kernels/{NAME}.s")
```

```python
import sys, struct, os
sys.path.insert(0, "dev")
from asmlib import *

NAME = "sequential_preLN__ssm_conv_s4__dense_activation_relu__prompt"
STAMPS = os.environ.get("STAMPS", "0") == "1"

SY_OFF, SY_SZ = 0x0, 0x28000
FRP, FH, FH1 = 0x4000, 0x8000, 0x10000
FH1B = 0x20000
FCS = 0x18000
W2P_OFF, W2P_SZ = 0x100000, 8 * 54 * 5 * 1024
H4_OFF, H4_SZ = 0x700000, 64 * 40960
H1_OFF, H1_SZ = 0xA00000, 64 * 110592
ST_OFF = 0x2000000

P_U, P_ARE, P_AIM, P_BRE, P_BIM, P_CRE, P_CIM, P_LDT = 16, 18, 20, 22, 24, 26, 28, 30
P_DSK, P_BX, P_W1, P_W2 = 32, 34, 36, 38
P_OUT, P_DBG, P_WS = 40, 42, 44
S_WAVE = 3
R_SY, R_DBG = 64, 68
S_NONCE, S_SPIN, S_M0W, S_D2 = 72, 73, 74, 75
R_W1 = 52
VPA = 231
DUMMY_L = 0x100000
S_XCC = 0
S_MIS = 18
MODE_L = 147456
RS_L = 151552
VW1 = 248
SPIN_MAX = 400000

KS_SZ = 23296
WT_L, WT_P = 93184, 8256
UB_L = 126208
CSP_L, CS_L = 144640, 148480
XH_L, XH_P = 147200, 4160
LDS_SZ = 163840
Q_EARLY = 21
NCODE = 5
NCW = int(os.environ.get("NCW", "0"))
SIW = int(os.environ.get("SIW", "4"))
CWN = eval(os.environ.get("CWN", "(26, 28, 32, 34)"))
POIN = int(os.environ.get("POIN", "35"))
H1P = int(os.environ.get("H1P", "0"))
PSLEEP = int(os.environ.get("PSLEEP", "0"))
SYT = os.environ.get("SYT", "1") == "1"
H1WN = eval(os.environ.get("H1WN", "[(i,28) for i in range(7)]"))
H1W = os.environ.get("H1W", "0") == "1"
DMAN = eval(os.environ.get("DMAN", "(6, 18, 30)"))
XTOUCH = os.environ.get("XTOUCH", "0") == "1"
W2Q = eval(os.environ.get("W2Q", "[]"))
STEARLY = os.environ.get("STEARLY", "0") == "1"
NODMA = os.environ.get("NODMA", "0") == "1"
POISON = os.environ.get("POISON", "1") == "1"
GATHER = eval(os.environ.get("GATHER", "{-1:[0,1,2,3,4], 6:[5], 10:[6], 14:[7]}"))
HLD = os.environ.get("HLD", "sc1")
LOG2E = 1.4426950408889634


def f32(x):
    return "0x%08x" % struct.unpack("<I", struct.pack("<f", x))[0]


def stamp(a, i):
    if (os.environ.get("CST", "0") == "1" or os.environ.get("KST", "0") == "1") and getattr(a, "in_gemm", False) and i in (9, 10, 11, 12):
        return
    if STAMPS:
        if os.environ.get("STAMPCLK", "0") == "1":
            a.s_memtime(S(76 + 2 * i, 2))
        else:
            a.s_memrealtime(S(76 + 2 * i, 2))


def srd(a, d, p, off, size):
    if off == 0:
        a.s_mov_b32(S(d), S(p))
        a.s_mov_b32(S(d + 1), S(p + 1))
    else:
        a.s_add_u32(S(d), S(p), off if isinstance(off, str) else hex(off))
        a.s_addc_u32(S(d + 1), S(p + 1), 0)
    a.s_mov_b32(S(d + 2), hex(size))
    a.s_mov_b32(S(d + 3), "0x20000")


def srd2(a, d, p, off, soff, size):
    a.s_add_u32(S(d), S(p), soff)
    a.s_addc_u32(S(d + 1), S(p + 1), 0)
    a.s_add_u32(S(d), S(d), hex(off))
    a.s_addc_u32(S(d + 1), S(d + 1), 0)
    a.s_mov_b32(S(d + 2), hex(size))
    a.s_mov_b32(S(d + 3), "0x20000")


def cmuln(a, dsts, xs, ws, tmps):
    n = len(dsts)
    for i in range(n):
        a.v_pk_mul_f32(V(tmps[i], 2), V(xs[i], 2), V(ws[i], 2), mods="op_sel:[0,0] op_sel_hi:[1,0]")
    for i in range(n):
        a.v_pk_fma_f32(V(dsts[i], 2), V(xs[i], 2), V(ws[i], 2), V(tmps[i], 2), mods="op_sel:[1,1,0] op_sel_hi:[0,1,1] neg_lo:[1,0,0]")


def rnd2(a, x0, x1, t):
    a.v_cvt_pk_bf16_f32(V(t), V(x0), V(x1))
    a.v_lshlrev_b32(V(x0), 16, V(t))
    a.v_and_b32(V(x1), "0xffff0000", V(t))


def ln_stats2(a, s1, s2, rs, nm, t0, t1, n):
    inv = f32(1.0 / n)
    for i in range(2):
        a.v_mul_f32(V(s1[i]), inv, V(s1[i]))
    for i in range(2):
        a.v_mul_f32(V(s2[i]), inv, V(s2[i]))
    for i in range(2):
        a.v_fma_f32(V(s2[i]), "-" + V(s1[i]), V(s1[i]), V(s2[i]))
    for i in range(2):
        a.v_max_f32(V(s2[i]), 0, V(s2[i]))
    rnd2(a, s2[0], s2[1], t0)
    rnd2(a, s1[0], s1[1], t1)
    for i in range(2):
        a.v_add_f32(V(s2[i]), f32(1e-5), V(s2[i]))
    rnd2(a, s2[0], s2[1], t0)
    for i in range(2):
        a.v_sqrt_f32(V(s2[i]), V(s2[i]))
    rnd2(a, s2[0], s2[1], t0)
    for i in range(2):
        a.v_rcp_f32(V(rs[i]), V(s2[i]))
    for i in range(2):
        a.v_mul_f32(V(nm[i]), "-" + V(s1[i]), V(rs[i]))


_lab = [0]


def newlab(p):
    _lab[0] += 1
    return f"L{p}_{_lab[0]}"


def spin_branch(a, loop, done_fallthrough=True):
    out = newlab("to")
    a.s_sub_u32(S(S_SPIN), S(S_SPIN), 1)
    a.s_cmp_lt_i32(S(S_SPIN), 0)
    a.s_cbranch_scc1(out)
    a.s_cbranch_vccnz(loop)
    a.label(out)


def flag_loads(a, voff, base, count, dst):
    n = (count + 63) // 64
    t = None
    for q in range(n):
        t = a.buffer_load_dwordx2(V(dst + 2 * q, 2), V(voff + q), S(R_SY, 4), base, mods="offen sc1")
    return t


def xcc_mismatch(a, voff, count, dst, sacc):
    n = (count + 63) // 64
    a.s_and_b32(S(6), S(2), 7)
    for q in range(n):
        a.v_bfe_u32(V(dst + 2 * q), V(voff + q), 7, 3)
        a.v_cmp_eq_u32(S(48, 2), S(6), V(dst + 2 * q))
        a.v_cmp_ne_u32("vcc", S(S_XCC), V(dst + 2 * q + 1))
        a.s_and_b64(S(48, 2), S(48, 2), "vcc")
        a.s_or_b64(S(sacc, 2), S(sacc, 2), S(48, 2))


def flag_addr(a, voff, count, vlane):
    n = (count + 63) // 64
    for q in range(n):
        if q:
            a.v_add_u32(V(voff + q), 64 * q, V(vlane))
            a.v_min_u32(V(voff + q), count - 1, V(voff + q))
        else:
            a.v_min_u32(V(voff), count - 1, V(vlane))
        a.v_lshlrev_b32(V(voff + q), 7, V(voff + q))


def flag_check(a, dst, count):
    n = (count + 63) // 64
    for q in range(n):
        a.v_xor_b32(V(dst + 2 * q), S(S_NONCE), V(dst + 2 * q))
    for q in range(1, n):
        a.v_or_b32(V(dst), V(dst), V(dst + 2 * q))
    a.v_cmp_ne_u32("vcc", 0, V(dst))


def poll_flags(a, voff, base, count, dst, sleep=0):
    n = (count + 63) // 64
    lp, out = newlab("poll"), newlab("pollx")
    for q in range(n):
        a.s_mov_b64(S(32 + 2 * q, 2), -1)
    a.label(lp)
    for q in range(n):
        sk = newlab("pq")
        a.s_mov_b64("exec", S(32 + 2 * q, 2))
        if n > 1:
            a.s_cbranch_execz(sk)
        a.buffer_load_dwordx2(V(dst + 2 * q, 2), V(voff + q), S(R_SY, 4), base, mods="offen sc1")
        a.label(sk)
    a.s_mov_b64("exec", -1)
    a.wait(vm=0)
    for q in range(n):
        a.v_cmp_ne_u32(S(32 + 2 * q, 2), S(S_NONCE), V(dst + 2 * q))
    if n == 1:
        a.s_mov_b64("vcc", S(32, 2))
    else:
        a.s_or_b64("vcc", S(32, 2), S(34, 2))
        if n == 3:
            a.s_or_b64("vcc", "vcc", S(36, 2))
    if PSLEEP:
        a.s_cbranch_vccz(out)
        a.s_sleep(PSLEEP)
    spin_branch(a, lp)
    a.label(out)


def set_flag(a, soff, vt, sc="sc1"):
    skip = newlab("nf")
    a.s_cmp_lg_u32(S(S_WAVE), 0)
    a.s_cbranch_scc1(skip)
    a.v_mov_b32(V(vt + 2), 0)
    a.v_mov_b32(V(vt), S(S_NONCE))
    a.v_mov_b32(V(vt + 1), S(S_XCC))
    a.s_mov_b64("exec", 1)
    a.buffer_store_dwordx2(V(vt, 2), V(vt + 2), S(R_SY, 4), soff, mods=f"offen {sc}")
    a.s_mov_b64("exec", -1)
    a.label(skip)


def kgen_loads(a, s_d):
    VL = 1
    PR = 8
    a.s_lshl_b32(S(5), S(s_d), 8)
    a.v_lshl_add_u32(V(2), V(VL), 2, S(5))
    a.s_lshl_b32(S(5), S(s_d), 1)
    a.v_mov_b32(V(3), S(5))
    t_ldt = a.global_load_ushort(V(PR + 6), V(3), S(P_LDT, 2))
    for i, p in enumerate((P_ARE, P_AIM, P_BRE, P_BIM, P_CRE, P_CIM)):
        t_par = a.global_load_dword(V(PR + i), V(2), S(p, 2))
    t_dsk = a.global_load_ushort(V(PR + 7), V(3), S(P_DSK, 2))
    return t_ldt, t_dsk


def kgen(a, tks, s_lds, s_wt, hook):
    VL = 1
    PR = 8
    t_ldt, t_dsk = tks
    hook(-1)
    VW, VRA, VRB = 4, 5, 6
    a.v_lshl_add_u32(V(VW), V(VL), 3, S(s_lds))
    a.v_and_b32(V(16), 15, V(VL))
    a.v_lshrrev_b32(V(17), 4, V(VL))
    a.v_and_b32(V(18), 1, V(17))
    a.v_lshlrev_b32(V(18), 8, V(18))
    a.v_lshrrev_b32(V(19), 1, V(17))
    a.v_lshl_add_u32(V(18), V(19), 7, V(18))
    a.v_add_u32(V(18), S(s_lds), V(18))
    a.v_mul_u32_u24(V(19), 528, V(16))
    a.v_add_u32(V(VRA), V(18), V(19))
    a.v_min_u32(V(19), 8, V(16))
    a.v_mul_u32_u24(V(19), 528, V(19))
    a.v_add_u32(V(VRB), V(18), V(19))
    a.s_mov_b32(S(50), f32(LOG2E))
    a.s_mov_b32(S(51), f32(LOG2E - struct.unpack("<f", struct.pack("<f", LOG2E))[0]))
    a.s_mov_b32(S(52), f32(16.0))
    a.s_mov_b32(S(53), f32(16.0))
    a.s_mov_b32(S(54), f32(512.0))
    a.s_mov_b32(S(55), f32(512.0))
    TA1, TA2, TA3, TB3, TA4, TB4 = 224, 225, 226, 227, 228, 229
    TABO = 0
    a.s_add_u32(S(56), S(s_lds), TABO + 16)
    a.v_lshlrev_b32(V(TA1), 6, V(16))
    a.v_lshl_add_u32(V(TA1), V(17), 4, V(TA1))
    a.v_lshrrev_b32(V(TA2), 1, V(TA1))
    a.v_add_u32(V(TA1), S(56), V(TA1))
    a.v_add_u32(V(TA2), S(56), V(TA2))
    a.v_add_u32(V(TA2), 1024, V(TA2))
    a.v_cmp_eq_u32("vcc", 0, V(17))
    a.v_mov_b32(V(30), 8)
    a.v_mov_b32(V(31), 256)
    a.v_cndmask_b32(V(30), V(30), 16, "vcc")
    a.v_cndmask_b32(V(31), V(31), 8, "vcc")
    a.v_lshlrev_b32(V(TA3), 9, V(17))
    a.v_mad_u32_u24(V(TA3), V(30), V(16), V(TA3))
    a.v_add_u32(V(TA3), S(56), V(TA3))
    a.v_add_u32(V(TB3), V(TA3), V(31))
    a.v_lshl_add_u32(V(TA4), V(30), 4, V(TA3))
    a.v_add_u32(V(TB4), V(TA4), V(31))
    DT = 20
    a.wvm(t_ldt)
    a.v_lshlrev_b32(V(21), 16, V(PR + 6))
    a.v_mul_f32(V(22), S(50), V(21))
    a.v_fma_f32(V(23), V(21), S(50), "-" + V(22))
    a.v_fma_f32(V(23), V(21), S(51), V(23))
    a.v_exp_f32(V(22), V(22))
    a.v_mul_f32(V(23), f32(0.6931471805599453), V(23))
    a.v_fma_f32(V(22), V(22), V(23), V(22))
    a.v_cvt_pk_bf16_f32(V(22), V(22), V(22))
    a.v_lshlrev_b32(V(DT), 16, V(22))
    a.v_mul_f32(V(22), S(50), V(DT))
    a.v_mul_f32(V(23), "0.15915494", V(DT))
    Z = [24, 26]; B = [28, 30]; C = [32, 34]
    a.wvm(t_dsk)
    stamp(a, 1)
    hook(100)
    for base, pi in ((Z, 0), (B, 2), (C, 4)):
        for comp in range(2):
            a.v_lshlrev_b32(V(base[0] + comp), 16, V(PR + pi + comp))
            a.v_and_b32(V(base[1] + comp), "0xffff0000", V(PR + pi + comp))
    for s in range(2):
        a.v_pk_mul_f32(V(Z[s], 2), V(Z[s], 2), V(22, 2))
    for s in range(2):
        a.v_pk_mul_f32(V(B[s], 2), V(B[s], 2), V(DT, 2), mods="op_sel_hi:[1,0]")
    T = [36, 38]
    T2 = [216, 218]
    XC = [40, 42]
    W1 = [44, 46]; W16 = [48, 50]; W512 = [52, 54]
    ARG = [56, 58, 60, 62, 64, 66]
    EX = [68, 70, 72, 74, 76, 78]
    dsts = [W1[0], W1[1], W16[0], W16[1], W512[0], W512[1]]
    for s in range(2):
        a.v_pk_mul_f32(V(ARG[2 + s], 2), V(Z[s], 2), S(52, 2))
        a.v_pk_mul_f32(V(ARG[4 + s], 2), V(Z[s], 2), S(54, 2))
    cmuln(a, XC, C, B, T)
    srcs = [Z[0], Z[1], ARG[2], ARG[3], ARG[4], ARG[5]]
    for i in range(6):
        a.v_fract_f32(V(ARG[i] + 1), V(srcs[i] + 1))
    for s in range(2):
        a.v_xor_b32(V(XC[s] + 1), "0x80000000", V(XC[s] + 1))
    for i in range(6):
        a.v_exp_f32(V(EX[i]), V(srcs[i]))
        a.v_cos_f32(V(dsts[i]), V(ARG[i] + 1))
        a.v_sin_f32(V(dsts[i] + 1), V(ARG[i] + 1))
    for i in range(6):
        neg = " neg_hi:[1,0]" if i in (2, 3) else ""
        a.v_pk_mul_f32(V(dsts[i], 2), V(dsts[i], 2), V(EX[i], 2), mods="op_sel_hi:[1,0]" + neg)
    PK = [80, 82, 84, 86]
    npk = [0]

    def put_rows(rows):
        ps = []
        for row, r in rows:
            p = PK[npk[0] % 4]
            npk[0] += 1
            ps.append(p)
            a.v_cvt_pk_bf16_f32(V(p), V(r[0]), V(r[0] + 1))
            a.v_cvt_pk_bf16_f32(V(p + 1), V(r[1]), V(r[1] + 1))
        for (row, r), p in zip(rows, ps):
            a.ds_write_b64(V(VW), V(p, 2), mods=f"offset:{row*528}")

    KST = os.environ.get("KST", "0") == "1"
    if KST:
        stamp(a, 9)
    XR0 = 25
    a.v_mov_b32(V(220), "0x3f80")
    a.v_mov_b32(V(221), "0x3f80")
    a.ds_write_b64(V(VW), V(220, 2), mods="offset:0")
    E4 = [56, 58]; E8 = [60, 62]; E12 = [64, 66]; CUR = [68, 70]
    E1024 = [72, 74]; E1536 = [76, 78]
    yprog = [(1, W1, None, None)]
    cur = W1
    for j in range(2, 16):
        dst = {4: E4, 8: E8, 12: E12}.get(j, CUR)
        yprog.append((j, dst, cur, W1))
        cur = dst
    yprog += [(16, W512, None, None), (17, CUR, W512, E4), (18, CUR, W512, E8), (19, CUR, W512, E12),
              (20, E1024, W512, W512), (21, CUR, E1024, E8), (22, E1536, E1024, W512), (23, CUR, E1536, E8), (24, CUR, E1024, E1024)]
    YA, YB, XF, XF2 = 88, 120, 152, 184
    ACC = 8
    reads = []
    for i in range(32):
        ds_, xs_, ws_, ts_, rows = [], [], [], [], []
        if i:
            ds_ += XC; xs_ += XC; ws_ += W16; ts_ += T
        rows.append((XR0 + i if i < 16 else i - 16, XC))
        if yprog:
            row, dst, x, w = yprog.pop(0)
            if x is not None:
                ds_ += dst; xs_ += x; ws_ += w; ts_ += T2
            rows.append((row, dst))
        cmuln(a, ds_, xs_, ws_, ts_)
        put_rows(rows)
        hook(i)
        if i == 14:
            for m in range(4):
                a.ds_read_b128(V(YA + 4 * m, 4), V(VRA), mods=f"offset:{16*m}")
        if i == 15:
            for m in range(4, 8):
                a.ds_read_b128(V(YA + 4 * m, 4), V(VRA), mods=f"offset:{16*m}")
        if i == 16:
            reads += [(XF + 4 * m, VRA, XR0 * 528 + 16 * m) for m in range(8)]
        if i == 23:
            reads += [(YB + 4 * m, VRB, 16 * 528 + 16 * m) for m in range(8)]
        for _ in range(2):
            if reads:
                d, ad, off = reads.pop(0)
                a.ds_read_b128(V(d, 4), V(ad), mods=f"offset:{off}")
    assert not reads and not yprog
    if KST:
        stamp(a, 10)
    t_pre = a.nds
    tk = []
    for m in range(8):
        tk.append(a.ds_read_b128(V(XF2 + 4 * m, 4), V(VRA), mods=f"offset:{16*m}"))
    hook(200)
    a.v_lshlrev_b32(V(32), 16, V(PR + 7))
    a.v_cmp_eq_u32("vcc", 0, V(VL))
    a.v_cndmask_b32(V(32), 0, V(32), "vcc")
    a.v_mov_b32(V(33), 0)
    a.v_mov_b32(V(34), S(56))
    a.wds(t_pre)
    for m in range(8):
        a.v_mfma_f32_16x16x32_bf16(V(ACC, 4), V(YA + 4 * m, 4), V(XF + 4 * m, 4), V(ACC, 4) if m else 0)
        a.v_mfma_f32_16x16x32_bf16(V(ACC + 8, 4), V(YB + 4 * m, 4), V(XF + 4 * m, 4), V(ACC + 8, 4) if m else 0)
    a.wait(lgkm=0)
    for m in range(8):
        a.v_mfma_f32_16x16x32_bf16(V(ACC + 4, 4), V(YA + 4 * m, 4), V(XF2 + 4 * m, 4), V(ACC + 4, 4) if m else 0)
        a.v_mfma_f32_16x16x32_bf16(V(ACC + 12, 4), V(YB + 4 * m, 4), V(XF2 + 4 * m, 4), V(ACC + 12, 4) if m else 0)
        if m == 4:
            a.v_add_f32(V(ACC), V(ACC), V(32))
            a.v_subrev_u32(V(38), 4, V(34))
            a.ds_write_b32(V(38), V(33))
            a.ds_write_b128(V(TA1), V(ACC, 4))
            a.ds_write_b64(V(TA3), V(ACC + 8, 2), mods=f"offset:{384*4}")
            a.ds_write_b64(V(TB3), V(ACC + 10, 2), mods=f"offset:{384*4}")
    if KST:
        stamp(a, 11)
    a.v_lshl_add_u32(V(35), V(VL), 4, S(56))
    a.v_lshl_add_u32(V(36), V(VL), 3, S(56))
    a.v_add_u32(V(37), 2048, V(36))
    a.v_subrev_u32(V(38), 4, V(35))
    a.v_lshl_add_u32(V(60), V(VL), 4, S(s_wt))
    a.v_lshl_add_u32(V(61), V(VL), 5, S(s_wt))
    a.v_lshl_add_u32(V(62), V(VL), 6, S(s_wt))
    R0, R0P, R1, R1P, R2, R3 = 40, 44, 48, 45, 52, 56
    a.ds_read_b128(V(R0, 4), V(35))
    t0 = a.ds_read_b32(V(R0P), V(38))
    a.ds_write2_b32(V(TA2), V(ACC + 4), V(ACC + 6), mods="offset0:0 offset1:1")
    a.ds_write_b64(V(TA4), V(ACC + 12, 2), mods=f"offset:{384*4}")
    a.ds_write_b64(V(TB4), V(ACC + 14, 2), mods=f"offset:{384*4}")
    a.ds_read2_b64(V(R1, 4), V(36), mods="offset0:128 offset1:129")
    t1 = a.ds_read_b32(V(R1P), V(34), mods=f"offset:{255*4}")
    t2 = a.ds_read2_b64(V(R2, 4), V(36), mods="offset0:192 offset1:193")
    t3 = a.ds_read2_b64(V(R3, 4), V(37), mods="offset0:0 offset1:1")

    def emit_out(region, q, vreg):
        voff = (60, 60, 61, 62)[region]
        imm = 64 + (0, 1024, 2048, 4096)[region] + 16 * q
        a.ds_write_b128(V(voff), V(vreg, 4), mods=f"offset:{imm}")

    OUT = 88
    cv = lambda d, x, y: a.v_cvt_pk_bf16_f32(V(d), V(x), V(y))
    a.wds(t0)
    if KST:
        stamp(a, 12)
    cv(OUT, R0, R0P); cv(OUT + 1, R0 + 1, R0); cv(OUT + 2, R0 + 2, R0 + 1); cv(OUT + 3, R0 + 3, R0 + 2)
    emit_out(0, 0, OUT)
    a.wds(t1)
    a.v_cndmask_b32(V(R1P), V(R1), V(R1P), "vcc")
    o = OUT + 4
    cv(o + 1, R1, R1); cv(o + 2, R1 + 1, R1); cv(o + 3, R1 + 2, R1 + 1); cv(o, R1, R1P)
    emit_out(1, 0, o)
    a.wds(t2)
    A_, B_, C_ = R2, R2 + 1, R2 + 2
    o = OUT + 8
    for i, (x, y) in enumerate([(A_, A_), (A_, A_), (A_, A_), (B_, A_), (B_, B_), (B_, B_), (C_, B_), (C_, C_)]):
        cv(o + i, x, y)
    emit_out(2, 0, o); emit_out(2, 1, o + 4)
    a.wds(t3)
    A_, B_, C_ = R3, R3 + 1, R3 + 2
    o = OUT + 16
    seq = [(A_, A_)] * 5 + [(B_, A_)] + [(B_, B_)] * 6 + [(C_, B_)] + [(C_, C_)] * 3
    for i, (x, y) in enumerate(seq):
        cv(o + i, x, y)
        if i % 4 == 3:
            emit_out(3, i // 4, o + i - 3)


def calc_ct(a, sd):
    a.s_and_b32(S(sd), S(2), 7)
    a.s_lshl_b32(S(sd), S(sd), 4)
    a.s_add_u32(S(sd), S(sd), S(2))
    a.s_bfe_u32(S(sd), S(sd), "0x40003")


def w1_addr(a, t0, t1):
    a.s_mov_b32(S(48), 3456 - 224)
    calc_ct(a, 49)
    a.s_bitcmp1_b32(S(49), 0)
    a.s_cselect_b32(S(49), 0, 208)
    a.v_mov_b32(V(VPA), DUMMY_L)
    for q in range(7):
        a.v_add_u32(V(t0), 256 * q, V(0))
        a.v_mul_u32_u24(V(t1), 4682, V(t0))
        a.v_lshrrev_b32(V(t1), 16, V(t1))
        a.v_lshlrev_b32(V(t0), 4, V(t0))
        a.v_mad_u32_u24(V(VW1 + q), V(t1), S(48), V(t0))
        a.v_mul_u32_u24(V(t1), 224, V(t1))
        a.v_sub_u32(V(t1), V(t0), V(t1))
        a.v_cmp_eq_u32("vcc", S(49), V(t1))
        a.v_cndmask_b32(V(VPA), V(VPA), V(t0), "vcc")


def w1_patch(a, groups, vt, VPA=31):
    a.v_mov_b32(V(vt), "0x3f80")
    a.v_mov_b32(V(vt + 1), 0)
    a.s_sub_u32(S(6), 8, S(S_D2))
    a.v_cmp_gt_u32("vcc", DUMMY_L, V(VPA))
    a.v_add_u32(V(vt + 2), S(6), V(VPA))
    a.s_and_saveexec_b64(S(48, 2), "vcc")
    cur = 0
    for g in groups:
        off = g * 28672 - cur
        if off > 65535:
            a.v_add_u32(V(vt + 2), off, V(vt + 2))
            cur = g * 28672
            off = 0
        a.ds_write_b64(V(vt + 2), V(vt, 2), mods=f"offset:{off}")
    a.s_mov_b64("exec", S(48, 2))
    a.v_mov_b32(V(vt + 2), 143360)
    a.ds_write_b64(V(vt + 2), V(vt, 2))


def w1_srd(a):
    calc_ct(a, 6)
    a.s_mul_i32(S(6), S(6), 216)
    a.s_and_b32(S(S_D2), S(6), 15)
    a.s_sub_u32(S(6), S(6), S(S_D2))
    a.s_add_u32(S(R_W1), S(P_W1), S(6))
    a.s_addc_u32(S(R_W1 + 1), S(P_W1 + 1), 0)
    a.s_sub_u32(S(R_W1 + 2), 640 * 3456, S(6))
    a.s_mov_b32(S(R_W1 + 3), "0x20000")
    a.s_lshl_b32(S(S_M0W), S(S_WAVE), 10)


def w1_dma(a, q, perm=None, part=None):
    g = q // 7
    if part == 1:
        pass
    elif perm is None or perm[g] == g:
        a.s_add_u32("m0", S(S_M0W), 4096 * q)
        a.s_mov_b32(S(63), g * 128 * 3456)
    else:
        if q % 7 == 0:
            a.s_bitcmp1_b32(S(2), 7)
            a.s_cselect_b32(S(50), perm[g], g)
            a.s_mul_i32(S(51), S(50), 7 * 4096)
            a.s_add_u32(S(51), S(51), S(S_M0W))
            a.s_mul_i32(S(50), S(50), 128 * 3456)
        a.s_add_u32("m0", S(51), 4096 * (q % 7))
        a.s_mov_b32(S(63), S(50))
    if part == 0:
        return
    return a.buffer_load_dwordx4(V(VW1 + q % 7), S(R_W1, 4), S(63), mods="offen lds")


def w2_quarter_setup(a, vt):
    srd(a, 24, P_WS, W2P_OFF, W2P_SZ)
    a.s_lshr_b32(S(6), S(2), 3)
    a.s_mul_i32(S(6), S(6), 540 * 128)
    a.v_min_u32(V(vt), 179, V(0))
    a.v_lshl_add_u32(V(vt), V(vt), 7, S(6))


def w2_quarter_load(a, vt, i, dst):
    a.s_mov_b32(S(63), i * 180 * 128)
    a.buffer_load_dword(V(dst), V(vt), S(24, 4), S(63), mods="offen sc1")


def h1_prewrite_setup(a, vt):
    calc_ct(a, 6)
    a.s_mul_i32(S(6), S(6), 27 * 256)
    a.s_and_b32(S(7), S(2), 7)
    a.s_lshl_b32(S(7), S(7), 1)
    a.s_bfe_u32(S(5), S(2), "0x10007")
    a.s_add_u32(S(7), S(7), S(5))
    a.s_lshl_b32(S(7), S(7), 2)
    a.s_add_u32(S(7), S(7), S(S_WAVE))
    a.s_mul_i32(S(7), S(7), 110592)
    a.s_add_u32(S(6), S(6), S(7))
    srd2(a, 28, P_WS, H1_OFF, S(6), 6912)
    a.v_lshlrev_b32(V(vt), 4, V(1))


def h1_prewrite(a, vt, vd, i):
    a.s_mov_b32(S(63), 1024 * i)
    a.buffer_store_dwordx4(V(vd, 4), V(vt), S(28, 4), S(63), mods="offen sc1")


def w2_srd(a):
    a.s_bfe_u32(S(7), S(2), "0x30004")
    a.s_mul_i32(S(7), S(7), 270 * 1024)
    srd2(a, 20, P_WS, W2P_OFF, S(7), 270 * 1024)


def conv_first(a):
    S_DG = 60
    a.s_and_b32(S(6), S(2), 7)
    a.s_mul_i32(S(6), S(6), 20)
    a.s_lshr_b32(S(7), S(2), 3)
    a.s_add_u32(S(S_DG), S(6), S(7))
    a.s_lshl_b32(S(6), S(S_DG), 2)
    a.s_add_u32(S(6), S(6), S(S_WAVE))
    return kgen_loads(a, 6)


def h_store_addr(a, vj, vg, voff):
    a.v_mul_u32_u24(V(voff), 40960, V(vg))
    a.v_lshl_add_u32(V(voff), V(vj), 4, V(voff))
    srd(a, 12, P_WS, H4_OFF, H4_SZ)
    a.s_mul_i32(S(58), S(S_WAVE), 16 * 40960)
    a.s_lshl_b32(S(57), S(60), 8)
    a.s_add_u32(S(58), S(58), S(57))


def conv_role(a, ktk):
    VL = 1
    S_DG, S_KS, S_WT = 60, 61, 59
    a.s_mul_i32(S(S_KS), S(S_WAVE), KS_SZ)
    a.s_mul_i32(S(S_WT), S(S_WAVE), WT_P)
    a.s_add_u32(S(S_WT), S(S_WT), WT_L)
    XR = 232
    tk = {}

    def hook(i):
        if i < 0:
            srd(a, 8, P_U, 0, 2048 * 640 * 2)
            a.v_mul_u32_u24(V(7), 10240, V(0))
            a.s_lshl_b32(S(6), S(S_DG), 3)
            a.s_add_u32(S(7), S(6), 5120)
            if XTOUCH:
                a.s_lshr_b32(S(46), S(2), 3)
                a.s_mul_i32(S(46), S(46), 103 * 1280)
                a.s_and_b32(S(47), S(2), 7)
                a.s_mul_i32(S(47), S(47), 160)
                a.s_add_u32(S(46), S(46), S(47))
                a.v_lshrrev_b32(V(24), 1, V(0))
                a.v_min_u32(V(24), 102, V(24))
                a.v_mul_u32_u24(V(24), 1280, V(24))
                a.v_and_b32(V(25), 1, V(0))
                a.v_mul_u32_u24(V(25), 156, V(25))
                a.v_add_u32(V(24), V(24), V(25))
                a.buffer_load_dword(V(231), V(24), S(8, 4), S(46), mods="offen")
            if -1 in GATHER:
                a.s_barrier()
                for e in GATHER[-1]:
                    tk["x"] = a.buffer_load_dwordx2(V(XR + 2 * e, 2), V(7), S(8, 4), S(6 if e < 4 else 7), mods=f"offen offset:{(e%4)*1280}")
            w1_addr(a, 24, 25)
        elif i == 200:
            a.v_lshlrev_b32(V(2), 6, V(0))
            a.v_mov_b32(V(3), 0)
            if STEARLY:
                stat_loads()
        else:
            for e in GATHER.get(i, []):
                tk["x"] = a.buffer_load_dwordx2(V(XR + 2 * e, 2), V(7), S(8, 4), S(6 if e < 4 else 7), mods=f"offen offset:{(e%4)*1280}")

    SR = 64

    def stat_loads():
        for i in range(4):
            a.buffer_load_dwordx4(V(SR + 4 * i, 4), V(2), S(R_SY, 4), 0, mods=f"offen offset:{16*i} sc1")
        a.buffer_load_dword(V(24), V(3), S(R_DBG, 4), 0, mods="offen sc1")

    kgen(a, ktk, S_KS, S_WT, hook)
    stamp(a, 3)
    if not STEARLY:
        stat_loads()
    a.v_mov_b32(V(31), V(VPA))
    a.v_mov_b32(V(25), 0)
    a.s_mul_i32(S(5), S(S_WAVE), 4608)
    a.s_add_u32(S(5), S(5), UB_L)
    a.v_lshl_add_u32(V(26), V(VL), 2, S(5))
    a.ds_write_b32(V(26), V(25))
    a.ds_write_b32(V(26), V(25), mods="offset:2304")
    a.v_and_b32(V(27), 15, V(VL))
    a.v_lshrrev_b32(V(28), 4, V(VL))
    a.v_lshl_add_u32(V(29), V(27), 2, S(S_WT))
    a.ds_write_b32(V(29), V(25))
    VA, VBQ = 32, 40
    a.v_lshl_add_u32(V(VA), V(VL), 2, S(S_WT))
    for c in range(1, 8):
        a.v_add_u32(V(VA + c), 1024 * c, V(VA))
    a.v_sub_u32(V(VBQ), V(27), V(28))
    a.v_add_u32(V(VBQ), 3, V(VBQ))
    a.v_lshl_add_u32(V(VBQ), V(VBQ), 4, S(5))
    a.s_mov_b32(S(46), "0x05040100")
    a.s_mov_b32(S(47), "0x07060302")
    XS, F = 48, 176
    a.wvm(tk["x"])
    stamp(a, 2)
    for c in range(4):
        for k in range(4):
            a.v_perm_b32(V(XS + 4 * c + k), V(XR + 2 * (2 * k + 1) + (c >> 1)), V(XR + 2 * (2 * k) + (c >> 1)), S(46 + (c & 1)))
    a.v_lshlrev_b32(V(41), 4, V(0))
    a.v_add_u32(V(41), XH_L, V(41))
    for c in range(4):
        a.ds_write_b128(V(41), V(XS + 4 * c, 4), mods=f"offset:{c*XH_P}")
    for i in range(16):
        a.v_lshlrev_b32(V(F + 2 * i), 16, V(XS + i))
        a.v_and_b32(V(F + 2 * i + 1), "0xffff0000", V(XS + i))
    a.v_and_b32(V(42), 1, V(0))
    a.v_mul_u32_u24(V(42), 2304, V(42))
    a.v_lshrrev_b32(V(43), 1, V(0))
    a.v_lshl_add_u32(V(42), V(43), 4, V(42))
    a.v_add_u32(V(42), UB_L + 256, V(42))
    h_store_addr(a, 27, 28, 255)
    for q in range(4):
        a.v_mov_b32(V(212 + q), -1)
    OPS = [112, 48]
    ACC = 216
    XQ, XFL = 8, 176
    subs = [(g, h) for g in range(4) for h in range(2)]

    def loadsA(si):
        g, h = subs[si]
        base = OPS[si % 2]
        out = []
        for c in range(8):
            o = 8 + 64 * g + 8 * h
            out.append(("ds_read2_b32", (V(base + 4 * c, 2), V(VA + c)), f"offset0:{o} offset1:{o-2}"))
            out.append(("ds_read2_b32", (V(base + 4 * c + 2, 2), V(VA + c)), f"offset0:{o-4} offset1:{o-6}"))
        return out

    def loadsB(si):
        g, h = subs[si]
        base = OPS[si % 2]
        par = 1 - h
        return [("ds_read_b128", (V(base + 32 + 4 * c, 4), V(VBQ)), f"offset:{par*2304 + (13 + 16*c - 4*g)*16}") for c in range(8)]

    a.s_mul_i32(S(6), S(S_WAVE), XH_P)
    a.s_add_u32(S(6), S(6), XH_L)
    a.v_lshlrev_b32(V(44), 5, V(27))
    a.v_lshl_add_u32(V(44), V(28), 3, V(44))
    a.v_add_u32(V(44), S(6), V(44))
    flag_addr(a, 45, 96, VL)
    w1_srd(a)
    a.s_mov_b32(S(62), FRP)
    w2_srd(a)
    a.v_lshlrev_b32(V(29), 4, V(VL))
    a.s_mul_i32(S(18), S(S_WAVE), 5 * 1024)
    a.v_bfe_u32(V(47), V(VL), 2, 2)
    a.v_mul_u32_u24(V(47), XH_P, V(47))
    a.v_lshl_add_u32(V(47), V(28), 6, V(47))
    a.v_and_b32(V(30), 3, V(VL))
    a.v_lshl_add_u32(V(47), V(30), 3, V(47))
    a.s_lshl_b32(S(6), S(S_WAVE), 10)
    a.s_add_u32(S(6), S(6), XH_L)
    a.v_add_u32(V(47), S(6), V(47))
    for op, args, mods in loadsA(0):
        a.I(op, *args, mods=mods)
    lp, first = newlab("st"), newlab("stf")
    a.s_branch(first)
    a.label(lp)
    stat_loads()
    a.label(first)
    a.wait(vm=0)
    a.v_readfirstlane_b32(S(S_NONCE), V(24))
    a.v_min3_u32(V(25), V(SR + 1), V(SR + 3), V(SR + 5))
    a.v_max3_u32(V(26), V(SR + 1), V(SR + 3), V(SR + 5))
    a.v_min3_u32(V(25), V(25), V(SR + 7), V(SR + 9))
    a.v_max3_u32(V(26), V(26), V(SR + 7), V(SR + 9))
    a.v_min3_u32(V(25), V(25), V(SR + 11), V(SR + 13))
    a.v_max3_u32(V(26), V(26), V(SR + 11), V(SR + 13))
    a.v_min3_u32(V(25), V(25), V(SR + 15), V(24))
    a.v_max3_u32(V(26), V(26), V(SR + 15), V(24))
    a.v_max_u32(V(26), 1, V(26))
    a.v_cmp_ne_u32("vcc", V(25), V(26))
    spin_branch(a, lp)
    stamp(a, 4)
    RS, NM = 96, 104
    for e in range(8):
        a.v_and_b32(V(RS + e), "0xffff0000", V(SR + 2 * e))
        a.v_lshlrev_b32(V(NM + e), 16, V(SR + 2 * e))
    for e in range(8):
        a.v_rcp_f32(V(RS + e), V(RS + e))
    for k in range(4):
        a.v_pk_mul_f32(V(NM + 2 * k, 2), V(NM + 2 * k, 2), V(RS + 2 * k, 2), mods="neg_lo:[1,0] neg_hi:[1,0]")
    for c in range(4):
        for k in range(4):
            f = F + 2 * (4 * c + k)
            a.v_pk_fma_f32(V(f, 2), V(f, 2), V(RS + 2 * k, 2), V(NM + 2 * k, 2))
        for k in range(4):
            f = F + 2 * (4 * c + k)
            a.v_cvt_pk_bf16_f32(V(XS + 4 * c + k), V(f), V(f + 1))
        a.ds_write_b128(V(42), V(XS + 4 * c, 4), mods=f"offset:{c*4608}")
    a.wait(lgkm=0)
    a.s_barrier()
    stamp(a, 5)
    for op, args, mods in loadsB(0):
        a.I(op, *args, mods=mods)
    started = set()
    nq = 0
    valu = []
    ncw = 0
    for si in range(8):
        base = OPS[si % 2]
        nxt = []
        if si < 7:
            la, lb = loadsA(si + 1), loadsB(si + 1)
            for c in range(8):
                nxt += [la[2 * c], la[2 * c + 1], lb[c]]
        if si == 0:
            nxt += [("ds_read_b64", (V(XQ + 2 * T, 2), V(44)), f"offset:{512*T}") for T in range(8)]
        if si == 1:
            for i in range(16):
                valu.append(("v_lshlrev_b32", (V(XFL + 2 * i), 16, V(XQ + i))))
                valu.append(("v_and_b32", (V(XFL + 2 * i + 1), "0xffff0000", V(XQ + i))))
        a.wait(lgkm=0)
        if os.environ.get("CST", "0") == "1":
            stamp(a, {0: 1, 1: 2, 2: 3, 3: 4, 4: 9, 5: 10, 6: 11, 7: 12}[si])
        if si >= 5:
            order = [(c, T - c) for T in range(7, -1, -1) for c in range(T + 1)]
        else:
            order = [(c, gp) for c in range(8) for gp in range(8 - c)]
        addT = {3: (31, [0, 1]), 4: (27, [2, 3]), 5: (24, [7, 6]), 6: (27, [5, 4])}.get(si)
        fin = []
        for n, (c, gp) in enumerate(order):
            T = c + gp
            a.v_mfma_f32_16x16x32_bf16(V(ACC + 4 * T, 4), V(base + 4 * c, 4), V(base + 32 + 4 * gp, 4), V(ACC + 4 * T, 4) if T in started else 0)
            started.add(T)
            if si == SIW and n == 20 and NCW:
                a.wvm(t_rp0)
                flag_check(a, 208, 96)
                a.s_cmp_eq_u64("vcc", 0)
                a.s_cselect_b32(S(22), S(22), 0)
            if addT and n == addT[0]:
                assert not valu
                valu += [("v_add_f32", (V(ACC + 4 * TT + q), V(ACC + 4 * TT + q), V(XFL + 4 * TT + q))) for TT in addT[1] for q in range(4)]
            if si == 7 and T < 7 and c == min(4, T):
                TT = T + 1
                p = 144 + 2 * TT
                fin += [("v_cvt_pk_bf16_f32", (V(p), V(ACC + 4 * TT), V(ACC + 4 * TT + 1)), ""), ("v_cvt_pk_bf16_f32", (V(p + 1), V(ACC + 4 * TT + 2), V(ACC + 4 * TT + 3)), ""),
                        ("ds_write_b64", (V(44), V(p, 2)), f"offset:{512*TT}")]
            if n + 1 in DMAN and nq < Q_EARLY:
                w1_dma(a, nq, perm=[1, 2, 0], part=0)
            if n in DMAN and nq < Q_EARLY:
                w1_dma(a, nq, perm=[1, 2, 0], part=1); nq += 1
            elif nxt:
                op, args, mods = nxt.pop(0)
                a.I(op, *args, mods=mods)
            elif n == POIN and 1 <= si <= 4:
                a.s_add_u32(S(57), S(58), 4 * (si - 1) * 40960)
                t_poi = a.buffer_store_dwordx4(V(212, 4), V(255), S(12, 4), S(57), mods="offen sc1")
            elif si == SIW - 1 and n in (27, 29) and NCW:
                t_rp0 = a.buffer_load_dwordx2(V(208 + n - 27, 2), V(45 + (n - 27) // 2), S(R_SY, 4), S(62), mods="offen sc1")
            elif si >= SIW and n in CWN and ncw < NCW:
                s_, t_ = divmod(ncw, 5)
                if t_ in (0, 4):
                    a.s_add_u32(S(19), S(18), s_ * 20 * 1024 + (4096 if t_ else 0))
                a.buffer_load_dwordx4(A(56 + 4 * ncw, 4), V(29), S(20, 4), S(19), mods=f"offen offset:{1024*(t_%4)} sc1")
                ncw += 1
            elif si == 7 and n in (1, 3):
                t_rp = a.buffer_load_dwordx2(V(208 + n - 1, 2), V(45 + n // 2), S(R_SY, 4), S(62), mods="offen sc1")
            elif fin:
                op, args, mods = fin.pop(0)
                a.I(op, *args, mods=mods)
            else:
                for _ in range(2):
                    if valu:
                        op, args = valu.pop(0)
                        a.I(op, *args)
        assert si < 3 or not valu, si
        assert not nxt
    assert nq == Q_EARLY and ncw == NCW, (nq, ncw)
    stamp(a, 6)
    p = 144
    fin += [("v_cvt_pk_bf16_f32", (V(p), V(ACC), V(ACC + 1)), ""), ("v_cvt_pk_bf16_f32", (V(p + 1), V(ACC + 2), V(ACC + 3)), ""), ("ds_write_b64", (V(44), V(p, 2)), "offset:0")]
    for op, args, mods in fin:
        a.I(op, *args, mods=mods)
    a.wvm(t_poi)
    a.wait(lgkm=0)
    a.s_barrier()
    HO = 64
    tks = []
    for i in range(4):
        a.ds_read_b64_tr_b16(V(HO + 4 * i, 2), V(47), mods=f"offset:{256*i}")
        tks.append(a.ds_read_b64_tr_b16(V(HO + 4 * i + 2, 2), V(47), mods=f"offset:{256*i+32}"))
    for i in range(4):
        a.wds(tks[i])
        a.s_add_u32(S(7), S(58), 4 * i * 40960)
        t_st = a.buffer_store_dwordx4(V(HO + 4 * i, 4), V(255), S(12, 4), S(7), mods="offen sc1")
    a.s_lshl_b32(S(6), S(2), 7)
    a.s_add_u32(S(6), S(6), FH)
    if not POISON:
        a.wvm(t_st)
    a.s_barrier()
    set_flag(a, S(6), 10)
    stamp(a, 7)
    a.nvm -= 1
    for q in range(Q_EARLY, 35):
        w1_dma(a, q, perm=[0, 1, 2, 4, 3])
    a.wvm(t_rp)
    ok = newlab("rpok")
    flag_check(a, 208, 96)
    a.s_cbranch_vccz(ok)
    poll_flags(a, 45, S(62), 96, 208)
    a.label(ok)


def repack_addr(a, vo):
    a.s_mov_b32(S(48), 1280 - 160)
    for i in range(5):
        a.v_add_u32(V(4), 64 * i, V(1))
        a.v_mul_u32_u24(V(3), 6554, V(4))
        a.v_lshrrev_b32(V(3), 16, V(3))
        a.v_lshlrev_b32(V(4), 4, V(4))
        a.v_mad_u32_u24(V(vo + i), V(3), S(48), V(4))
    a.v_lshrrev_b32(V(4), 2, V(1))
    a.v_mul_u32_u24(V(4), 160, V(4))
    a.v_and_b32(V(3), 3, V(1))
    a.v_lshl_add_u32(V(vo + 5), V(3), 3, V(4))


def repack_load(a, s_idx, s_keep, vo, vd, rsrc):
    a.s_and_b32(S(s_keep), S(s_idx), 7)
    a.s_lshr_b32(S(s_keep + 1), S(s_idx), 3)
    a.s_mul_i32(S(6), S(s_keep + 1), 32 * 1280)
    a.s_mul_i32(S(7), S(s_keep), 160)
    a.s_add_u32(S(6), S(6), S(7))
    return [a.buffer_load_dwordx4(V(vd + 4 * i, 4), V(vo + i), S(rsrc, 4), S(6), mods="offen") for i in range(5)]


def repack_proc(a, s_keep, vo, vd, tks, s_lds):
    a.v_lshl_add_u32(V(4), V(1), 4, S(s_lds))
    a.v_add_u32(V(5), S(s_lds), V(vo + 5))
    a.v_lshlrev_b32(V(7), 4, V(1))
    a.s_mul_i32(S(49), S(s_keep), 54)
    a.s_add_u32(S(49), S(49), S(s_keep + 1))
    a.s_mul_i32(S(49), S(49), 5 * 1024)
    a.s_add_u32(S(50), S(49), 4096)
    for i in range(5):
        a.wvm(tks[i])
        a.ds_write_b128(V(4), V(vd + 4 * i, 4), mods=f"offset:{1024*i}")
    if vd == 104:
        stamp(a, 4)
    rt = []
    for t in range(5):
        a.ds_read_b64_tr_b16(V(vd + 4 * t, 2), V(5), mods=f"offset:{32*t}")
        rt.append(a.ds_read_b64_tr_b16(V(vd + 4 * t + 2, 2), V(5), mods=f"offset:{32*t+16*160}"))
    for t in range(5):
        a.wds(rt[t])
        a.buffer_store_dwordx4(V(vd + 4 * t, 4), V(7), S(12, 4), S(49 if t < 4 else 50), mods=f"offen offset:{1024*(t%4)} sc1")


def aux_first(a):
    VL = 1
    S_AI, S_O = 60, 57
    a.s_sub_u32(S(S_AI), S(2), 160)
    a.s_mul_i32(S(S_O), S(S_AI), 3)
    a.s_add_u32(S(S_O), S(S_O), S(S_WAVE))
    a.v_lshrrev_b32(V(2), 3, V(VL))
    a.v_mul_u32_u24(V(2), 1280, V(2))
    a.v_and_b32(V(3), 7, V(VL))
    a.v_lshl_add_u32(V(2), V(3), 4, V(2))
    a.s_mul_i32(S(6), S(S_O), 10240)
    a.wait(lgkm=0)
    srd(a, 8, P_U, 0, 2048 * 640 * 2)
    return [a.buffer_load_dwordx4(V(16 + 4 * i, 4), V(2), S(8, 4), S(6), mods=f"offen offset:{128*i}") for i in range(10)]


def code_prefetch(a):
    a.s_getpc_b64(S(6, 2))
    a.label("L_PC")
    a.s_sub_u32(S(6), S(6), "L_PC-" + NAME + "_kernel")
    a.s_subb_u32(S(7), S(7), 0)
    a.v_lshlrev_b32(V(2), 7, V(1))
    for i in range(NCODE):
        a.v_min_u32(V(3), "L_END-" + NAME + "_kernel", V(2))
        a.global_load_dword(V(244), V(3), S(6, 2))
        a.v_add_u32(V(2), 8192, V(2))


def aux_role(a, xt):
    VL = 1
    S_AI, S_GW, S_KS, S_O = 60, 61, 62, 57
    XB = 16
    if xt is None:
        a.s_sub_u32(S(S_AI), S(2), 160)
        a.s_mov_b32(S(S_NONCE), S(4))
    a.s_lshl_b32(S(S_GW), S(S_AI), 2)
    a.s_add_u32(S(S_GW), S(S_GW), S(S_WAVE))
    a.s_mul_i32(S(S_KS), S(S_WAVE), 5120)
    a.s_add_u32(S(S_KS), S(S_KS), 143360)
    repack_addr(a, 64)
    srd(a, 24, P_W2, 0, 1728 * 640 * 2)
    srd(a, 28, P_W1, 0, 640 * 1728 * 2)
    tt = {}

    def wloads():
        tt[2] = repack_load(a, S_GW, 4, 64, 104, 24)
        if xt is None:
            a.s_add_u32(S(56), S(S_AI), 384)
            tt[3] = repack_load(a, 56, 58, 64, 72, 24)
        if os.environ.get("W1E", "0") == "1":
            a.v_lshlrev_b32(V(6), 7, V(VL))
            a.s_lshl_b32(S(6), S(S_GW), 13)
            a.buffer_load_dword(V(238), V(6), S(28, 4), S(6), mods="offen")

    AUXLATE = os.environ.get("AUXLATE", "1") == "1" and (xt is not None or os.environ.get("W3E", "0") != "1")
    if not AUXLATE:
        wloads()
    if xt is None:
        a.v_and_b32(V(71), 3, V(VL))
        a.v_lshlrev_b32(V(71), 10, V(71))
    else:
        a.s_lshl_b32(S(6), S(S_WAVE), 10)
        a.v_mov_b32(V(71), S(6))
    if xt is None:
        a.wvm(1)
        a.v_readfirstlane_b32(S(6), V(12))
        a.s_cmp_eq_u32(S(6), 0)
        a.s_cselect_b32(S(S_NONCE), S(S_NONCE), S(6))
        a.v_mov_b32(V(13), S(S_NONCE))
        a.ds_write_b32(V(71), V(13))
        a.wait(lgkm=0)
        stamp(a, 7)
        a.s_barrier()
    w1_addr(a, 4, 5)
    srd(a, 12, P_WS, W2P_OFF, W2P_SZ)
    if xt is not None:
        a.s_mov_b32(S(46), "0x3f803f80")
        for i in range(10):
            a.wvm(xt[i])
            for q in range(4):
                x = V(XB + 4 * i + q)
                first = (i == 0 and q < 2)
                a.v_dot2_f32_bf16(V(8 + (q & 1)), x, S(46), 0 if first else V(8 + (q & 1)))
                a.v_dot2_f32_bf16(V(10 + (q & 1)), x, x, 0 if first else V(10 + (q & 1)))
        stamp(a, 7)
        a.s_barrier()
        a.ds_read_b32(V(15), V(71))
        a.v_add_f32(V(8), V(8), V(9))
        a.v_add_f32(V(10), V(10), V(11))
        for m in ("quad_perm:[1,0,3,2]", "quad_perm:[2,3,0,1]", "row_half_mirror"):
            a.v_add_f32_dpp(V(8), V(8), V(8), mods=f"{m} row_mask:0xf bank_mask:0xf")
            a.v_add_f32_dpp(V(10), V(10), V(10), mods=f"{m} row_mask:0xf bank_mask:0xf")
        inv = f32(1.0 / 640)
        a.v_mul_f32(V(8), inv, V(8))
        a.v_mul_f32(V(10), inv, V(10))
        a.v_fma_f32(V(10), "-" + V(8), V(8), V(10))
        a.v_max_f32(V(10), 0, V(10))
        a.v_cvt_pk_bf16_f32(V(9), V(10), V(10))
        a.v_lshlrev_b32(V(10), 16, V(9))
        a.v_add_f32(V(10), f32(1e-5), V(10))
        a.v_cvt_pk_bf16_f32(V(9), V(10), V(10))
        a.v_lshlrev_b32(V(10), 16, V(9))
        a.v_sqrt_f32(V(10), V(10))
        a.v_cvt_pk_bf16_f32(V(14), V(8), V(10))
        a.v_and_b32(V(3), 7, V(VL))
        a.v_cmp_eq_u32("vcc", 0, V(3))
        a.v_mov_b32(V(9), "0x40000000")
        a.v_cndmask_b32(V(9), V(9), V(VL), "vcc")
        a.s_lshl_b32(S(6), S(S_O), 6)
        a.s_cmp_ge_u32(S(S_O), 256)
        a.s_cselect_b32(S(6), "0x40000000", S(6))
        a.wait(lgkm=0)
        a.buffer_store_dwordx2(V(14, 2), V(9), S(R_SY, 4), S(6), mods="offen sc1")
        a.v_readfirstlane_b32(S(S_NONCE), V(15))
        stamp(a, 1)
    if AUXLATE:
        wloads()
    repack_proc(a, 4, 64, 104, tt[2], S_KS)
    if xt is None:
        join = newlab("aj")
        a.s_cmp_ge_u32(S(56), 432)
        a.s_cbranch_scc1(join)
        repack_proc(a, 58, 64, 72, tt[3], S_KS)
        a.label(join)


def aux_tail(a):
    VL = 1
    S_AI = 60
    stamp(a, 5)
    t_rs = a.nvm
    a.v_lshlrev_b32(V(6), 7, V(VL))
    a.s_lshl_b32(S(6), S(61), 13)
    if os.environ.get("W1E", "0") != "1":
        a.buffer_load_dword(V(238), V(6), S(28, 4), S(6), mods="offen")
    w1_srd(a)
    a.v_mov_b32(V(31), V(VPA))
    QB = int(os.environ.get("QB", "0"))
    for q in range(QB):
        w1_dma(a, q, perm=eval(os.environ.get("AP", "[3, 4, 2, 0, 1]")))
    a.wvm(t_rs)
    stamp(a, 6)
    a.s_barrier()
    a.s_lshl_b32(S(6), S(S_AI), 7)
    a.s_add_u32(S(6), S(6), FRP)
    set_flag(a, S(6), 10)
    stamp(a, 2)
    LPF = os.environ.get("LPF", "late")

    def lpf(first, n):
        a.s_lshr_b32(S(5), S(S_AI), 3)
        a.s_mul_i32(S(5), S(5), 192 * 128)
        a.v_min_u32(V(2), 191, V(0))
        a.v_lshlrev_b32(V(2), 7, V(2))
        for i in range(n):
            a.s_add_u32(S(6), S(5), (first + i * 2304) * 128)
            a.buffer_load_dword(V(239), V(2), S(28, 4), S(6), mods="offen")

    if LPF == "all":
        lpf(0, 8)
    if LPF == "first":
        lpf(384 * 27, 3)
    for q in range(QB, 35):
        t_own = w1_dma(a, q, perm=eval(os.environ.get("AP", "[3, 4, 2, 0, 1]")))
    if LPF == "late":
        lpf(384 * 27, 3)
    if H1W:
        h1_prewrite_setup(a, 30)
        for q in range(4):
            a.v_mov_b32(V(212 + q), -1)
        for i in range(7):
            h1_prewrite(a, 30, 212, i)
    nocs = newlab("nocs")
    a.s_cmp_lt_u32(S(S_AI), 80)
    a.s_cbranch_scc1(nocs)
    a.v_lshrrev_b32(V(6), 2, V(VL))
    a.v_mul_u32_u24(V(6), 224, V(6))
    a.v_and_b32(V(7), 3, V(VL))
    a.v_lshl_add_u32(V(6), V(7), 3, V(6))
    a.s_mul_i32(S(47), S(S_WAVE), 5 * 7168)
    a.s_add_u32(S(47), S(47), S(S_D2))
    a.v_add_u32(V(6), S(47), V(6))
    for i in range(4):
        a.v_mov_b32(V(12 + i), "0x3f803f80")
    a.s_lshl_b32(S(47), S(S_WAVE), 9)
    a.s_add_u32(S(47), S(47), CSP_L)
    a.v_lshrrev_b32(V(7), 4, V(VL))
    a.v_lshl_add_u32(V(7), V(7), 4, S(47))
    a.wvm(t_own)
    a.s_barrier()
    FR, CA = 32, 176
    for kk in range(6):
        if kk < 5:
            for t in range(7):
                for hh in range(2):
                    a.ds_read_b64_tr_b16(V(FR + 28 * kk + 4 * t + 2 * hh, 2), V(6), mods=f"offset:{kk*7168 + hh*3584 + 32*t}")
        if kk:
            a.wait(lgkm=14 if kk < 5 else 0)
            for t in range(7):
                a.v_mfma_f32_16x16x32_bf16(V(CA + 4 * t, 4), V(FR + 28 * (kk - 1) + 4 * t, 4), V(12, 4), V(CA + 4 * t, 4) if kk > 1 else 0)
    a.s_mov_b32("exec_lo", "0x00010001")
    a.s_mov_b32("exec_hi", "0x00010001")
    for t in range(7):
        a.ds_write_b128(V(7), V(CA + 4 * t, 4), mods=f"offset:{64*t}")
    a.s_mov_b64("exec", -1)
    a.v_and_b32(V(8), 127, V(0))
    a.v_lshlrev_b32(V(9), 2, V(8))
    a.v_add_u32(V(9), CSP_L, V(9))
    a.v_lshlrev_b32(V(8), 3, V(8))
    calc_ct(a, 6)
    a.s_lshl_b32(S(6), S(6), 10)
    a.s_add_u32(S(6), S(6), FCS)
    a.wait(lgkm=0)
    a.s_barrier()
    for w in range(4):
        a.ds_read_b32(V(16 + w), V(9), mods=f"offset:{512*w}")
    a.wait(lgkm=0)
    a.v_add_f32(V(16), V(16), V(17))
    a.v_add_f32(V(18), V(18), V(19))
    a.v_add_f32(V(16), V(16), V(18))
    a.v_mov_b32(V(17), S(S_NONCE))
    a.s_cmp_ge_u32(S(S_WAVE), 2)
    a.s_cbranch_scc1(nocs)
    a.buffer_store_dwordx2(V(16, 2), V(8), S(R_SY, 4), S(6), mods="offen sc1")
    a.label(nocs)
    flag_addr(a, 45, 96, VL)
    a.s_mov_b32(S(62), FRP)
    poll_flags(a, 45, S(62), 96, 208)
    stamp(a, 3)
    a.s_mov_b32(S(22), 0)
    AW2 = eval(os.environ.get("AW2", "[]"))
    if AW2:
        srd(a, 24, P_WS, W2P_OFF, W2P_SZ)
        a.s_lshr_b32(S(5), S(S_AI), 3)
        a.s_mul_i32(S(5), S(5), 30 * 128)
        a.v_lshrrev_b32(V(47), 5, V(0))
        a.v_mul_u32_u24(V(47), 2160, V(47))
        a.v_and_b32(V(2), 31, V(0))
        a.v_min_u32(V(2), 29, V(2))
        a.v_add_u32(V(47), V(47), V(2))
        a.v_lshlrev_b32(V(47), 7, V(47))
        for i in AW2:
            a.s_add_u32(S(6), S(5), i * 360 * 128)
            a.buffer_load_dword(V(238), V(47), S(24, 4), S(6), mods="offen sc1")


def gemms(a):
    a.in_gemm = True
    VL = 1
    S_CT, S_TB, S_CT2, S_RB2 = 56, 57, 58, 59
    R_H, R_X, R_W2 = 8, 12, 20
    t_dma = a.nvm
    a.s_bfe_u32(S(S_CT2), S(2), "0x30004")
    a.v_lshlrev_b32(V(5), 4, V(VL))
    a.s_mov_b32(S(4), S(22))
    w2_srd(a)
    a.s_mul_i32(S(46), S(S_WAVE), 5 * 1024)
    ACC, BB = 16, 96
    W2V = 192
    NA = 8

    def w2dst(s, t):
        if s < 10:
            return A(56 + 20 * s + 4 * t, 4)
        if s < 12:
            return A(20 * (s - 10) + 4 * t, 4)
        return V(W2V + 20 * (s - 12) + 4 * t, 4)

    wtk = {}

    def wload(n, part=None):
        s, t = divmod(n, 5)
        if part != 1:
            if t == 0:
                a.s_add_u32(S(49), S(46), s * 20 * 1024)
            if t == 4:
                a.s_add_u32(S(49), S(49), 4096)
        if part == 0:
            return
        wtk[n] = a.buffer_load_dwordx4(w2dst(s, t), V(5), S(R_W2, 4), S(49), mods=f"offen offset:{1024*(t%4)} sc1")

    wq = list(range(70))
    NPRE = int(os.environ.get("NPRE", "20"))
    if NCW:
        skip = newlab("cw")
        a.s_cmp_lg_u32(S(4), 0)
        a.s_cbranch_scc1(skip)
        for _ in range(NCW):
            wload(wq.pop(0))
        a.nvm -= NCW
        a.label(skip)
    for _ in range(NPRE - NCW):
        wload(wq.pop(0))
    a.s_and_b32(S(4), S(2), 7)
    a.s_lshl_b32(S(5), S(4), 1)
    a.s_bfe_u32(S(6), S(2), "0x10007")
    a.s_add_u32(S(60), S(5), S(6))
    calc_ct(a, S_CT)
    a.s_lshl_b32(S(S_TB), S(60), 2)
    a.s_add_u32(S(S_TB), S(S_TB), S(S_WAVE))
    a.s_lshl_b32(S(5), S(60), 1)
    a.s_bfe_u32(S(6), S(2), "0x10003")
    a.s_add_u32(S(S_RB2), S(5), S(6))
    a.v_and_b32(V(2), 15, V(VL))
    a.v_lshrrev_b32(V(3), 4, V(VL))
    a.s_mul_i32(S(7), S(S_TB), 110592)
    srd2(a, R_X, P_WS, H1_OFF, S(7), 110592)
    a.s_mul_i32(S(7), S(S_TB), 40960)
    srd2(a, R_H, P_WS, H4_OFF, S(7), 40960)
    a.v_lshrrev_b32(V(6), 2, V(VL))
    a.v_mul_u32_u24(V(6), 224, V(6))
    a.v_and_b32(V(7), 3, V(VL))
    a.v_lshl_add_u32(V(6), V(7), 3, V(6))
    a.v_add_u32(V(6), S(S_D2), V(6))
    a.v_add_u32(V(7), 9 * 7168, V(6))
    a.v_add_u32(V(4), 18 * 7168, V(6))
    VAB = [6, 7, 4]
    a.s_mov_b32(S(63), 64)
    a.s_lshl_b32(S(47), S(S_WAVE), 9)
    a.s_add_u32(S(47), S(47), CS_L)
    VCR, VCW, VBP, VST6 = 8, 9, 10, 11
    a.v_lshl_add_u32(V(VCR), V(3), 4, S(47))
    a.v_lshl_add_u32(V(VCW), V(VL), 3, S(47))
    a.v_lshlrev_b32(V(VBP), 2, V(2))
    a.v_add_u32(V(VBP), 192, V(VBP))
    a.v_cmp_eq_u32("vcc", 3, V(3))
    a.v_mov_b32(V(VST6), "0x40000000")
    a.v_cndmask_b32(V(VST6), V(5), V(VST6), "vcc")
    a.s_lshl_b32(S(50), S(S_CT), 10)
    a.s_add_u32(S(50), S(50), FCS)
    a.s_mul_i32(S(51), S(S_CT), 27 * 256)
    a.s_add_u32(S(61), S(51), 4096)
    a.s_lshl_b32(S(62), S(60), 4)
    a.s_add_u32(S(62), S(62), S(S_CT))
    a.s_lshl_b32(S(62), S(62), 7)
    a.s_add_u32(S(62), S(62), FH1)
    flag_addr(a, 24, 160, VL)
    a.s_mov_b32(S(47), FH)
    a.wvm(t_dma)
    w1_patch(a, range(5), 12)
    skip = newlab("ph")
    a.s_cmp_lg_u32(S(S_WAVE), 0)
    a.s_cbranch_scc1(skip)
    poll_flags(a, 24, S(47), 160, 16)
    a.label(skip)
    a.wait(lgkm=0)
    a.s_barrier()
    stamp(a, 8)
    a.label("L_G1")
    btk = {}

    def bload(n, part=None):
        if n % 4 == 0 and part != 1:
            a.s_mov_b32(S(48), n * 1024)
        if part == 0:
            return
        btk[n] = a.buffer_load_dwordx4(V(BB + 4 * n, 4), V(5), S(R_H, 4), S(48), mods=f"offen offset:{(n%4)*1024} sc1")

    ctk = {}

    def csload(n, part=None):
        if part == 0:
            return
        ctk[0] = a.buffer_load_dwordx4(V(84, 4), V(5), S(R_SY, 4), S(50), mods="offen sc1")

    def areads(ks):
        out = []
        for t in range(7):
            for hh in range(2):
                out.append((A(28 * (ks % 2) + 4 * t + 2 * hh, 2), V(VAB[ks // 9]), f"offset:{(ks%9)*7168 + hh*3584 + 32*t}"))
        return out

    queue = [(bload, n) for n in range(40)] + [(csload, 0)] + [(wload, n) for n in wq if n < 50]
    for _ in range(12):
        f, n = queue.pop(0); f(n)
    atk = [a.ds_read_b64_tr_b16(d, ad, mods=mods) for d, ad, mods in areads(0)]
    CSR = 72
    S1 = [12, 13]
    NMv = [92, 94]
    NLP = eval(os.environ.get("NLP", "[3]"))
    a.wvm(btk[1])
    a.v_swap_b32(V(BB + 2), V(BB + 4))
    a.v_swap_b32(V(BB + 3), V(BB + 5))
    for ks in range(19):
        if ks == 15:
            a.wvm(ctk[0])
            a.v_xor_b32(V(85), S(S_NONCE), V(85))
            a.v_xor_b32(V(87), S(S_NONCE), V(87))
            a.v_or_b32(V(85), V(85), V(87))
            a.v_cmp_ne_u32("vcc", 0, V(85))
            a.s_cbranch_vccnz("L_CSW")
            a.label("L_CSOK")
            a.ds_write2_b32(V(VCW), V(84), V(86), mods="offset0:0 offset1:1")
        b = BB + 8 * ks
        if os.environ.get("G1ST", "0") == "1" and ks in (0, 4, 9, 14):
            stamp(a, {0: 1, 4: 2, 9: 3, 14: 4}[ks])
        nxt = areads(ks + 1)
        if ks == 18:
            nxt = nxt[12:] + nxt[:12]
        ntk = []
        lg = (1, 4, 10, 13)[:NLP[ks % len(NLP)]]
        bn = BB + 8 * (ks + 1)
        for t in range(7):
            for p in range(2):
                g = 2 * t + p
                acc = ACC + 8 * t + 4 * p
                if g == 0:
                    a.wds(atk[5])
                a.v_mfma_f32_16x16x32_bf16(V(acc, 4), A(28 * (ks % 2) + 4 * t, 4), V(b + 4 * p, 4), V(acc, 4) if ks else 0)
                d, ad, mods = nxt.pop(0)
                ntk.append(a.ds_read_b64_tr_b16(d, ad, mods=mods))
                if g + 1 in lg and queue:
                    f, n = queue[0]; f(n, 0)
                if g in lg and queue:
                    f, n = queue.pop(0); f(n, 1)
                if g == 5:
                    a.wboth(btk[2 * ks + 3], atk[13])
                if g == 7:
                    a.v_swap_b32(V(bn + 2), V(bn + 4))
                if g == 8:
                    a.v_swap_b32(V(bn + 3), V(bn + 5))
        atk = ntk
    b = BB + 8 * 19
    a.wds(atk[1])
    for p in range(2):
        acc = ACC + 48 + 4 * p
        a.v_mfma_f32_16x16x32_bf16(V(acc, 4), A(28 + 24, 4), V(b + 4 * p, 4), V(acc, 4))
    order = [6, 0, 1, 2, 3, 4, 5]
    cst = {}
    a.wds(atk[13])
    pre = []
    for t in range(6):
        for p in range(2):
            g = 2 * t + p
            acc = ACC + 8 * t + 4 * p
            a.v_mfma_f32_16x16x32_bf16(V(acc, 4), A(28 + 4 * t, 4), V(b + 4 * p, 4), V(acc, 4))
            if g < 3:
                cst[order[g]] = a.ds_read_b128(V(CSR + 4 * g, 4), V(VCR), mods=f"offset:{64*order[g]}")
            elif g < 5:
                t_bp = a.ds_bpermute_b32(V(S1[g - 3]), V(VBP), V(ACC + 48 + 4 * (g - 3)))
            elif g < 7:
                cst[order[g - 2]] = a.ds_read_b128(V(CSR + 4 * (g - 2), 4), V(VCR), mods=f"offset:{64*order[g-2]}")
            elif g == 9:
                a.wds(t_bp)
                a.v_cmp_u_f32("vcc", V(S1[0]), V(S1[1]))
                a.v_mul_f32(V(S1[0]), f32(1.0 / 640), V(S1[0]))
            elif g == 10:
                a.v_mul_f32(V(S1[1]), f32(1.0 / 640), V(S1[1]))
                a.v_cvt_pk_bf16_f32(V(NMv[1]), "-" + V(S1[0]), "-" + V(S1[1]))
            elif g == 11:
                a.v_lshlrev_b32(V(NMv[0]), 16, V(NMv[1]))
                a.v_and_b32(V(NMv[1]), "0xffff0000", V(NMv[1]))
    stamp(a, 9)
    a.s_cbranch_vccnz("L_G1RETRY")
    a.label("L_G1OK")
    for i, t in enumerate(order):
        cs = CSR + 4 * (i % 5)
        if i >= 3:
            a.wds(cst[t])
        for p in range(2):
            for hh in range(2):
                r = ACC + 8 * t + 4 * p + 2 * hh
                a.v_pk_fma_f32(V(r, 2), V(cs + 2 * hh, 2), V(NMv[p], 2), V(r, 2), mods="op_sel_hi:[1,0,1]")
        if i < 2:
            cst[order[5 + i]] = a.ds_read_b128(V(cs, 4), V(VCR), mods=f"offset:{64*order[5+i]}")
        ob = ACC + 8 * t
        for q in range(4):
            a.v_cvt_pk_bf16_f32(V(ob + q), V(ob + 2 * q), V(ob + 2 * q + 1))
        for q in range(4):
            a.v_pk_max_i16(V(ob + q), V(ob + q), 0)
        t_st = a.buffer_store_dwordx4(V(ob, 4), V(VST6 if t == 6 else 5), S(R_X, 4), S(51 if t < 4 else 61), mods=f"offen offset:{1024*(t%4)} sc1")
    queue += [(wload, n) for n in range(50, 60)]
    SQ = 72
    nep = int(os.environ.get("NEP", "10"))
    queue += [(wload, n) for n in range(60, 70)]
    for i_, ks in enumerate(list(range(12, 20)) + list(range(12))):
        for p in range(2):
            bb = BB + 8 * ks + 4 * p
            a.v_mfma_f32_16x16x32_bf16(V(SQ + 4 * p, 4), V(bb, 4), V(bb, 4), V(SQ + 4 * p, 4) if i_ else 0)
        if (i_ % 2 == 1 or nep > (20 - i_) // 2) and nep and queue:
            assert queue[0][1] < 60 or i_ >= 6
            f, n = queue.pop(0); f(n); nep -= 1
    HR = 232
    a.s_lshl_b32(S(4), S(S_RB2), 1)
    a.s_lshr_b32(S(6), S(S_WAVE), 1)
    a.s_add_u32(S(5), S(6), S(4))
    a.s_mul_i32(S(7), S(5), 40960)
    srd2(a, R_H, P_WS, H4_OFF, S(7), 40960)
    a.s_mul_i32(S(18), S(S_CT2), 20 * 256)
    a.s_and_b32(S(5), S(S_WAVE), 1)
    a.s_lshl_b32(S(5), S(5), 3)
    a.s_add_u32(S(18), S(18), S(5))
    a.s_add_u32(S(19), S(18), 4096)
    a.v_and_b32(V(8), 3, V(2))
    for r in (1, 2, 3):
        a.v_cmp_eq_u32("vcc", r, V(8))
        for p in range(2):
            a.v_cndmask_b32(V(SQ + 4 * p), V(SQ + 4 * p), V(SQ + 4 * p + r), "vcc")
    S2 = [SQ, SQ + 4]
    for p in range(2):
        a.v_mul_f32(V(S2[p]), f32(1.0 / 640), V(S2[p]))
    for p in range(2):
        a.v_fma_f32(V(S2[p]), "-" + V(S1[p]), V(S1[p]), V(S2[p]))
    for p in range(2):
        a.v_max_f32(V(S2[p]), 0, V(S2[p]))
    rnd2(a, S2[0], S2[1], 9)
    for p in range(2):
        a.v_add_f32(V(S2[p]), f32(1e-5), V(S2[p]))
    rnd2(a, S2[0], S2[1], 9)
    for p in range(2):
        a.v_sqrt_f32(V(S2[p]), V(S2[p]))
    rnd2(a, S2[0], S2[1], 9)
    for p in range(2):
        a.v_rcp_f32(V(S2[p]), V(S2[p]))
    a.v_lshrrev_b32(V(8), 2, V(2))
    a.s_lshl_b32(S(6), S(S_WAVE), 7)
    a.s_add_u32(S(6), S(6), RS_L)
    a.v_lshl_add_u32(V(9), V(2), 2, S(6))
    a.v_cmp_eq_u32("vcc", V(8), V(3))
    a.s_and_saveexec_b64(S(32, 2), "vcc")
    a.ds_write2_b32(V(9), V(S2[0]), V(S2[1]), mods="offset0:0 offset1:16")
    a.s_mov_b64("exec", S(32, 2))
    RB = [24, 28]
    a.s_lshl_b32(S(4), S(S_RB2), 1)
    a.s_lshr_b32(S(6), S(S_WAVE), 1)
    for lp in range(2):
        a.s_xor_b32(S(5), S(6), lp)
        a.s_add_u32(S(5), S(5), S(4))
        a.s_mul_i32(S(7), S(5), 110592)
        srd2(a, RB[lp], P_WS, H1_OFF, S(7), 110592)
    a.v_lshlrev_b32(V(8), 7, V(2))
    a.s_lshl_b32(S(47), S(60), 11)
    a.s_add_u32(S(47), S(47), FH1)
    a.s_add_u32(S(61), S(62), FH1B - FH1)
    a.s_mov_b32(S(63), int(os.environ.get("KA", "24")))
    a.v_mov_b32(V(14), S(S_NONCE))
    a.v_mov_b32(V(15), 0)
    a.wvm(t_st)
    a.s_barrier()
    skip = newlab("fa")
    a.s_cmp_lg_u32(S(S_WAVE), 0)
    a.s_cbranch_scc1(skip)
    a.s_mov_b64("exec", 1)
    if os.environ.get("NOA", "0") != "1":
        a.buffer_store_dword(V(14), V(15), S(R_SY, 4), S(62), mods="offen")
        a.nvm -= 1
    a.s_mov_b64("exec", -1)
    a.label(skip)
    stamp(a, 10)
    for _ in range(int(os.environ.get("NPOST", "6"))):
        if queue:
            f, n = queue.pop(0); f(n)
    HRL = os.environ.get("HRL", "1") == "1"

    hrt = {}

    def hrload(t):
        hrt[t] = a.buffer_load_dwordx2(V(HR + 2 * t, 2), V(5), S(R_H, 4), S(18 if t < 4 else 19), mods=f"offen offset:{1024*(t%4)} sc1")

    if not HRL:
        for t in range(5):
            hrload(t)
    skip = newlab("p1")
    a.s_cmp_lg_u32(S(S_WAVE), 0)
    a.s_cbranch_scc1(skip)
    save = a.nvm
    lp = newlab("p1l")
    a.label(lp)
    a.buffer_load_dword(V(12), V(8), S(R_SY, 4), S(47), mods="offen sc1")
    a.wait(vm=0)
    a.v_cmp_ne_u32("vcc", S(S_NONCE), V(12))
    a.s_cbranch_vccz(skip)
    a.s_sub_u32(S(63), S(63), 1)
    a.s_cbranch_scc0(lp)
    a.s_branch("L_SLOW1")
    a.label(skip)
    a.label("L_SLOW1X")
    a.nvm = save
    HR = 232
    a.s_lshl_b32(S(47), S(S_WAVE), 11)
    a.wait(lgkm=0)
    a.s_barrier()
    stamp(a, 11)
    NR = 12
    htk = {}

    def bbuf(u):
        return BB + 8 * (u % NR)

    def hload(n, part=None):
        u, hh = divmod(n, 2)
        s = u % 14
        if hh == 0 and part != 1:
            a.s_add_u32(S(48), S(47), s * 8192)
        if part == 0:
            return
        htk[n] = a.buffer_load_dwordx4(V(bbuf(u) + 4 * hh, 4), V(5), S(RB[1 if u < 14 else 0], 4), S(48), mods=f"offen offset:{1024*hh} {HLD}")

    def accr(lp, par, t):
        return ACC + ((2 * lp + par) * 5 + t) * 4

    nissued = 0
    for _ in range(12):
        hload(nissued); nissued += 1
    VRS, VW1_, VWP0, VWP1, VRD, VOUT = 4, 6, 7, 8, 9, 10
    a.s_bfe_u32(S(6), S(2), "0x10003")
    a.s_lshl_b32(S(6), S(6), 2)
    a.s_add_u32(S(6), S(6), S(S_WAVE))
    a.s_lshl_b32(S(6), S(6), 6)
    a.s_add_u32(S(6), S(6), RS_L)
    a.v_lshl_add_u32(V(VRS), V(2), 2, S(6))
    a.ds_read_b32(V(12), V(VRS))
    a.s_xor_b32(S(6), S(S_WAVE), 1)
    a.s_mul_i32(S(6), S(6), 20480)
    a.s_add_u32(S(6), S(6), 5120)
    a.v_add_u32(V(VW1_), S(6), V(5))
    for par, vw in ((0, VWP0), (1, VWP1)):
        a.s_and_b32(S(5), S(S_WAVE), 2)
        a.s_xor_b32(S(5), S(5), 2 + par)
        a.s_xor_b32(S(6), S(5), S(S_WAVE))
        a.s_mul_i32(S(5), S(5), 20480)
        a.s_mul_i32(S(6), S(6), 5120)
        a.s_add_u32(S(6), S(6), S(5))
        a.v_add_u32(V(vw), S(6), V(5))
    a.s_mul_i32(S(6), S(S_WAVE), 20480)
    a.v_add_u32(V(VRD), S(6), V(5))
    srd(a, 12, P_OUT, 0, 2048 * 640 * 2)
    a.v_mul_u32_u24(V(VOUT), 1280, V(2))
    WIDE = os.environ.get("WIDE", "1") == "1"
    a.v_and_b32(V(11), 1, V(3))
    a.v_lshl_add_u32(V(11), V(11), 5, V(VOUT))
    a.v_lshrrev_b32(V(13), 1, V(3))
    a.v_lshl_add_u32(V(11), V(13), 4, V(11))
    a.v_lshl_add_u32(V(VOUT), V(3), 3, V(VOUT))
    a.s_lshl_b32(S(50), S(S_RB2), 2)
    a.s_add_u32(S(50), S(50), S(S_WAVE))
    a.s_mul_i32(S(50), S(50), 16 * 1280)
    a.s_mul_i32(S(51), S(S_CT2), 160)
    a.s_add_u32(S(50), S(50), S(51))
    a.wvm(htk[1])
    a.v_swap_b32(V(bbuf(0) + 2), V(bbuf(0) + 4))
    a.v_swap_b32(V(bbuf(0) + 3), V(bbuf(0) + 5))
    UF = int(os.environ.get("UF", "24"))
    HG = eval(os.environ.get("HG", "(0, 3)"))
    R23 = accr(1, 0, 0)
    fill = []
    if HRL:
        queue += [(hrload, t) for t in range(5)]
    for u in range(UF):
        lp, s = (1, u) if u < 14 else (0, u - 14)
        b, bn = bbuf(u), bbuf(u + 1)
        if os.environ.get("G1ST", "0") == "1" and u in (0, 10, 20):
            stamp(a, {0: 5, 10: 6, 20: 7}[u])
        if u == 15:
            fill += [("w", accr(1, par, t), (VWP0, VWP1)[par], 1024 * t) for par in range(2) for t in range(5)]
        if u == 19:
            assert not fill
            a.wait(lgkm=0)
            a.s_barrier()
            fill += [("r", R23 + 20 * x + 4 * t, (x + 2) * 5120 + t * 1024) for x in range(2) for t in range(5)]
        if u == 21:
            a.wboth(hrt[4], t_r23)
            R3 = R23 + 20
            fill += [("v", "v_add_f32", (V(R23 + i), V(R23 + i), V(R3 + i))) for i in range(20)]
            for i in range(10):
                fill.append(("v", "v_lshlrev_b32", (V(R3 + 2 * i), 16, V(HR + i))))
                fill.append(("v", "v_and_b32", (V(R3 + 2 * i + 1), "0xffff0000", V(HR + i))))
            fill += [("v", "v_fma_f32", (V(R23 + i), V(R23 + i), V(12), V(R3 + i))) for i in range(20)]
        g = 0
        for t in range(5):
            for par in range(2):
                acc = accr(lp, par, t)
                a.v_mfma_f32_16x16x32_bf16(V(acc, 4), w2dst(s, t), V(b + 4 * par, 4), V(acc, 4) if s else 0)
                lim = min(56, 2 * (u + NR))
                if g in HG and nissued < lim:
                    hload(nissued); nissued += 1
                elif g == 8 and queue:
                    f, nn = queue.pop(0); f(nn)
                elif g == 4:
                    a.wvm(max(htk[2 * u + 3], wtk[min(69, 5 * s + 9)] if u < 13 else 0))
                elif g in (5, 6):
                    a.v_swap_b32(V(bn + g - 3), V(bn + g - 1))
                elif fill:
                    it = fill.pop(0)
                    if it[0] == "w":
                        a.ds_write_b128(V(it[2]), V(it[1], 4), mods=f"offset:{it[3]}")
                    elif it[0] == "r":
                        t_r23 = a.ds_read_b128(V(it[1], 4), V(VRD), mods=f"offset:{it[2]}")
                    else:
                        a.I(it[1], *it[2])
                        if fill:
                            it = fill.pop(0)
                            a.I(it[1], *it[2])
                g += 1
    assert nissued == 56 and not queue
    work0 = [(it[1], it[2]) for it in fill]

    def wbl2():
        nowb = newlab("nowb")
        a.s_lshr_b32(S(6), S(2), 3)
        a.s_add_u32(S(6), S(6), S(S_WAVE))
        a.s_cmp_lg_u32(S(6), 0)
        a.s_cbranch_scc1(nowb)
        a.I("buffer_wbl2", mods="sc1")
        a.label(nowb)

    WB = os.environ.get("WBL2", "0")
    odd, fin = newlab("odd"), newlab("fin")
    a.s_bitcmp1_b32(S(S_WAVE), 0)
    a.s_cbranch_scc1(odd)
    HU = R23
    R1 = bbuf(16)
    nds0, nvm1 = a.nds, a.nvm
    for par in range(2):
        a.nds, a.nvm = nds0, nvm1
        work = list(work0)
        for s in range(UF - 14, 14):
            u = 14 + s
            for t in range(5):
                acc = accr(0, par ^ 1, t)
                a.v_mfma_f32_16x16x32_bf16(V(acc, 4), w2dst(s, t), V(bbuf(u) + 4 * (par ^ 1), 4), V(acc, 4))
                if s < 13 and t == 0:
                    a.wvm(htk[2 * u + 3])
                if s < 13 and t in (1, 2):
                    a.v_swap_b32(V(bbuf(u + 1) + t + 1), V(bbuf(u + 1) + t + 3))
                else:
                    for _ in range(2):
                        if work:
                            op, args = work.pop(0); a.I(op, *args)
        if par == 0:
            skip = newlab("fb")
            a.s_cmp_lg_u32(S(S_WAVE), 0)
            a.s_cbranch_scc1(skip)
            a.s_mov_b64("exec", 1)
            a.buffer_store_dword(V(14), V(15), S(R_SY, 4), S(61), mods="offen sc1")
            a.s_mov_b64("exec", -1)
            a.label(skip)
        n = 0
        NB_ = 5 * (28 - UF) - 6
        for s in range(UF - 14, 14):
            u = 14 + s
            for t in range(5):
                acc = accr(0, par, t)
                a.v_mfma_f32_16x16x32_bf16(V(acc, 4), w2dst(s, t), V(bbuf(u) + 4 * par, 4), V(acc, 4))
                if 1 <= n <= 5:
                    tt_ = n - 1
                    a.ds_write_b128(V(VW1_), V(accr(0, par ^ 1, tt_), 4), mods=f"offset:{1024*tt_}")
                elif n == NB_:
                    a.wait(lgkm=0)
                    a.s_barrier()
                elif n > NB_:
                    rt = a.ds_read_b128(V(R1 + 4 * (n - NB_ - 1), 4), V(VRD), mods=f"offset:{5120 + (n-NB_-1)*1024}")
                else:
                    for _ in range(2):
                        if work:
                            op, args = work.pop(0); a.I(op, *args)
                n += 1
        while work:
            op, args = work.pop(0); a.I(op, *args)
        if os.environ.get("E0ST", "0") != "1":
            stamp(a, 12)
        if WB == "3" and par == 0:
            wbl2()
        a.wds(rt)
        for t in range(5):
            for hh in range(2):
                a.v_pk_fma_f32(V(HU + 4 * t + 2 * hh, 2), V(R1 + 4 * t + 2 * hh, 2), V(12, 2), V(HU + 4 * t + 2 * hh, 2), mods="op_sel_hi:[1,0,1]")
        for t in range(5):
            acc = accr(0, par, t)
            for hh in range(2):
                a.v_pk_fma_f32(V(acc + 2 * hh, 2), V(acc + 2 * hh, 2), V(12, 2), V(HU + 4 * t + 2 * hh, 2), mods="op_sel_hi:[1,0,1]")
            if WIDE:
                o = R1 + 2 * t
                for hh in range(2):
                    a.v_cvt_pk_bf16_f32(V(o + hh), V(acc + 2 * hh), V(acc + 2 * hh + 1))
                if t in (1, 3):
                    for hh in range(2):
                        a.v_permlane16_swap_b32(V(o - 2 + hh), V(o + hh))
                    a.buffer_store_dwordx4(V(o - 2, 4), V(11), S(12, 4), S(50), mods=f"offen offset:{32*(t-1)}")
                if t == 4:
                    a.buffer_store_dwordx2(V(o, 2), V(VOUT), S(12, 4), S(50), mods="offen offset:128")
                continue
            for hh in range(2):
                a.v_cvt_pk_bf16_f32(V(R1 + 4 * t + hh), V(acc + 2 * hh), V(acc + 2 * hh + 1))
            a.buffer_store_dwordx2(V(R1 + 4 * t, 2), V(VOUT), S(12, 4), S(50), mods=f"offen offset:{32*t} " + os.environ.get("OUTF", ""))
        if WB == "4" and par == 0:
            wbl2()
        if par == 0:
            a.s_branch(fin)
            a.label(odd)
    a.label(fin)


def slow_wait1(a):
    a.label("L_SLOW1")
    a.s_mov_b64("exec", 1)
    a.buffer_store_dword(V(14), V(15), S(R_SY, 4), S(61), mods="offen sc1")
    a.s_mov_b64("exec", -1)
    a.v_and_b32(V(9), 1, V(3))
    a.v_mul_u32_u24(V(9), FH1B - FH1, V(9))
    a.v_add_u32(V(8), V(8), V(9))
    lp = newlab("s1l")
    a.label(lp)
    a.buffer_load_dword(V(12), V(8), S(R_SY, 4), S(47), mods="offen sc1")
    a.wait(vm=0)
    a.v_cmp_ne_u32("vcc", S(S_NONCE), V(12))
    a.s_lshr_b32(S(6), "vcc_lo", 16)
    a.s_and_b32(S(6), "vcc_lo", S(6))
    a.s_mov_b32(S(7), 0)
    a.s_mov_b64("vcc", S(6, 2))
    spin_branch(a, lp)
    a.s_branch("L_SLOW1X")


def cs_wait(a):
    a.label("L_CSW")
    a.buffer_load_dwordx4(V(84, 4), V(5), S(R_SY, 4), S(50), mods="offen sc1")
    a.wait(vm=0)
    a.v_xor_b32(V(85), S(S_NONCE), V(85))
    a.v_xor_b32(V(87), S(S_NONCE), V(87))
    a.v_or_b32(V(85), V(85), V(87))
    a.v_cmp_ne_u32("vcc", 0, V(85))
    spin_branch(a, "L_CSW")
    a.s_branch("L_CSOK")


def gemm1_retry(a):
    a.label("L_G1RETRY")
    a.s_sub_u32(S(63), S(63), 1)
    a.s_cbranch_scc1("L_G1OK")
    if STAMPS and os.environ.get("DBGT", "0") != "1":
        a.v_mov_b32(V(80), 4)
        a.v_mov_b32(V(81), 1)
        a.s_mov_b64("exec", 1)
        a.buffer_atomic_add(V(81), V(80), S(R_DBG, 4), 0, mods="offen sc1")
        a.s_mov_b64("exec", -1)
    a.wait(vm=0)
    a.s_branch("L_G1")


NSTAMP = 13


def gen():
    a = Asm()
    a.s_load_dwordx16(S(16, 16), S(0, 2), 0)
    a.s_load_dwordx8(S(32, 8), S(0, 2), 64)
    a.s_load_dwordx4(S(40, 4), S(0, 2), 96)
    a.s_load_dwordx2(S(44, 2), S(0, 2), 112)
    a.s_memrealtime(S(4, 2))
    if STAMPS:
        for i in range(1, NSTAMP):
            a.s_mov_b32(S(76 + 2 * i), 0)
    stamp(a, 0)
    a.s_cmp_ge_u32(S(2), 256)
    a.s_cbranch_scc1("L_END")
    a.v_lshrrev_b32(V(1), 6, V(0))
    a.v_readfirstlane_b32(S(S_WAVE), V(1))
    a.v_and_b32(V(1), 63, V(0))

    def common_setup():
        a.s_mov_b32(S(S_SPIN), SPIN_MAX)
        a.s_getreg_b32(S(S_XCC), "hwreg(HW_REG_XCC_ID, 0, 4)")
        srd(a, R_DBG, P_DBG, 0, 256)
        srd(a, R_SY, P_WS, SY_OFF, SY_SZ)

    a.s_cmp_lt_u32(S(2), 160)
    a.s_cbranch_scc1("L_CONV")
    a.s_cmp_eq_u32(S(S_WAVE), 3)
    a.s_cbranch_scc1("L_AUX3")
    xt = aux_first(a)
    nvm_aux = a.nvm
    a.s_branch("L_AUX")
    a.label("L_AUX3")
    a.v_mov_b32(V(14), 0)
    a.v_mov_b32(V(13), 0)
    a.wait(lgkm=0)
    srd(a, R_DBG, P_DBG, 0, 256)
    a.s_or_b32(S(4), S(4), 1)
    a.v_mov_b32(V(12), S(4))
    a.s_mov_b64("exec", 1)
    a.buffer_atomic_cmpswap(V(12, 2), V(14), S(R_DBG, 4), 0, mods="offen sc0 sc1")
    a.s_mov_b64("exec", -1)
    if SYT:
        srd(a, R_SY, P_WS, SY_OFF, SY_SZ)
        a.s_sub_u32(S(6), S(2), 160)
        a.s_lshl_b32(S(6), S(6), 13)
        a.v_lshlrev_b32(V(2), 7, V(1))
        a.buffer_load_dword(V(245), V(2), S(R_SY, 4), S(6), mods="offen sc1")
    code_prefetch(a)
    a.s_branch("L_AUX3B")
    a.label("L_CONV")
    a.nvm = 0
    a.wait(lgkm=0)
    if os.environ.get("E0ST", "0") == "1":
        stamp(a, 12)
    ktk = conv_first(a)
    common_setup()
    conv_role(a, ktk)
    a.s_branch("L_COMMON")
    if POISON:
        gemm1_retry(a)
    cs_wait(a)
    slow_wait1(a)
    a.label("L_AUX3B")
    a.nvm = 1 + NCODE + (1 if SYT else 0)
    common_setup()
    aux_role(a, None)
    a.s_branch("L_AUXJ")
    a.label("L_AUX")
    a.nvm = nvm_aux
    common_setup()
    aux_role(a, xt)
    a.label("L_AUXJ")
    aux_tail(a)
    a.label("L_COMMON")
    gemms(a)
    if STAMPS:
        a.wait(vm=0)
        a.s_memrealtime(S(4, 2))
        a.wait(lgkm=0)
        srd(a, 8, P_WS, ST_OFF, 0x100000)
        a.s_lshl_b32(S(6), S(2), 2)
        a.s_add_u32(S(6), S(6), S(S_WAVE))
        a.s_lshl_b32(S(6), S(6), 6)
        for i in range(NSTAMP):
            a.v_mov_b32(V(8 + i), S(76 + 2 * i))
        a.v_mov_b32(V(8 + NSTAMP), S(4))
        a.v_mov_b32(V(2), 0)
        a.s_mov_b64("exec", 1)
        for q in range(4):
            a.buffer_store_dwordx4(V(8 + 4 * q, 4), V(2), S(8, 4), S(6), mods=f"offen offset:{16*q}")
        if os.environ.get("DBGT", "0") == "1":
            a.v_not_b32(V(30), V(8))
            a.buffer_atomic_umax(V(30), V(2), S(R_DBG, 4), 0, mods="offen offset:4 sc1")
            for i in range(NSTAMP + 1):
                a.buffer_atomic_umax(V(8 + i), V(2), S(R_DBG, 4), 0, mods=f"offen offset:{8+4*i} sc1")
    if os.environ.get("PROBE", "") != "":
        k = int(os.environ["PROBE"])
        a.s_cmp_ge_u32(S(2), 160)
        a.s_cbranch_scc1("L_END")
        a.s_sub_u32(S(6), S(76 + 2 * k), S(S_NONCE))
        a.s_lshl_b32(S(6), S(6), 1)
        a.s_add_u32(S(6), S(6), 3000)
        a.s_min_u32(S(6), S(6), 20000)
        a.label("L_PRB")
        a.s_memrealtime(S(4, 2))
        a.wait(lgkm=0)
        a.s_sub_u32(S(4), S(4), S(S_NONCE))
        a.s_cmp_lt_u32(S(4), S(6))
        a.s_cbranch_scc1("L_PRB")
    if os.environ.get("FIXT", "0") != "0":
        a.label("L_FIX")
        a.s_memrealtime(S(4, 2))
        a.wait(lgkm=0)
        a.s_sub_u32(S(4), S(4), S(S_NONCE))
        a.s_cmp_lt_u32(S(4), int(os.environ["FIXT"]))
        a.s_cbranch_scc1("L_FIX")
    a.label("L_END")
    a.s_endpgm()
    return kernel_text(NAME + "_kernel", a, 256, nagpr=256, nsgpr=102)


def main(path):
    ref = open(f"cdna_kernels/{NAME}.s.ref").read().splitlines()
    head = [l for l in ref if l.startswith(";") and "@launch" not in l]
    out = "\n".join(head) + "\n"
    out += f"; @launch grid=(256,1,1) block=(256,1,1) lds={LDS_SZ}\n"
    out += '.amdgcn_target "amdgcn-amd-amdhsa--gfx950"\n'
    out += gen()
    open(path, "w").write(out)


if __name__ == "__main__":
    main(sys.argv[1] if len(sys.argv) > 1 else f"cdna_kernels/{NAME}.s")
```
